```python
import torch

def _softmax(x, axis=-1):
    return torch.softmax(x, dim=axis)
def _gelu(x):
    return torch.nn.functional.gelu(x, approximate="tanh")
def _silu(x):
    return torch.nn.functional.silu(x)
def _sigmoid(x):
    return torch.sigmoid(x)
def _layernorm(x, axis=-1, eps=1e-5):
    m = x.mean(dim=axis, keepdim=True)
    v = x.var(dim=axis, keepdim=True, unbiased=False)
    return (x - m) / torch.sqrt(v + eps)
def _scatter_add(tgt, idx, src, axis=0):
    return tgt.clone().index_add_(axis, idx, src)
def _segment_sum(src, seg, n):
    out = torch.zeros((n,) + src.shape[1:], dtype=src.dtype)
    return out.index_add_(0, seg, src)
def _pad(x, pw):
    flat = tuple(v for pair in reversed(pw) for v in pair)
    return torch.nn.functional.pad(x, flat)

kernel_name = 'standalone__mha_softmax__near_ridge'

def setup_inputs():

    _w = (lambda a: (lambda t: t.to(torch.bfloat16) if t.is_floating_point() else t)(torch.as_tensor(a)))
    B, H, Sq, Sk, D = 32, 32, 256, 512, 128
    return {
        "q": _w((lambda *s: torch.randn(*s, dtype=torch.bfloat16) * 0.8)(B, H, Sq, D)),
        "k": _w((lambda *s: torch.randn(*s, dtype=torch.bfloat16) * 0.8)(B, H, Sk, D)),
        "v": _w((lambda *s: torch.randn(*s, dtype=torch.bfloat16) * 0.05)(B, H, Sk, D)),
    }

def reference(q, k, v):
    scale = q.shape[-1] ** -0.5
    scores = torch.einsum("bhqd,bhkd->bhqk", q, k) * scale
    p = _softmax(scores, axis=-1)
    return torch.einsum("bhqk,bhkd->bhqd", p, v)
```

```python
import sys, struct, argparse

def f32bits(x):
    return struct.unpack('<I', struct.pack('<f', x))[0]

NAME = "standalone__mha_softmax__near_ridge"

HEADER = """; Kernarg layout for this problem (48 bytes, ptrs only, base s[0:1]):
"""

class Gen:
    def __init__(self, o):
        self.o = o
        self.lines = []
        self.tail = []
    def e(self, s):
        self.lines.append("    " + s)
    def lab(self, s):
        self.lines.append(s + ":")
    def c(self, s):
        self.lines.append("    ; " + s)

V_O = 0
V_Q = 64
V_S = 96
V_P = 128
V_KF = 144
V_VF = 176
V_KA = 208
V_VA = 216
V_T = 220
V_DK = 228
V_DK2 = 229
V_DV = 230
V_ST = 231
V_L = 232
V_BS = 233
V_NMC = 234
V_X0 = 235
V_X1 = 236
V_X2 = 237
V_WQ = 238
NVGPR = 240

S_QSRD, S_KSRD, S_VSRD, S_OSRD = 4, 8, 12, 16
S_QOFF, S_KOFF, S_VOFF, S_OOFF = 20, 21, 22, 23
S_HEAD, S_WLDS, S_C, S_THR = 24, 25, 26, 27
S_TMP = 28
S_WSRD = 32
S_TS = 36
S_STAMPOFF = 38

SLOT = 16384
NSLOT = 10
UNITS = [('Q', 0), ('Q', 1), ('Q', 2), ('Q', 3), ('K', 0)]
for j in range(1, 8):
    UNITS += [('K', j), ('V', j - 1)]
UNITS += [('V', 7)]
assert len(UNITS) == 20
def slot_of(kind, j):
    return UNITS.index((kind, j)) % NSLOT

def vr(b, n=1):
    return f"v{b}" if n == 1 else f"v[{b}:{b+n-1}]"
def sr(b, n=1):
    return f"s{b}" if n == 1 else f"s[{b}:{b+n-1}]"

def build(o):
    g = Gen(o)
    e = g.e
    ldflags = (" " + o.ldflags) if o.ldflags else ""
    stflags = (" " + o.stflags) if o.stflags else ""

    def dma_unit(ui):
        kind, j = UNITS[ui % 20]
        slot = ui % NSLOT
        srd = {'Q': S_QSRD, 'K': S_KSRD, 'V': S_VSRD}[kind]
        soff = {'Q': S_QOFF, 'K': S_KOFF, 'V': S_VOFF}[kind]
        v0 = V_DV if kind == 'V' else V_DK
        v1 = V_DV if kind == 'V' else (V_DK2 if o.kswz16 else V_DK)
        last = (kind == 'Q' and j == 3) or (kind != 'Q' and j == 7)
        inc = SLOT
        if o.strided and last:
            inc += 255 * (65536 if kind == 'Q' else 131072)
        return [[f"s_add_u32 m0, {sr(S_WLDS)}, {slot*SLOT}",
                 "s_nop 0",
                 f"buffer_load_dwordx4 {vr(v0)}, {sr(srd,4)}, {sr(soff)} offen{ldflags} lds"],
                [f"buffer_load_dwordx4 {vr(v1)}, {sr(srd,4)}, {sr(soff)} offen offset:1024{ldflags} lds",
                 f"s_add_u32 {sr(soff)}, {sr(soff)}, {inc}"]]

    stampn = [0]
    def stamp():
        if not o.stamps:
            return
        e(f"s_memtime {sr(S_TS,2)}")
        e("s_waitcnt lgkmcnt(0)")
        e(f"v_mov_b32 {vr(V_X2)}, {sr(S_TS)}")
        e(f"v_mov_b32 {vr(V_X1)}, 0")
        e(f"buffer_store_dword {vr(V_X2)}, {vr(V_X1)}, {sr(S_WSRD,4)}, {sr(S_STAMPOFF)} offen")
        e(f"s_add_u32 {sr(S_STAMPOFF)}, {sr(S_STAMPOFF)}, 4")
        stampn[0] += 1

    e(f"s_cmp_ge_u32 s2, 256")
    e("s_cbranch_scc1 L_end")
    e("s_load_dwordx4 s[40:43], s[0:1], 0")
    e("s_load_dwordx4 s[44:47], s[0:1], 16")
    if o.stamps:
        e("s_load_dwordx2 s[48:49], s[0:1], 40")
    e(f"v_lshrrev_b32 v1, 6, v0")
    e(f"v_and_b32 v2, 63, v0")
    e(f"v_readfirstlane_b32 {sr(S_TMP)}, v1")
    e(f"v_lshrrev_b32 v3, 4, v2")
    e(f"v_and_b32 v4, 15, v2")
    e(f"v_lshl_add_u32 v5, v1, 3, v3")
    e(f"v_lshlrev_b32 v5, 8, v5")
    if o.kswz16:
        e(f"v_and_b32 v6, 1, v1")
        e(f"v_lshl_add_u32 v6, v6, 3, v3")
    else:
        e(f"v_and_b32 v6, 3, v1")
        e(f"v_lshl_add_u32 v6, v6, 2, v3")
    e(f"v_xor_b32 v6, v6, v4")
    e(f"v_lshl_add_u32 {vr(V_DK)}, v6, 4, v5")
    e(f"v_xor_b32 {vr(V_DK2)}, 64, {vr(V_DK)}")
    e(f"v_lshlrev_b32 v6, 2, v3")
    e(f"v_xor_b32 v6, v6, v4")
    e(f"v_lshl_add_u32 {vr(V_DV)}, v6, 4, v5")
    e(f"v_and_b32 v7, 31, v2")
    e(f"v_lshrrev_b32 v8, 5, v2")
    if o.kswz16:
        e(f"v_and_b32 v9, 15, v7")
    else:
        e(f"v_and_b32 v9, 3, v7")
        e(f"v_lshrrev_b32 v10, 3, v7")
        e(f"v_lshl_add_u32 v9, v10, 2, v9")
    e(f"v_xor_b32 v9, v9, v8")
    e(f"v_lshlrev_b32 v9, 4, v9")
    e(f"v_lshl_add_u32 {vr(V_KA)}, v7, 8, v9")
    for s in range(1, 8):
        e(f"v_xor_b32 {vr(V_KA+s)}, {s*32}, {vr(V_KA)}")
    e(f"v_bfe_u32 v9, v2, 2, 2")
    e(f"v_lshl_add_u32 v10, v8, 2, v9")
    e(f"v_lshlrev_b32 v10, 8, v10")
    e(f"v_lshl_add_u32 v10, v9, 6, v10")
    e(f"v_bfe_u32 v11, v2, 4, 1")
    e(f"v_lshl_add_u32 v10, v11, 5, v10")
    e(f"v_and_b32 v11, 1, v2")
    e(f"v_lshl_add_u32 v10, v11, 4, v10")
    e(f"v_bfe_u32 v11, v2, 1, 1")
    e(f"v_lshl_add_u32 {vr(V_VA)}, v11, 3, v10")
    for t in range(1, 4):
        e(f"v_xor_b32 {vr(V_VA+t)}, {t*64}, {vr(V_VA)}")
    if o.stpat == 0:
        e(f"v_lshl_add_u32 v10, v1, 5, v7")
        e(f"v_lshlrev_b32 v10, 8, v10")
        e(f"v_lshl_add_u32 {vr(V_ST)}, v8, 4, v10")
    else:
        e(f"v_lshlrev_b32 v10, 13, v1")
        e(f"v_lshl_add_u32 {vr(V_ST)}, v2, 4, v10")
    e(f"v_lshlrev_b32 {vr(V_WQ)}, 13, v1")
    e(f"s_lshl_b32 {sr(S_WLDS)}, {sr(S_TMP)}, 11")
    e(f"s_mov_b32 {sr(S_C)}, {hex(f32bits(128**-0.5 * 1.4426950408889634))}")
    e(f"s_mov_b32 {sr(S_THR)}, {hex(f32bits(o.thr))}")
    e(f"s_mov_b32 {sr(S_HEAD)}, 0")
    e("s_waitcnt lgkmcnt(0)")
    for srd, p in ((S_QSRD, 40), (S_KSRD, 42), (S_VSRD, 44), (S_OSRD, 46)):
        e(f"s_mov_b32 {sr(srd)}, s{p}")
        e(f"s_and_b32 {sr(srd+1)}, s{p+1}, 0xffff")
        e(f"s_mov_b32 {sr(srd+3)}, 0x20000")
    if o.strided:
        e(f"s_lshl_b32 {sr(S_QOFF)}, s2, 16")
        e(f"s_lshl_b32 {sr(S_KOFF)}, s2, 17")
        e(f"s_mov_b32 {sr(S_QSRD+2)}, {1<<26}")
        e(f"s_mov_b32 {sr(S_KSRD+2)}, {1<<27}")
        e(f"s_mov_b32 {sr(S_VSRD+2)}, {1<<27}")
        e(f"s_mov_b32 {sr(S_OSRD+2)}, {1<<26}")
    else:
        e(f"s_lshl_b32 {sr(S_QOFF)}, s2, 18")
        e(f"s_lshl_b32 {sr(S_KOFF)}, s2, 19")
        e(f"s_add_u32 {sr(S_QSRD+2)}, {sr(S_QOFF)}, {1<<18}")
        e(f"s_add_u32 {sr(S_KSRD+2)}, {sr(S_KOFF)}, {1<<19}")
        e(f"s_mov_b32 {sr(S_VSRD+2)}, {sr(S_KSRD+2)}")
        e(f"s_mov_b32 {sr(S_OSRD+2)}, {sr(S_QSRD+2)}")
    e(f"s_mov_b32 {sr(S_VOFF)}, {sr(S_KOFF)}")
    e(f"s_mov_b32 {sr(S_OOFF)}, {sr(S_QOFF)}")
    if o.stamps:
        e(f"s_mov_b32 {sr(S_WSRD)}, s48")
        e(f"s_and_b32 {sr(S_WSRD+1)}, s49, 0xffff")
        e(f"s_mov_b32 {sr(S_WSRD+2)}, {1<<24}")
        e(f"s_mov_b32 {sr(S_WSRD+3)}, 0x20000")
        e(f"s_lshl_b32 {sr(S_STAMPOFF)}, s2, 3")
        e(f"s_add_u32 {sr(S_STAMPOFF)}, {sr(S_STAMPOFF)}, {sr(S_TMP)}")
        e(f"s_lshl_b32 {sr(S_STAMPOFF)}, {sr(S_STAMPOFF)}, 10")
    if o.prio:
        e(f"s_cmp_ge_u32 {sr(S_TMP)}, 4")
        e("s_cbranch_scc0 L_prio_done")
        e("s_setprio 1")
        g.lab("L_prio_done")
    for ui in range(9):
        for grp in dma_unit(ui):
            for ins in grp:
                e(ins)

    kcur = [0]
    vcur = [6]
    for t in range(4):
        e(f"v_add_u32 {vr(V_VA+t)}, {6*SLOT}, {vr(V_VA+t)}")

    def kwin(slot, pref=None):
        if 0 <= slot - kcur[0] <= 3:
            return []
        new = slot if pref is None else pref
        d = (new - kcur[0]) * SLOT
        kcur[0] = new
        return [f"v_add_u32 {vr(V_KA+s)}, {d & 0xffffffff}, {vr(V_KA+s)}" for s in range(8)]
    def vwin(slot, pref=None):
        if 0 <= slot - vcur[0] <= 3:
            return []
        new = slot if pref is None else pref
        d = (new - vcur[0]) * SLOT
        vcur[0] = new
        return [f"v_add_u32 {vr(V_VA+t)}, {d & 0xffffffff}, {vr(V_VA+t)}" for t in range(4)]

    def kreads(b):
        slot = slot_of('K', b // 2)
        pre = kwin(slot)
        off = (slot - kcur[0]) * SLOT + (b % 2) * 8192
        return pre, [f"ds_read_b128 {vr(V_KF+4*s,4)}, {vr(V_KA+s)} offset:{off}" for s in range(8)]
    def vreads(b):
        slot = slot_of('V', b // 2)
        pref = None
        if slot >= 6: pref = 6
        pre = vwin(slot, pref)
        r = []
        for u in range(2):
            for t in range(4):
                for w in range(2):
                    off = (slot - vcur[0]) * SLOT + (2 * (b % 2) + u) * 4096 + w * 2048
                    r.append(f"ds_read_b64_tr_b16 {vr(V_VF+4*(4*u+t)+2*w,2)}, {vr(V_VA+t)} offset:{off}")
        return pre, r
    def qk(b):
        S = V_S + 16 * (b % 2)
        return [f"v_mfma_f32_32x32x16_bf16 {vr(S,16)}, {vr(V_KF+4*s,4)}, {vr(V_Q+4*s,4)}, " + ("0" if s == 0 else vr(S, 16)) for s in range(8)]
    def pv(b):
        P = V_P + 8 * (b % 2)
        r = []
        for u in range(2):
            for t in range(4):
                O = V_O + 16 * t
                cc = "0" if (b == 0 and u == 0) else vr(O, 16)
                r.append(f"v_mfma_f32_32x32x16_bf16 {vr(O,16)}, {vr(V_VF+4*(4*u+t),4)}, {vr(P+4*u,4)}, {cc}")
        return r
    def sm(b):
        S = V_S + 16 * (b % 2)
        P = V_P + 8 * (b % 2)
        T = lambda k: vr(V_T + k % 8)
        r = []
        for k in range(16 + 2):
            if k < 16:
                r.append(f"v_fma_f32 {T(k)}, {vr(S+k)}, {sr(S_C)}, {vr(V_NMC)}")
            if 0 <= k - 1 < 16:
                r.append(f"v_exp_f32 {T(k-1)}, {T(k-1)}")
            if k == 17:
                r.append("s_nop 0")
            j = k - 2
            if 0 <= j < 16:
                if j == 1:
                    r.append(f"v_add_f32 {vr(V_BS)}, {T(0)}, {T(1)}")
                elif j >= 2:
                    r.append(f"v_add_f32 {vr(V_BS)}, {vr(V_BS)}, {T(j)}")
                if j % 2 == 1:
                    r.append(f"v_cvt_pk_bf16_f32 {vr(P+j//2)}, {T(j-1)}, {T(j)}")
        return r
    def rowmax(b, dst):
        S = V_S + 16 * (b % 2)
        r = [f"v_max3_f32 {vr(dst)}, {vr(S)}, {vr(S+1)}, {vr(S+2)}"]
        for k in range(3, 15, 2):
            r.append(f"v_max3_f32 {vr(dst)}, {vr(dst)}, {vr(S+k)}, {vr(S+k+1)}")
        r.append(f"v_max_f32 {vr(dst)}, {vr(dst)}, {vr(S+15)}")
        r.append(f"v_mov_b32 {vr(V_X1)}, {vr(dst)}")
        r.append("s_nop 1")
        r.append(f"v_permlane32_swap_b32 {vr(dst)}, {vr(V_X1)}")
        r.append(f"v_max_f32 {vr(dst)}, {vr(dst)}, {vr(V_X1)}")
        return r

    def interleave(mf, streams, lead=0):
        n = max(len(mf), 1)
        gaps = [[] for _ in range(n)]
        for groups, frac in streams:
            ng = max(1, int(round(n * frac)))
            for i, gr in enumerate(groups):
                gi = min(ng - 1, i * ng // max(len(groups), 1))
                gaps[gi].append(gr)
        for i in range(n):
            if mf:
                e(mf[i])
            for gr in gaps[i]:
                for ins in gr:
                    e(ins)
    single = lambda l: [[x] for x in l]

    def barrier(k, vm, vm_first=None):
        g.c(f"---- barrier B{k}")
        if vm_first is not None:
            e(f"s_cmp_lg_u32 {sr(S_HEAD)}, 0")
            e(f"s_cbranch_scc1 L_w{k}")
            e(f"s_waitcnt vmcnt({vm_first})")
            g.lab(f"L_w{k}")
        e(f"s_waitcnt vmcnt({vm}) lgkmcnt(0)")
        stamp_extra = 0
        e("s_barrier")

    NST = 8 if o.store else 0
    issue = {0: [9], 1: [10, 11, 12, 13, 14]}
    for k in range(2, 9):
        issue[k] = [15 + 2 * (k - 2), 16 + 2 * (k - 2)]
    vmw = {0: 8 + NST, 1: 6 + NST, 2: 12 + NST, 3: 12, 4: 12, 5: 12, 6: 12, 7: 12, 8: 14}
    vmf = {0: 8, 1: 6, 2: 12}
    def dmas(k):
        r = []
        for ui in issue[k]:
            r += dma_unit(ui)
        return r

    g.lines.append(".p2align 6")
    g.lab("L_head")
    fallbacks = []
    if not o.compute:
        for k in range(9):
            barrier(k, vmw[k], vmf.get(k) if NST else None)
            for gr in dmas(k):
                for ins in gr: e(ins)
            if o.delay:
                e(f"s_sleep {o.delay}")
    else:
        barrier(0, vmw[0], vmf[0] if NST else None)
        pre = kwin(0)
        for x in pre: e(x)
        for s in range(8):
            e(f"v_add_u32 {vr(V_Q+4*s)}, {vr(V_WQ)}, {vr(V_KA+s)}")
            e(f"ds_read_b128 {vr(V_Q+4*s,4)}, {vr(V_Q+4*s)} offset:{(0-kcur[0])*SLOT}")
        pre, kr = kreads(0)
        for x in pre + kr: e(x)
        for gr in dmas(0):
            for ins in gr: e(ins)
        e("s_waitcnt lgkmcnt(0)")
        pre, kr = kreads(1)
        assert not pre
        m = qk(0)
        for s in range(8):
            e(m[s]); e(kr[s])
        e(f"v_mov_b32 {vr(V_L)}, 0")
        for b in range(0, 17):
            g.c(f"==== iter {b} phase A")
            e("s_waitcnt lgkmcnt(0)")
            smi = sm(b) if b < 16 else []
            if b == 0:
                init = ["s_nop 7", "s_nop 3"] + rowmax(0, V_X0) + [f"v_mul_f32 {vr(V_NMC)}, {sr(S_C)}, {vr(V_X0)}", f"v_sub_f32 {vr(V_NMC)}, 0, {vr(V_NMC)}"]
                smA, smB = init + smi[:8], smi[8:]
            else:
                hl = len(smi) // 2
                smA, smB = smi[:hl], smi[hl:]
            if b >= 1:
                pre, rd = vreads(b - 1)
            else:
                pre, rd = [], []
            mf = qk(b + 1) if b + 1 < 16 else []
            extra = []
            if b == 16:
                extra = [f"v_mov_b32 {vr(V_X1)}, {vr(V_L)}", "s_nop 1",
                         f"v_permlane32_swap_b32 {vr(V_L)}, {vr(V_X1)}",
                         f"v_add_f32 {vr(V_L)}, {vr(V_L)}, {vr(V_X1)}",
                         f"v_rcp_f32 {vr(V_X0)}, {vr(V_L)}"]
            for x in pre: e(x)
            interleave(mf, [(single(rd), o.rdfrac), (single(smA + extra), 1.0)])
            g.c(f"==== iter {b} phase B")
            dm = []
            if b % 2 == 0 and b <= 14:
                k = b // 2 + 1
                barrier(k, vmw[k], (vmf.get(k) if NST else None))
                dm = dmas(k)
            else:
                e("s_waitcnt lgkmcnt(0)")
            if b + 2 < 16:
                pre, rd = kreads(b + 2)
            else:
                pre, rd = [], []
            mf = pv(b - 1) if b >= 1 else []
            for x in pre: e(x)
            interleave(mf, [(single(rd), o.rdfrac), (dm, 1.0), (single(smB), 1.0)])
            if b < 16:
                if b >= 1:
                    e(f"v_cmp_nge_f32 vcc, {sr(S_THR)}, {vr(V_BS)}")
                    e(f"s_cbranch_vccnz L_fb{b}")
                    g.lab(f"L_ret{b}")
                    fallbacks.append(b)
                e(f"v_add_f32 {vr(V_L)}, {vr(V_L)}, {vr(V_BS)}")
        g.c("==== epilogue")
        e("s_nop 15")
        for t in range(4):
            for i in range(16):
                e(f"v_mul_f32 {vr(V_O+16*t+i)}, {vr(V_O+16*t+i)}, {vr(V_X0)}")
            for i in range(8):
                e(f"v_cvt_pk_bf16_f32 {vr(V_KF+8*t+i)}, {vr(V_O+16*t+2*i)}, {vr(V_O+16*t+2*i+1)}")
            if o.store:
                for k in range(2):
                    e(f"buffer_store_dwordx4 {vr(V_KF+8*t+4*k,4)}, {vr(V_ST)}, {sr(S_OSRD,4)}, {sr(S_OOFF)} offen offset:{64*t+32*k}{stflags}")
        for x in vwin(6 if vcur[0] != 6 else 6, 6): e(x)
        if vcur[0] != 6:
            raise Exception("vcur")
    if not o.compute and o.store:
        for t in range(8):
            off = 32 * t if o.stpat == 0 else 0
            if o.stpat == 0:
                e(f"buffer_store_dwordx4 {vr(V_KF+4*t,4)}, {vr(V_ST)}, {sr(S_OSRD,4)}, {sr(S_OOFF)} offen offset:{off}{stflags}")
            else:
                if t == 4:
                    e(f"s_add_u32 {sr(S_OOFF)}, {sr(S_OOFF)}, 4096")
                e(f"buffer_store_dwordx4 {vr(V_KF+4*t,4)}, {vr(V_ST)}, {sr(S_OSRD,4)}, {sr(S_OOFF)} offen offset:{1024*(t%4)}{stflags}")
        if o.stpat != 0:
            e(f"s_sub_u32 {sr(S_OOFF)}, {sr(S_OOFF)}, 4096")
    if o.compute:
        if kcur[0] != 0:
            d = (0 - kcur[0]) * SLOT
            kcur[0] = 0
            for s in range(8):
                e(f"v_add_u32 {vr(V_KA+s)}, {d & 0xffffffff}, {vr(V_KA+s)}")
    e(f"s_add_u32 {sr(S_OOFF)}, {sr(S_OOFF)}, {65536*256 if o.strided else 65536}")
    e(f"s_add_u32 {sr(S_HEAD)}, {sr(S_HEAD)}, 1")
    e(f"s_cmp_lt_u32 {sr(S_HEAD)}, 4")
    e("s_cbranch_scc1 L_head")
    g.lab("L_end")
    e("s_endpgm")
    for b in fallbacks:
        g.lab(f"L_fb{b}")
        e("s_nop 15")
        for x in rowmax(b, V_X0): e(x)
        e(f"v_mul_f32 {vr(V_X0)}, {sr(S_C)}, {vr(V_X0)}")
        e(f"v_sub_f32 {vr(V_X0)}, 0, {vr(V_X0)}")
        e(f"v_min_f32 {vr(V_X0)}, {vr(V_X0)}, {vr(V_NMC)}")
        e(f"v_sub_f32 {vr(V_X1)}, {vr(V_X0)}, {vr(V_NMC)}")
        e(f"v_exp_f32 {vr(V_X1)}, {vr(V_X1)}")
        e(f"v_mov_b32 {vr(V_NMC)}, {vr(V_X0)}")
        e(f"v_mul_f32 {vr(V_L)}, {vr(V_L)}, {vr(V_X1)}")
        for i in range(64):
            e(f"v_mul_f32 {vr(V_O+i)}, {vr(V_O+i)}, {vr(V_X1)}")
        for x in sm(b): e(x)
        e("s_nop 1")
        e(f"s_branch L_ret{b}")

    out = HEADER
    out += f"; @launch grid=(256,1,1) block=(512,1,1) lds={NSLOT*SLOT}\n"
    out += '.amdgcn_target "amdgcn-amd-amdhsa--gfx950"\n.text\n'
    out += f".globl {NAME}_kernel\n.p2align 8\n.type {NAME}_kernel,@function\n{NAME}_kernel:\n"
    out += "\n".join(g.lines) + "\n"
    out += f""".section .rodata,"a"
.p2align 6
.amdhsa_kernel {NAME}_kernel
  .amdhsa_next_free_vgpr {NVGPR}
  .amdhsa_next_free_sgpr 64
  .amdhsa_accum_offset {NVGPR}
  .amdhsa_group_segment_fixed_size 0
  .amdhsa_kernarg_size 48
  .amdhsa_user_sgpr_count 2
  .amdhsa_user_sgpr_kernarg_segment_ptr 1
  .amdhsa_system_sgpr_workgroup_id_x 1
.end_amdhsa_kernel
"""
    return out

def main():
    ap = argparse.ArgumentParser()
    ap.add_argument("-o", default="out.s")
    ap.add_argument("--nocompute", dest="compute", action="store_false")
    ap.add_argument("--nostore", dest="store", action="store_false")
    ap.add_argument("--strided", action="store_true")
    ap.add_argument("--kswz16", action="store_true")
    ap.add_argument("--ldflags", default="")
    ap.add_argument("--stflags", default="")
    ap.add_argument("--stpat", type=int, default=0)
    ap.add_argument("--delay", type=int, default=0)
    ap.add_argument("--thr", type=float, default=65536.0)
    ap.add_argument("--rdfrac", type=float, default=0.75)
    ap.add_argument("--prio", action="store_true")
    ap.add_argument("--stamps", action="store_true")
    o = ap.parse_args()
    open(o.o, "w").write(build(o))

if __name__ == "__main__":
    main()
```

```python
import sys, struct, argparse

def f32bits(x):
    return struct.unpack('<I', struct.pack('<f', x))[0]

NAME = "standalone__mha_softmax__near_ridge"

HEADER = """; Kernarg layout for this problem (48 bytes, ptrs only, base s[0:1]):
"""

V_O, V_Q, V_S, V_P, V_KF, V_VF, V_KA, V_VA, V_T, V_PK = 0, 64, 96, 128, 144, 176, 208, 216, 220, 228
V_DK, V_DV, V_DQ, V_ST0, V_ST1, V_L, V_BS, V_NMC = 236, 237, 238, 239, 240, 241, 242, 243
V_X0, V_X1, V_X2, V_WQ, V_INV, V_OW, V_OR, V_X3 = 244, 245, 246, 247, 248, 249, 250, 251
NVGPR = 252

S_QSRD, S_KSRD, S_VSRD, S_OSRD = 4, 8, 12, 16
S_QOFF, S_KOFF, S_VOFF, S_OOFF = 20, 21, 22, 23
S_HEAD, S_WLDS, S_C, S_THR = 24, 25, 26, 27
S_TMP, S_WQ, S_ONR = 28, 29, 30
S_WSRD = 32
S_STAMPOFF = 38

BLK = 8192
KBASE, VBASE, QBASE = 0, 49152, 98304
SLOTS = [0, 1, 2, 3, 4, 5, 0, 1, 2, 3, 4, 0, 1, 2, 3, 4]

def vr(b, n=1):
    return f"v{b}" if n == 1 else f"v[{b}:{b+n-1}]"
def sr(b, n=1):
    return f"s{b}" if n == 1 else f"s[{b}:{b+n-1}]"

class Gen:
    def __init__(self):
        self.lines = []
    def e(self, s):
        self.lines.append("    " + s)
    def lab(self, s):
        self.lines.append(s + ":")
    def c(self, s):
        self.lines.append("    ; " + s)

def build(o):
    g = Gen()
    e = g.e
    ldflags = (" " + o.ldflags) if o.ldflags else ""
    qflags = (" " + o.qflags) if o.qflags else ldflags
    stflags = (" " + o.stflags) if o.stflags else ""

    def dma_kv(kind, b):
        b %= 16
        srd = S_KSRD if kind == 'K' else S_VSRD
        soff = S_KOFF if kind == 'K' else S_VOFF
        v0 = V_DK if kind == 'K' else V_DV
        base = (KBASE if kind == 'K' else VBASE) + SLOTS[b] * BLK
        inc = BLK
        if o.strided and b == 15:
            inc += 255 * 131072
        return [f"s_add_u32 m0, {sr(S_WLDS)}, {base}",
                "s_nop 0",
                f"buffer_load_dwordx4 {vr(v0)}, {sr(srd,4)}, {sr(soff)} offen{ldflags} lds",
                f"s_add_u32 {sr(soff)}, {sr(soff)}, {inc}"]
    def dma_q(j):
        inc = 1024
        if j == 7:
            inc += 65536 - 8192
            if o.strided:
                inc += 255 * 65536
        r = [f"s_add_u32 m0, {sr(S_WQ)}, {j*1024}",
             f"v_xor_b32 {vr(V_X3)}, {(j>>1)<<6}, {vr(V_DQ)}",
             f"buffer_load_dwordx4 {vr(V_X3)}, {sr(S_QSRD,4)}, {sr(S_QOFF)} offen{qflags} lds",
             f"s_add_u32 {sr(S_QOFF)}, {sr(S_QOFF)}, {inc}"]
        return r
    def o_read(j):
        return [f"ds_read_b128 {vr(V_PK,4)}, {vr(V_OR)} offset:{j*1024}"]
    def o_store(j):
        inc = 1024
        if j == 7:
            inc += 65536 - 8192
            if o.strided:
                inc += 255 * 65536
        r = [f"buffer_store_dwordx4 {vr(V_PK,4)}, {vr(V_ST0 + (j & 1))}, {sr(S_OSRD,4)}, {sr(S_OOFF)} offen{stflags}",
             f"s_add_u32 {sr(S_OOFF)}, {sr(S_OOFF)}, {inc}"]
        if j == 7:
            r.append(f"s_mov_b32 {sr(S_OSRD+2)}, {sr(S_ONR)}")
        return r

    stampn = [0]
    def stamp():
        if not o.stamps:
            return
        i = stampn[0]
        if 56 + 2 * i + 1 > 101:
            return
        e(f"s_memtime s[{56+2*i}:{57+2*i}]")
        stampn[0] += 1
    def stamp_dump():
        if not o.stamps:
            return
        e(f"s_memrealtime s[54:55]")
        e("s_waitcnt lgkmcnt(0)")
        for i in range(stampn[0]):
            e(f"v_writelane_b32 {vr(V_X2)}, s{56+2*i}, {i}")
        e(f"v_writelane_b32 {vr(V_X2)}, s54, 31")
        e(f"v_writelane_b32 {vr(V_X2)}, s50, 30")
        e(f"v_writelane_b32 {vr(V_X2)}, s52, 29")
        e(f"s_getreg_b32 s55, hwreg(HW_REG_XCC_ID)")
        e(f"v_writelane_b32 {vr(V_X2)}, s55, 28")
        e(f"v_mbcnt_lo_u32_b32 {vr(V_X1)}, -1, 0")
        e(f"v_mbcnt_hi_u32_b32 {vr(V_X1)}, -1, {vr(V_X1)}")
        e(f"v_lshlrev_b32 {vr(V_X1)}, 2, {vr(V_X1)}")
        e(f"buffer_store_dword {vr(V_X2)}, {vr(V_X1)}, {sr(S_WSRD,4)}, {sr(S_STAMPOFF)} offen")

    st_iter = o.st_iter
    q_iter = o.q_iter
    ops = {b: [('K', b + 6), ('V', b + 4)] for b in range(16)}
    for j in range(8):
        if o.store:
            ops[st_iter[j]].append(('ST', j))
    for j in range(8):
        assert q_iter[j] >= st_iter[j]
        ops[q_iter[j]].append(('Q', j))
    if o.stamps:
        ops[15].append(('STAMP', 0))
    for b in range(12, 16):
        assert all(k in ('K', 'V', 'STAMP') for k, _ in ops[b])
    def vm_wait(b):
        seq = []
        for it in range(b - 16, b):
            for k, x in ops[it % 16]:
                seq.append((it, k, x))
        need = [i for i, (it, k, x) in enumerate(seq) if it == b - 4 and k in ('K', 'V')]
        if b == 14:
            need += [i for i, (it, k, x) in enumerate(seq) if k == 'Q' and it >= 0]
        return len(seq) - 1 - max(need)

    e(f"s_cmp_ge_u32 s2, 256")
    e("s_cbranch_scc1 L_end")
    e("s_load_dwordx4 s[40:43], s[0:1], 0")
    e("s_load_dwordx4 s[44:47], s[0:1], 16")
    if o.stamps:
        e("s_load_dwordx2 s[48:49], s[0:1], 40")
        e("s_memtime s[50:51]")
        e("s_memrealtime s[52:53]")
    e(f"v_lshrrev_b32 v1, 6, v0")
    e(f"v_and_b32 v2, 63, v0")
    e(f"v_readfirstlane_b32 {sr(S_TMP)}, v1")
    e(f"v_lshrrev_b32 v3, 4, v2")
    e(f"v_and_b32 v4, 15, v2")
    e(f"v_lshl_add_u32 v5, v1, 2, v3")
    e(f"v_lshlrev_b32 v5, 8, v5")
    e(f"v_lshrrev_b32 v6, 1, v1")
    e(f"v_lshl_add_u32 v6, v6, 2, v3")
    e(f"v_xor_b32 v6, v6, v4")
    e(f"v_lshl_add_u32 {vr(V_DK)}, v6, 4, v5")
    e(f"v_lshlrev_b32 v6, 2, v3")
    e(f"v_xor_b32 v6, v6, v4")
    e(f"v_lshl_add_u32 {vr(V_DV)}, v6, 4, v5")
    e(f"v_lshl_add_u32 v5, v1, 5, v3")
    e(f"v_lshlrev_b32 v5, 8, v5")
    e(f"v_xor_b32 v6, v3, v4")
    e(f"v_lshl_add_u32 {vr(V_DQ)}, v6, 4, v5")
    e(f"v_mov_b32 {vr(V_ST0)}, {vr(V_DQ)}")
    e(f"v_xor_b32 {vr(V_ST1)}, 64, {vr(V_DQ)}")
    e(f"s_lshl_b32 {sr(S_WLDS)}, {sr(S_TMP)}, 10")
    e(f"s_lshl_b32 {sr(S_WQ)}, {sr(S_TMP)}, 13")
    e(f"s_add_u32 {sr(S_WQ)}, {sr(S_WQ)}, {QBASE}")
    e("s_waitcnt lgkmcnt(0)")
    for srd, p in ((S_QSRD, 40), (S_KSRD, 42), (S_VSRD, 44), (S_OSRD, 46)):
        e(f"s_mov_b32 {sr(srd)}, s{p}")
        e(f"s_and_b32 {sr(srd+1)}, s{p+1}, 0xffff")
        e(f"s_mov_b32 {sr(srd+3)}, 0x20000")
    if o.strided:
        e(f"s_lshl_b32 {sr(S_QOFF)}, s2, 16")
        e(f"s_lshl_b32 {sr(S_KOFF)}, s2, 17")
        e(f"s_mov_b32 {sr(S_QSRD+2)}, {1<<26}")
        e(f"s_mov_b32 {sr(S_KSRD+2)}, {1<<27}")
        e(f"s_mov_b32 {sr(S_VSRD+2)}, {1<<27}")
        e(f"s_mov_b32 {sr(S_ONR)}, {1<<26}")
        e(f"s_sub_u32 {sr(S_OOFF)}, {sr(S_QOFF)}, {65536*256}")
    else:
        e(f"s_lshl_b32 {sr(S_QOFF)}, s2, 18")
        e(f"s_lshl_b32 {sr(S_KOFF)}, s2, 19")
        e(f"s_add_u32 {sr(S_QSRD+2)}, {sr(S_QOFF)}, {1<<18}")
        e(f"s_add_u32 {sr(S_KSRD+2)}, {sr(S_KOFF)}, {1<<19}")
        e(f"s_mov_b32 {sr(S_VSRD+2)}, {sr(S_KSRD+2)}")
        e(f"s_mov_b32 {sr(S_ONR)}, {sr(S_QSRD+2)}")
        e(f"s_sub_u32 {sr(S_OOFF)}, {sr(S_QOFF)}, 65536")
    e(f"s_mov_b32 {sr(S_OSRD+2)}, 0")
    if o.l2only:
        e(f"s_mov_b32 {sr(S_QOFF)}, 0")
        e(f"s_mov_b32 {sr(S_KOFF)}, 0")
        e(f"s_mov_b32 {sr(S_QSRD+2)}, {1<<18}")
        e(f"s_mov_b32 {sr(S_KSRD+2)}, {1<<19}")
        e(f"s_mov_b32 {sr(S_VSRD+2)}, {1<<19}")
    e(f"s_mov_b32 {sr(S_VOFF)}, {sr(S_KOFF)}")
    for x in dma_kv('K', 0): e(x)
    for j in range(8):
        for x in dma_q(j): e(x)
    for x in dma_kv('K', 1): e(x)
    for b in range(4):
        for x in dma_kv('K', b + 2) + dma_kv('V', b): e(x)
    if o.stamps:
        e(f"s_mov_b32 {sr(S_WSRD)}, s48")
        e(f"s_and_b32 {sr(S_WSRD+1)}, s49, 0xffff")
        e(f"s_mov_b32 {sr(S_WSRD+2)}, {1<<24}")
        e(f"s_mov_b32 {sr(S_WSRD+3)}, 0x20000")
        e(f"s_lshl_b32 {sr(S_STAMPOFF)}, s2, 3")
        e(f"s_add_u32 {sr(S_STAMPOFF)}, {sr(S_STAMPOFF)}, {sr(S_TMP)}")
        e(f"s_lshl_b32 {sr(S_STAMPOFF)}, {sr(S_STAMPOFF)}, 11")
        stamp_dump()
    e(f"v_and_b32 v7, 31, v2")
    e(f"v_lshrrev_b32 v8, 5, v2")
    e(f"v_and_b32 v9, 3, v7")
    e(f"v_lshrrev_b32 v10, 3, v7")
    e(f"v_lshl_add_u32 v9, v10, 2, v9")
    e(f"v_xor_b32 v9, v9, v8")
    e(f"v_lshlrev_b32 v9, 4, v9")
    e(f"v_lshl_add_u32 {vr(V_KA)}, v7, 8, v9")
    for s in range(1, 8):
        e(f"v_xor_b32 {vr(V_KA+s)}, {s*32}, {vr(V_KA)}")
    e(f"v_bfe_u32 v9, v2, 2, 2")
    e(f"v_lshl_add_u32 v10, v8, 2, v9")
    e(f"v_lshlrev_b32 v10, 8, v10")
    e(f"v_lshl_add_u32 v10, v9, 6, v10")
    e(f"v_bfe_u32 v11, v2, 4, 1")
    e(f"v_lshl_add_u32 v10, v11, 5, v10")
    e(f"v_and_b32 v11, 1, v2")
    e(f"v_lshl_add_u32 v10, v11, 4, v10")
    e(f"v_bfe_u32 v11, v2, 1, 1")
    e(f"v_lshl_add_u32 v10, v11, 3, v10")
    e(f"v_add_u32 {vr(V_VA)}, {VBASE}, v10")
    for t in range(1, 4):
        e(f"v_xor_b32 {vr(V_VA+t)}, {t*64}, {vr(V_VA)}")
    e(f"v_mov_b32 {vr(V_WQ)}, {sr(S_WQ)}")
    e(f"v_and_b32 v9, 7, v7")
    e(f"v_xor_b32 v9, v9, v8")
    e(f"v_lshlrev_b32 v9, 4, v9")
    e(f"v_lshl_add_u32 v9, v7, 8, v9")
    e(f"v_add_u32 {vr(V_OW)}, {vr(V_WQ)}, v9")
    e(f"v_lshl_add_u32 {vr(V_OR)}, v2, 4, {vr(V_WQ)}")
    e(f"s_mov_b32 {sr(S_C)}, {hex(f32bits(128**-0.5 * 1.4426950408889634))}")
    e(f"s_mov_b32 {sr(S_THR)}, {hex(f32bits(o.thr))}")
    e(f"s_mov_b32 {sr(S_HEAD)}, 0")
    e(f"v_mov_b32 {vr(V_L)}, 1.0")
    if o.prio:
        e(f"s_cmp_ge_u32 {sr(S_TMP)}, 4")
        e("s_cbranch_scc0 L_prio_done")
        e("s_setprio 1")
        g.lab("L_prio_done")

    def kreads(b):
        off = KBASE + SLOTS[b % 16] * BLK
        return [f"ds_read_b128 {vr(V_KF+4*s,4)}, {vr(V_KA+s)} offset:{off}" for s in range(8)]
    def qreads():
        return [[f"v_add_u32 {vr(V_Q+4*s)}, {vr(V_WQ)}, {vr(V_KA+s)}",
                 f"ds_read_b128 {vr(V_Q+4*s,4)}, {vr(V_Q+4*s)}"] for s in range(8)]
    def vreads(b):
        r = []
        for u in range(2):
            for t in range(4):
                for w in range(2):
                    off = SLOTS[b % 16] * BLK + u * 4096 + w * 2048
                    r.append(f"ds_read_b64_tr_b16 {vr(V_VF+4*(4*u+t)+2*w,2)}, {vr(V_VA+t)} offset:{off}")
        return r
    def qk(b):
        S = V_S + 16 * (b % 2)
        return [f"v_mfma_f32_32x32x16_bf16 {vr(S,16)}, {vr(V_KF+4*s,4)}, {vr(V_Q+4*s,4)}, " + ("0" if s == 0 else vr(S, 16)) for s in range(8)]
    def pv(b):
        b %= 16
        P = V_P + 8 * (b % 2)
        r = []
        for u in range(2):
            for t in range(4):
                O = V_O + 16 * t
                cc = "0" if (b == 0 and u == 0) else vr(O, 16)
                r.append(f"v_mfma_f32_32x32x16_bf16 {vr(O,16)}, {vr(V_VF+4*(4*u+t),4)}, {vr(P+4*u,4)}, {cc}")
        return r
    def sm(b):
        S = V_S + 16 * (b % 2)
        P = V_P + 8 * (b % 2)
        T = lambda k: vr(V_T + k % 8)
        r = []
        for k in range(16 + 2):
            if k < 16:
                r.append(f"v_fma_f32 {T(k)}, {vr(S+k)}, {sr(S_C)}, {vr(V_NMC)}")
            if 0 <= k - 1 < 16:
                r.append(f"v_exp_f32 {T(k-1)}, {T(k-1)}")
            j = k - 2
            if 0 <= j < 16:
                if j == 1:
                    r.append(f"v_add_f32 {vr(V_BS)}, {T(0)}, {T(1)}")
                elif j >= 2:
                    r.append(f"v_add_f32 {vr(V_BS)}, {vr(V_BS)}, {T(j)}")
                if j % 2 == 1:
                    r.append(f"v_cvt_pk_bf16_f32 {vr(P+j//2)}, {T(j-1)}, {T(j)}")
        return r
    def rowmax(b, dst):
        S = V_S + 16 * (b % 2)
        r = [f"v_max3_f32 {vr(dst)}, {vr(S)}, {vr(S+1)}, {vr(S+2)}"]
        for k in range(3, 15, 2):
            r.append(f"v_max3_f32 {vr(dst)}, {vr(dst)}, {vr(S+k)}, {vr(S+k+1)}")
        r.append(f"v_max_f32 {vr(dst)}, {vr(dst)}, {vr(S+15)}")
        r.append(f"v_mov_b32 {vr(V_X1)}, {vr(dst)}")
        r.append("s_nop 1")
        r.append(f"v_permlane32_swap_b32 {vr(dst)}, {vr(V_X1)}")
        r.append(f"v_max_f32 {vr(dst)}, {vr(dst)}, {vr(V_X1)}")
        return r
    def linv():
        return [f"v_mov_b32 {vr(V_X2)}, {vr(V_L)}", "s_nop 1",
                f"v_permlane32_swap_b32 {vr(V_L)}, {vr(V_X2)}",
                f"v_add_f32 {vr(V_L)}, {vr(V_L)}, {vr(V_X2)}",
                f"v_rcp_f32 {vr(V_INV)}, {vr(V_L)}"]
    def opack():
        r = []
        for t in range(4):
            for k in range(2):
                pk = V_PK + 4 * k
                base = V_O + 16 * t + 8 * k
                for i in range(8):
                    r.append([f"v_mul_f32 {vr(base+i)}, {vr(base+i)}, {vr(V_INV)}"])
                for i in range(4):
                    r.append([f"v_cvt_pk_bf16_f32 {vr(pk+i)}, {vr(base+2*i)}, {vr(base+2*i+1)}"])
                x = (4 * (t & 1) + 2 * k) << 4
                if x:
                    r.append([f"v_xor_b32 {vr(V_X2)}, {x}, {vr(V_OW)}",
                              f"ds_write_b128 {vr(V_X2)}, {vr(pk,4)} offset:{128*(t>>1)}"])
                else:
                    r.append([f"ds_write_b128 {vr(V_OW)}, {vr(pk,4)} offset:{128*(t>>1)}"])
        return r

    def interleave(mf, streams):
        n = max(len(mf), 1)
        gaps = [[] for _ in range(n)]
        for groups, f0, f1 in streams:
            a = int(round(n * f0)); b = max(a + 1, int(round(n * f1)))
            ng = b - a
            for i, gr in enumerate(groups):
                gi = min(n - 1, a + i * ng // max(len(groups), 1))
                gaps[gi].append(gr)
        for i in range(n):
            if mf:
                e(mf[i])
            for gr in gaps[i]:
                for ins in gr:
                    e(ins)
    single = lambda l: [[x] for x in l]

    comp = o.compute
    nafter = 8 + (1 if o.stamps else 0)
    e(f"s_waitcnt vmcnt({nafter})")
    e("s_barrier")
    if comp:
        for gr in qreads():
            for x in gr: e(x)
        for x in kreads(0): e(x)
        e("s_waitcnt lgkmcnt(0)")
        kr = kreads(1); m = qk(0)
        for s in range(8):
            e(m[s]); e(kr[s])
        e("s_nop 7")
    g.lines.append(".p2align 6")
    g.lab("L_head")
    fallbacks = []
    for b in range(16):
        g.c(f"==== iter {b} phase A")
        if b == 0: stamp()
        e("s_waitcnt lgkmcnt(0)")
        smi = sm(b)
        if o.novalu and b >= 2: smi = []
        pre = []
        if b == 0:
            pre = linv() + rowmax(0, V_X0) + [f"v_mul_f32 {vr(V_NMC)}, {sr(S_C)}, {vr(V_X0)}",
                                              f"v_sub_f32 {vr(V_NMC)}, 0, {vr(V_NMC)}",
                                              f"v_mov_b32 {vr(V_L)}, 0"]
            smA, smB = pre + smi[:20], smi[20:]
        elif b == 1:
            smA, smB = smi[:12], smi[12:]
        else:
            hl = len(smi) // 2
            smA, smB = smi[:hl], smi[hl:]
        streams = [(single(vreads(b - 1)), 0.0, o.rdfrac)]
        for j in range(8):
            if o.store and st_iter[j] == b:
                streams.append(([o_read(j)], 0.5, 0.6))
        if b == 1:
            streams.append((single(smA), 0.0, 0.25))
            streams.append((opack(), 0.25, 1.0))
        else:
            streams.append((single(smA), 0.0, 1.0))
        if comp:
            interleave(qk(b + 1), streams)
        g.c(f"==== iter {b} phase B")
        if b % o.stampmod == 0: stamp()
        e(f"s_waitcnt vmcnt({vm_wait(b)}) lgkmcnt(0)")
        e("s_barrier")
        if b % o.stampmod == 0: stamp()
        dm = []
        for k, x in ops[b]:
            if k in ('K', 'V'): dm.append(dma_kv(k, x))
            elif k == 'ST': dm.append(o_store(x))
            elif k == 'Q': dm.append(dma_q(x))
        streams = [(single(kreads(b + 2)), 0.0, o.rdfrac)]
        if b == 14:
            streams.append((qreads(), 0.0, o.rdfrac))
        streams.append((dm, o.dm0, o.dm1))
        streams.append((single(smB), 0.0, 1.0))
        if comp:
            interleave(pv(b - 1), streams)
            if b >= 1:
                e(f"v_cmp_nge_f32 vcc, {sr(S_THR)}, {vr(V_BS)}")
                e(f"s_cbranch_vccnz L_fb{b}")
                g.lab(f"L_ret{b}")
                fallbacks.append(b)
            e(f"v_add_f32 {vr(V_L)}, {vr(V_L)}, {vr(V_BS)}")
        else:
            for gr in dm:
                for x in gr: e(x)
            if o.delay:
                e(f"s_sleep {o.delay}")
    stamp()
    stamp_dump()
    if o.stamps:
        e(f"s_add_u32 {sr(S_STAMPOFF)}, {sr(S_STAMPOFF)}, 256")
    e(f"s_add_u32 {sr(S_HEAD)}, {sr(S_HEAD)}, 1")
    e(f"s_cmp_lt_u32 {sr(S_HEAD)}, 4")
    e("s_cbranch_scc1 L_head")
    g.c("==== tail")
    if comp:
        for x in vreads(15): e(x)
        for x in linv(): e(x)
        e("s_waitcnt lgkmcnt(0)")
        for x in pv(15): e(x)
        e("s_nop 15")
        e("s_waitcnt vmcnt(0)")
        for gr in opack():
            for x in gr: e(x)
    if o.store:
        for j in range(8):
            pk = V_KF + 4 * j
            e(f"ds_read_b128 {vr(pk,4)}, {vr(V_OR)} offset:{j*1024}")
        for j in range(8):
            pk = V_KF + 4 * j
            e(f"s_waitcnt lgkmcnt({7-j})")
            if j == 4:
                e(f"s_add_u32 {sr(S_OOFF)}, {sr(S_OOFF)}, 4096")
            e(f"buffer_store_dwordx4 {vr(pk,4)}, {vr(V_ST0 + (j & 1))}, {sr(S_OSRD,4)}, {sr(S_OOFF)} offen offset:{1024*(j%4)}{stflags}")
    if o.stamps:
        e("s_waitcnt vmcnt(0)")
        stampn[0] = 0
        stamp()
        stamp_dump()
    g.lab("L_end")
    e("s_endpgm")
    for b in fallbacks:
        g.lab(f"L_fb{b}")
        e("s_nop 15")
        for x in rowmax(b, V_X0): e(x)
        e(f"v_mul_f32 {vr(V_X0)}, {sr(S_C)}, {vr(V_X0)}")
        e(f"v_sub_f32 {vr(V_X0)}, 0, {vr(V_X0)}")
        e(f"v_min_f32 {vr(V_X0)}, {vr(V_X0)}, {vr(V_NMC)}")
        e(f"v_sub_f32 {vr(V_X1)}, {vr(V_X0)}, {vr(V_NMC)}")
        e(f"v_exp_f32 {vr(V_X1)}, {vr(V_X1)}")
        e(f"v_mov_b32 {vr(V_NMC)}, {vr(V_X0)}")
        e(f"v_mul_f32 {vr(V_L)}, {vr(V_L)}, {vr(V_X1)}")
        for i in range(64):
            e(f"v_mul_f32 {vr(V_O+i)}, {vr(V_O+i)}, {vr(V_X1)}")
        for x in sm(b): e(x)
        e("s_nop 1")
        e(f"s_branch L_ret{b}")

    out = HEADER
    out += f"; @launch grid=(256,1,1) block=(512,1,1) lds=163840\n"
    out += '.amdgcn_target "amdgcn-amd-amdhsa--gfx950"\n.text\n'
    out += f".globl {NAME}_kernel\n.p2align 8\n.type {NAME}_kernel,@function\n{NAME}_kernel:\n"
    out += "\n".join(g.lines) + "\n"
    out += f""".section .rodata,"a"
.p2align 6
.amdhsa_kernel {NAME}_kernel
  .amdhsa_next_free_vgpr {NVGPR}
  .amdhsa_next_free_sgpr {102 if o.stamps else 48}
  .amdhsa_accum_offset {NVGPR}
  .amdhsa_group_segment_fixed_size 0
  .amdhsa_kernarg_size 48
  .amdhsa_user_sgpr_count 2
  .amdhsa_user_sgpr_kernarg_segment_ptr 1
  .amdhsa_system_sgpr_workgroup_id_x 1
.end_amdhsa_kernel
"""
    return out

def main():
    ap = argparse.ArgumentParser()
    il = lambda s: [int(x) for x in s.split(",")]
    ap.add_argument("-o", default="out.s")
    ap.add_argument("--nocompute", dest="compute", action="store_false")
    ap.add_argument("--nostore", dest="store", action="store_false")
    ap.add_argument("--strided", action="store_true")
    ap.add_argument("--ldflags", default="nt")
    ap.add_argument("--qflags", default="")
    ap.add_argument("--stflags", default="")
    ap.add_argument("--delay", type=int, default=0)
    ap.add_argument("--thr", type=float, default=65536.0)
    ap.add_argument("--rdfrac", type=float, default=0.75)
    ap.add_argument("--dm0", type=float, default=0.0)
    ap.add_argument("--dm1", type=float, default=1.0)
    ap.add_argument("--st_iter", type=il, default=[2, 3, 4, 5, 6, 7, 8, 9])
    ap.add_argument("--q_iter", type=il, default=[3, 4, 5, 6, 7, 8, 9, 10])
    ap.add_argument("--prio", action="store_true")
    ap.add_argument("--stamps", action="store_true")
    ap.add_argument("--stampmod", type=int, default=2)
    ap.add_argument("--l2only", action="store_true")
    ap.add_argument("--novalu", action="store_true")
    o = ap.parse_args()
    open(o.o, "w").write(build(o))

if __name__ == "__main__":
    main()
```

```python
import sys, struct, argparse

def f32bits(x):
    return struct.unpack('<I', struct.pack('<f', x))[0]

NAME = "standalone__mha_softmax__near_ridge"

HEADER = """; Kernarg layout for this problem (48 bytes, ptrs only, base s[0:1]):
"""

V_O, V_Q, V_S, V_P, V_KF, V_VF, V_KA, V_VA, V_T, V_PK = 0, 64, 96, 128, 144, 176, 208, 212, 220, 228
V_DK, V_DV, V_DQ = 232, 233, 234
V_L, V_BS, V_NMC, V_INV = 236, 238, 240, 242
V_X0, V_X1, V_X2, V_X3, V_OW, V_OR, V_X4 = 244, 245, 246, 247, 248, 249, 235
NVGPR = 252

S_QSRD, S_KSRD, S_VSRD, S_OSRD = 4, 8, 12, 16
S_QOFF, S_KOFF, S_VOFF, S_OOFF = 20, 21, 22, 23
S_HEAD, S_WLDS, S_C, S_THR = 24, 25, 26, 27
S_TMP, S_WQ, S_ONR, S_YOUNG = 28, 29, 30, 31
S_WSRD = 32
S_STAMPOFF = 38

BLK = 8192
KBASE, VBASE, QBASE = 0, 49152, 98304
SLOTS = [0, 1, 2, 3, 4, 5, 0, 1, 2, 3, 4, 0, 1, 2, 3, 4]
M16 = "v_mfma_f32_16x16x32_bf16"

def vr(b, n=1):
    return f"v{b}" if n == 1 else f"v[{b}:{b+n-1}]"
def sr(b, n=1):
    return f"s{b}" if n == 1 else f"s[{b}:{b+n-1}]"

class Gen:
    def __init__(self):
        self.lines = []
    def e(self, s):
        self.lines.append("    " + s)
    def lab(self, s):
        self.lines.append(s + ":")
    def c(self, s):
        self.lines.append("    ; " + s)

def build(o):
    g = Gen()
    e = g.e
    ldflags = (" " + o.ldflags) if o.ldflags else ""
    qflags = (" " + o.qflags) if o.qflags else ldflags
    stflags = (" " + o.stflags) if o.stflags else ""

    def dma_kv(kind, b):
        b %= 16
        srd = S_KSRD if kind == 'K' else S_VSRD
        soff = S_KOFF if kind == 'K' else S_VOFF
        v0 = V_DK if kind == 'K' else V_DV
        base = (KBASE if kind == 'K' else VBASE) + SLOTS[b] * BLK
        inc = BLK
        if o.strided and b == 15:
            inc += 255 * 131072
        return [f"s_add_u32 m0, {sr(S_WLDS)}, {base}",
                "s_nop 0",
                f"buffer_load_dwordx4 {vr(v0)}, {sr(srd,4)}, {sr(soff)} offen{ldflags} lds",
                f"s_add_u32 {sr(soff)}, {sr(soff)}, {inc}"]
    def dma_q(j):
        inc = 1024
        if j == 7:
            inc += 65536 - 8192
            if o.strided:
                inc += 255 * 65536
        r = [f"s_add_u32 m0, {sr(S_WQ)}, {j*1024}",
             f"v_xor_b32 {vr(V_X3)}, {(j&3)<<6}, {vr(V_DQ)}",
             f"buffer_load_dwordx4 {vr(V_X3)}, {sr(S_QSRD,4)}, {sr(S_QOFF)} offen{qflags} lds",
             f"s_add_u32 {sr(S_QOFF)}, {sr(S_QOFF)}, {inc}"]
        return r
    def o_read(j):
        return [f"ds_read_b128 {vr(V_PK,4)}, {vr(V_OR)} offset:{j*1024}"]
    def o_store(j):
        inc = 1024
        if j == 7:
            inc += 65536 - 8192
            if o.strided:
                inc += 255 * 65536
        r = []
        va = V_DQ
        if j & 1:
            r.append(f"v_xor_b32 {vr(V_X4)}, 64, {vr(V_DQ)}")
            va = V_X4
        r += [f"buffer_store_dwordx4 {vr(V_PK,4)}, {vr(va)}, {sr(S_OSRD,4)}, {sr(S_OOFF)} offen{stflags}",
              f"s_add_u32 {sr(S_OOFF)}, {sr(S_OOFF)}, {inc}"]
        if j == 7:
            r.append(f"s_mov_b32 {sr(S_OSRD+2)}, {sr(S_ONR)}")
        return r

    stampn = [0]
    def stamp():
        if not o.stamps:
            return
        i = stampn[0]
        if 56 + 2 * i + 1 > 101:
            return
        e(f"s_memtime s[{56+2*i}:{57+2*i}]")
        stampn[0] += 1
    def stamp_dump():
        if not o.stamps:
            return
        e(f"s_memrealtime s[54:55]")
        e("s_waitcnt lgkmcnt(0)")
        for i in range(stampn[0]):
            e(f"v_writelane_b32 v252, s{56+2*i}, {i}")
        e(f"v_writelane_b32 v252, s54, 31")
        e(f"v_writelane_b32 v252, s50, 30")
        e(f"v_writelane_b32 v252, s52, 29")
        e(f"s_getreg_b32 s55, hwreg(HW_REG_XCC_ID)")
        e(f"v_writelane_b32 v252, s55, 28")
        e(f"v_mbcnt_lo_u32_b32 v253, -1, 0")
        e(f"v_mbcnt_hi_u32_b32 v253, -1, v253")
        e(f"v_lshlrev_b32 v253, 2, v253")
        e(f"buffer_store_dword v252, v253, {sr(S_WSRD,4)}, {sr(S_STAMPOFF)} offen")

    st_iter = o.st_iter
    q_iter = o.q_iter
    ops = {b: [('K', b + 6), ('V', b + 4)] for b in range(16)}
    for j in range(8):
        if o.store:
            ops[st_iter[j]].append(('ST', j))
    for j in range(8):
        assert q_iter[j] >= st_iter[j]
        ops[q_iter[j]].append(('Q', j))
    if o.stamps:
        ops[15].append(('STAMP', 0))
    for b in range(12, 16):
        assert all(k in ('K', 'V', 'STAMP') for k, _ in ops[b])
    def vm_wait(b):
        seq = []
        for it in range(b - 16, b):
            for k, x in ops[it % 16]:
                seq.append((it, k, x))
        need = [i for i, (it, k, x) in enumerate(seq) if it == b - 4 and k in ('K', 'V')]
        if b == 14:
            need += [i for i, (it, k, x) in enumerate(seq) if k == 'Q' and it >= 0]
        return len(seq) - 1 - max(need)

    e(f"s_cmp_ge_u32 s2, 256")
    e("s_cbranch_scc1 L_end")
    e("s_load_dwordx4 s[40:43], s[0:1], 0")
    e("s_load_dwordx4 s[44:47], s[0:1], 16")
    if o.stamps:
        e("s_load_dwordx2 s[48:49], s[0:1], 40")
        e("s_memtime s[50:51]")
        e("s_memrealtime s[52:53]")
    e(f"v_lshrrev_b32 v1, 6, v0")
    e(f"v_and_b32 v2, 63, v0")
    e(f"v_readfirstlane_b32 {sr(S_TMP)}, v1")
    e(f"v_lshrrev_b32 v3, 4, v2")
    e(f"v_and_b32 v4, 15, v2")
    e(f"v_lshl_add_u32 v5, v1, 2, v3")
    e(f"v_and_b32 v6, 15, v5")
    e(f"v_xor_b32 v6, v6, v4")
    e(f"v_lshlrev_b32 v6, 4, v6")
    e(f"v_lshl_add_u32 {vr(V_DK)}, v5, 8, v6")
    e(f"v_and_b32 v6, 7, v5")
    e(f"v_lshlrev_b32 v6, 1, v6")
    e(f"v_xor_b32 v6, v6, v4")
    e(f"v_lshlrev_b32 v6, 4, v6")
    e(f"v_lshl_add_u32 {vr(V_DV)}, v5, 8, v6")
    e(f"v_lshl_add_u32 v5, v1, 5, v3")
    e(f"v_lshlrev_b32 v5, 8, v5")
    e(f"v_xor_b32 v6, v3, v4")
    e(f"v_lshl_add_u32 {vr(V_DQ)}, v6, 4, v5")
    e(f"s_lshl_b32 {sr(S_WLDS)}, {sr(S_TMP)}, 10")
    e(f"s_lshl_b32 {sr(S_WQ)}, {sr(S_TMP)}, 13")
    e(f"s_add_u32 {sr(S_WQ)}, {sr(S_WQ)}, {QBASE}")
    e(f"s_lshr_b32 {sr(S_YOUNG)}, {sr(S_TMP)}, 2")
    if o.strided:
        e(f"s_lshl_b32 {sr(S_QOFF)}, s2, 16")
        e(f"s_lshl_b32 {sr(S_KOFF)}, s2, 17")
        e(f"s_mov_b32 {sr(S_QSRD+2)}, {1<<26}")
        e(f"s_mov_b32 {sr(S_KSRD+2)}, {1<<27}")
        e(f"s_mov_b32 {sr(S_VSRD+2)}, {1<<27}")
        e(f"s_mov_b32 {sr(S_ONR)}, {1<<26}")
        e(f"s_sub_u32 {sr(S_OOFF)}, {sr(S_QOFF)}, {65536*256}")
    else:
        e(f"s_lshl_b32 {sr(S_QOFF)}, s2, 18")
        e(f"s_lshl_b32 {sr(S_KOFF)}, s2, 19")
        e(f"s_add_u32 {sr(S_QSRD+2)}, {sr(S_QOFF)}, {1<<18}")
        e(f"s_add_u32 {sr(S_KSRD+2)}, {sr(S_KOFF)}, {1<<19}")
        e(f"s_mov_b32 {sr(S_VSRD+2)}, {sr(S_KSRD+2)}")
        e(f"s_mov_b32 {sr(S_ONR)}, {sr(S_QSRD+2)}")
        e(f"s_sub_u32 {sr(S_OOFF)}, {sr(S_QOFF)}, 65536")
    e(f"s_mov_b32 {sr(S_OSRD+2)}, 0")
    if o.l2only:
        e(f"s_and_b32 {sr(S_QOFF)}, s2, {o.l2only-1}")
        e(f"s_lshl_b32 {sr(S_KOFF)}, {sr(S_QOFF)}, 19")
        e(f"s_lshl_b32 {sr(S_QOFF)}, {sr(S_QOFF)}, 18")
        e(f"s_add_u32 {sr(S_QSRD+2)}, {sr(S_QOFF)}, {1<<18}")
        e(f"s_add_u32 {sr(S_KSRD+2)}, {sr(S_KOFF)}, {1<<19}")
        e(f"s_mov_b32 {sr(S_VSRD+2)}, {sr(S_KSRD+2)}")
    e(f"s_mov_b32 {sr(S_VOFF)}, {sr(S_KOFF)}")
    for srd in (S_QSRD, S_KSRD, S_VSRD, S_OSRD):
        e(f"s_mov_b32 {sr(srd+3)}, 0x20000")
    e("s_waitcnt lgkmcnt(0)")
    for srd, p in ((S_KSRD, 42), (S_QSRD, 40), (S_VSRD, 44), (S_OSRD, 46)):
        e(f"s_mov_b32 {sr(srd)}, s{p}")
        e(f"s_and_b32 {sr(srd+1)}, s{p+1}, 0xffff")
    for x in dma_kv('K', 0): e(x)
    for j in range(4):
        for x in dma_q(j): e(x)
    if o.probar: e("s_barrier")
    for j in range(4, 8):
        for x in dma_q(j): e(x)
    for x in dma_kv('K', 1): e(x)
    if o.probar: e("s_barrier")
    e(f"v_xor_b32 v9, v3, v4")
    e(f"v_lshlrev_b32 v9, 4, v9")
    e(f"v_lshl_add_u32 {vr(V_KA)}, v4, 8, v9")
    for s in range(1, 4):
        e(f"v_xor_b32 {vr(V_KA+s)}, {s*64}, {vr(V_KA)}")
    e(f"v_lshrrev_b32 v9, 2, v2")
    e(f"v_and_b32 v10, 7, v9")
    e(f"v_lshlrev_b32 v10, 1, v10")
    e(f"v_bfe_u32 v11, v2, 1, 1")
    e(f"v_xor_b32 v10, v10, v11")
    e(f"v_lshlrev_b32 v10, 4, v10")
    e(f"v_lshl_add_u32 v10, v9, 8, v10")
    e(f"v_and_b32 v11, 1, v2")
    e(f"v_lshl_add_u32 v10, v11, 3, v10")
    e(f"v_add_u32 {vr(V_VA)}, {VBASE}, v10")
    for t in range(1, 8):
        e(f"v_xor_b32 {vr(V_VA+t)}, {t*32}, {vr(V_VA)}")
    e(f"v_and_b32 v9, 7, v4")
    e(f"v_lshrrev_b32 v10, 1, v3")
    e(f"v_xor_b32 v9, v9, v10")
    e(f"v_lshlrev_b32 v9, 4, v9")
    e(f"v_lshl_add_u32 v9, v4, 8, v9")
    e(f"v_and_b32 v10, 1, v3")
    e(f"v_lshl_add_u32 v9, v10, 3, v9")
    e(f"v_add_u32 {vr(V_OW)}, {sr(S_WQ)}, v9")
    e(f"v_lshlrev_b32 v9, 4, v2")
    e(f"v_add_u32 {vr(V_OR)}, {sr(S_WQ)}, v9")
    e(f"s_mov_b32 {sr(S_C)}, {hex(f32bits(128**-0.5 * 1.4426950408889634))}")
    e(f"s_mov_b32 {sr(S_THR)}, {hex(f32bits(o.thr))}")
    e(f"s_mov_b32 {sr(S_HEAD)}, 0")
    for i in range(2):
        e(f"v_mov_b32 {vr(V_L+i)}, 1.0")
        e(f"v_mov_b32 {vr(V_BS+i)}, 0")
    for b in range(4):
        for x in dma_kv('K', b + 2) + dma_kv('V', b): e(x)
    if o.stamps:
        e(f"s_mov_b32 {sr(S_WSRD)}, s48")
        e(f"s_and_b32 {sr(S_WSRD+1)}, s49, 0xffff")
        e(f"s_mov_b32 {sr(S_WSRD+2)}, {1<<24}")
        e(f"s_mov_b32 {sr(S_WSRD+3)}, 0x20000")
        e(f"s_lshl_b32 {sr(S_STAMPOFF)}, s2, 3")
        e(f"s_add_u32 {sr(S_STAMPOFF)}, {sr(S_STAMPOFF)}, {sr(S_TMP)}")
        e(f"s_lshl_b32 {sr(S_STAMPOFF)}, {sr(S_STAMPOFF)}, 11")
        stamp_dump()
    if o.prio == 1:
        e(f"s_cmp_ge_u32 {sr(S_TMP)}, 4")
        e("s_cbranch_scc0 L_prio_done")
        e("s_setprio 1")
        g.lab("L_prio_done")

    def kreads(b):
        off = KBASE + SLOTS[b % 16] * BLK
        return [f"ds_read_b128 {vr(V_KF+4*(4*kb+s),4)}, {vr(V_KA+s)} offset:{off+4096*kb}" for kb in range(2) for s in range(4)]
    def qreads():
        r = []
        for s in range(4):
            a = V_Q + 4 * (4 + s)
            r.append([f"v_add_u32 {vr(a)}, {sr(S_WQ)}, {vr(V_KA+s)}",
                      f"ds_read_b128 {vr(V_Q+4*s,4)}, {vr(a)}"])
            r.append([f"ds_read_b128 {vr(a,4)}, {vr(a)} offset:4096"])
        return r
    def vreads(b):
        r = []
        for db in range(8):
            for w in range(2):
                off = SLOTS[b % 16] * BLK + w * 4096
                r.append(f"ds_read_b64_tr_b16 {vr(V_VF+4*db+2*w,2)}, {vr(V_VA+db)} offset:{off}")
        return r
    def qk(b):
        S = V_S + 16 * (b % 2)
        r = []
        for qb in range(2):
            for kb in range(2):
                D = S + 8 * qb + 4 * kb
                for s in range(4):
                    r.append(f"{M16} {vr(D,4)}, {vr(V_KF+4*(4*kb+s),4)}, {vr(V_Q+4*(4*qb+s),4)}, " + ("0" if s == 0 else vr(D, 4)))
        return r
    def pv(b):
        b %= 16
        P = V_P + 8 * (b % 2)
        r = []
        for db in range(8):
            for qb in range(2):
                O = V_O + 4 * (2 * db + qb)
                cc = "0" if b == 0 else vr(O, 4)
                r.append(f"{M16} {vr(O,4)}, {vr(V_VF+4*db,4)}, {vr(P+4*qb,4)}, {cc}")
        return r
    T = lambda k: vr(V_T + k % 8)
    def sm_parts(b, lupd):
        S = V_S + 16 * (b % 2)
        P = V_P + 8 * (b % 2)
        F = lambda k: f"v_fma_f32 {T(k)}, {vr(S+k)}, {sr(S_C)}, {vr(V_NMC + k // 8)}"
        E = lambda k: f"v_exp_f32 {T(k)}, {T(k)}"
        def A(k):
            q = k // 8
            if k % 8 == 0:
                if lupd == 'add': return [f"v_add_f32 {vr(V_L+q)}, {vr(V_L+q)}, {vr(V_BS+q)}"]
                if lupd == 'mov': return [f"v_mov_b32 {vr(V_L+q)}, {vr(V_BS+q)}"]
                return []
            if k % 8 == 1:
                return [f"v_add_f32 {vr(V_BS+q)}, {T(k-1)}, {T(k)}"]
            return [f"v_add_f32 {vr(V_BS+q)}, {vr(V_BS+q)}, {T(k)}"]
        C = lambda k: f"v_cvt_pk_bf16_f32 {vr(P+k//2)}, {T(k-1)}, {T(k)}"
        gaps = [[] for _ in range(32)]
        for k in range(16):
            gaps[2 * k].append(E(k))
            if k + 1 < 16: gaps[2 * k + 1].append(F(k + 1))
            gaps[2 * k + 1] += A(k)
            if k % 2 == 1: gaps[2 * k + 1].append(C(k))
        return [F(0)], gaps
    def sm_linear(b):
        pre, gaps = sm_parts(b, None)
        r = list(pre)
        for i, gp in enumerate(gaps):
            if i == 31: r.append("s_nop 0")
            r += gp
        return r
    def xreduce(dst, op, tmp):
        return [f"v_mov_b32 {vr(tmp)}, {vr(dst)}", "s_nop 1",
                f"v_permlane32_swap_b32 {vr(dst)}, {vr(tmp)}",
                f"{op} {vr(dst)}, {vr(dst)}, {vr(tmp)}",
                f"v_mov_b32 {vr(tmp)}, {vr(dst)}", "s_nop 1",
                f"v_permlane16_swap_b32 {vr(dst)}, {vr(tmp)}",
                f"{op} {vr(dst)}, {vr(dst)}, {vr(tmp)}"]
    def rowmax(b, q, dst, tmp):
        S = V_S + 16 * (b % 2) + 8 * q
        r = [f"v_max3_f32 {vr(dst)}, {vr(S)}, {vr(S+1)}, {vr(S+2)}",
             f"v_max3_f32 {vr(dst)}, {vr(dst)}, {vr(S+3)}, {vr(S+4)}",
             f"v_max3_f32 {vr(dst)}, {vr(dst)}, {vr(S+5)}, {vr(S+6)}",
             f"v_max_f32 {vr(dst)}, {vr(dst)}, {vr(S+7)}"]
        return r + xreduce(dst, "v_max_f32", tmp)
    def zipl(a, b):
        r = []
        for x, y in zip(a, b):
            if x.startswith("s_nop"):
                r.append("s_nop 0")
            else:
                r += [x, y]
        return r
    def minit():
        a = rowmax(0, 0, V_X0, V_X1) + [f"v_mul_f32 {vr(V_NMC)}, {sr(S_C)}, {vr(V_X0)}", f"v_sub_f32 {vr(V_NMC)}, 0, {vr(V_NMC)}"]
        b = rowmax(0, 1, V_X2, V_X3) + [f"v_mul_f32 {vr(V_NMC+1)}, {sr(S_C)}, {vr(V_X2)}", f"v_sub_f32 {vr(V_NMC+1)}, 0, {vr(V_NMC+1)}"]
        return zipl(a, b)
    def linv():
        a = [f"v_add_f32 {vr(V_L)}, {vr(V_L)}, {vr(V_BS)}"] + xreduce(V_L, "v_add_f32", V_X0) + [f"v_rcp_f32 {vr(V_INV)}, {vr(V_L)}"]
        b = [f"v_add_f32 {vr(V_L+1)}, {vr(V_L+1)}, {vr(V_BS+1)}"] + xreduce(V_L + 1, "v_add_f32", V_X2) + [f"v_rcp_f32 {vr(V_INV+1)}, {vr(V_L+1)}"]
        return zipl(a, b)
    def opack():
        r = []
        n = 0
        for db in range(8):
            x = (db & 3) << 5
            va = V_OW
            if x:
                va = V_X2
                r.append(f"v_xor_b32 {vr(V_X2)}, {x}, {vr(V_OW)}")
            for qb in range(2):
                pk = V_PK + 2 * (n % 2); n += 1
                base = V_O + 4 * (2 * db + qb)
                for i in range(4):
                    r.append(f"v_mul_f32 {vr(base+i)}, {vr(base+i)}, {vr(V_INV+qb)}")
                for i in range(2):
                    r.append(f"v_cvt_pk_bf16_f32 {vr(pk+i)}, {vr(base+2*i)}, {vr(base+2*i+1)}")
                r.append(f"ds_write_b64 {vr(va)}, {vr(pk,2)} offset:{128*(db>>2)+4096*qb}")
        return r

    def spread(gaps, groups, a, b, front=False, step=1):
        idx = list(range(a, b, step))
        for i, gr in enumerate(groups):
            gi = idx[i * len(idx) // max(len(groups), 1)]
            if front: gaps[gi] = list(gr) + gaps[gi]
            else: gaps[gi] += list(gr)
    single = lambda l: [[x] for x in l]

    comp = o.compute
    nafter = 8 + (1 if o.stamps else 0)
    e(f"s_waitcnt vmcnt({nafter})")
    e("s_barrier")
    if comp:
        for gr in qreads():
            for x in gr: e(x)
        for x in kreads(0): e(x)
        e("s_waitcnt lgkmcnt(0)")
        for x in qk(0): e(x)
        for x in kreads(1): e(x)
        e("s_nop 3")
    g.lines.append(".p2align 6")
    g.lab("L_head")
    fallbacks = []
    def prio_young(p):
        lab = f"L_pr{len(g.lines)}"
        return [f"s_cmp_eq_u32 {sr(S_YOUNG)}, 0", f"s_cbranch_scc1 {lab}", f"s_setprio {p}", f"{lab}:"]
    def emit(x):
        if x.endswith(":"): g.lab(x[:-1])
        else: e(x)
    for b in range(16):
        g.c(f"==== iter {b} phase A")
        if b == 0: stamp()
        pre, gaps = sm_parts(b, None if b == 0 else ('mov' if b == 1 else 'add'))
        if o.novalu and b >= 2:
            pre, gaps = [], [[] for _ in range(32)]
        if b == 0:
            lin = pre + [x for gp in gaps for x in gp]
            pre = []
            gaps = [[] for _ in range(32)]
            ini = linv() + minit()
            spread(gaps, single(ini), 0, 10)
            lin.insert(len(lin) - 2, "s_nop 0")
            spread(gaps, single(lin), 10, 32)
        nr = o.rdgaps
        vrd = vreads(b - 1); krd = kreads(b + 2)
        if o.halfrd:
            vrd = vrd[:8] if b % 2 else vrd[8:]
            krd = krd[:4] if b % 2 else krd[4:]
        spread(gaps, single(vrd), 0, nr)
        for j in range(8):
            if o.store and st_iter[j] == b:
                spread(gaps, [o_read(j)], nr, nr + 1)
        if b == 1:
            spread(gaps, single(opack()), 2, 16)
        spread(gaps, single(krd), 16, 16 + nr, step=(2 if o.kstep2 and nr >= 16 else 1))
        if b == 14:
            spread(gaps, qreads(), 16, 16 + nr)
        dm = []
        for k, x in ops[b]:
            if k in ('K', 'V'): dm.append(dma_kv(k, x))
            elif k == 'ST': dm.append(o_store(x))
            elif k == 'Q': dm.append(dma_q(x))
        spread(gaps, dm, 16 + o.dm0, 16 + o.dm1)
        if o.prio == 2:
            gaps[o.pr_lo] = gaps[o.pr_lo] + prio_young(0)
        e("s_waitcnt lgkmcnt(0)")
        if comp:
            for x in pre: e(x)
            mf = qk(b + 1)
            for i in range(16):
                e(mf[i])
                for x in gaps[i]: emit(x)
        g.c(f"==== iter {b} phase B")
        if b % o.stampmod == 0: stamp()
        if o.prio == 2:
            for x in prio_young(1): emit(x)
        e(f"s_waitcnt vmcnt({vm_wait(b)}) lgkmcnt(0)")
        e("s_barrier")
        if b % o.stampmod == 0: stamp()
        if comp:
            mf = pv(b - 1)
            for i in range(16):
                e(mf[i])
                for x in gaps[16 + i]: emit(x)
            if b >= 1:
                e(f"v_add_f32 {vr(V_X0)}, {vr(V_BS)}, {vr(V_BS+1)}")
                e(f"v_cmp_nge_f32 vcc, {sr(S_THR)}, {vr(V_X0)}")
                e(f"s_cbranch_vccnz L_fb{b}")
                g.lab(f"L_ret{b}")
                fallbacks.append(b)
        else:
            for gr in dm:
                for x in gr: e(x)
    stamp()
    stamp_dump()
    if o.stamps:
        e(f"s_add_u32 {sr(S_STAMPOFF)}, {sr(S_STAMPOFF)}, 256")
    e(f"s_add_u32 {sr(S_HEAD)}, {sr(S_HEAD)}, 1")
    e(f"s_cmp_lt_u32 {sr(S_HEAD)}, 4")
    e("s_cbranch_scc1 L_head")
    g.c("==== tail")
    if comp:
        for x in vreads(15): e(x)
        for x in linv(): e(x)
        e("s_waitcnt lgkmcnt(0)")
        for x in pv(15): e(x)
        for x in opack(): e(x)
    if o.store:
        e(f"v_xor_b32 {vr(V_X4)}, 64, {vr(V_DQ)}")
        for j in range(8):
            pk = V_KF + 4 * j
            e(f"ds_read_b128 {vr(pk,4)}, {vr(V_OR)} offset:{j*1024}")
        for j in range(8):
            pk = V_KF + 4 * j
            e(f"s_waitcnt lgkmcnt({7-j})")
            if j == 4:
                e(f"s_add_u32 {sr(S_OOFF)}, {sr(S_OOFF)}, 4096")
            e(f"buffer_store_dwordx4 {vr(pk,4)}, {vr(V_X4 if j & 1 else V_DQ)}, {sr(S_OSRD,4)}, {sr(S_OOFF)} offen offset:{1024*(j%4)}{stflags}")
    if o.stamps:
        e("s_waitcnt vmcnt(0)")
        stampn[0] = 0
        stamp()
        stamp_dump()
    g.lab("L_end")
    e("s_endpgm")
    for b in fallbacks:
        g.lab(f"L_fb{b}")
        e("s_nop 15")
        for q in range(2):
            for x in rowmax(b, q, V_X0, V_X1): e(x)
            e(f"v_mul_f32 {vr(V_X0)}, {sr(S_C)}, {vr(V_X0)}")
            e(f"v_sub_f32 {vr(V_X0)}, 0, {vr(V_X0)}")
            e(f"v_min_f32 {vr(V_X0)}, {vr(V_X0)}, {vr(V_NMC+q)}")
            e(f"v_sub_f32 {vr(V_X1)}, {vr(V_X0)}, {vr(V_NMC+q)}")
            e(f"v_exp_f32 {vr(V_X1)}, {vr(V_X1)}")
            e(f"v_mov_b32 {vr(V_NMC+q)}, {vr(V_X0)}")
            e(f"v_mul_f32 {vr(V_L+q)}, {vr(V_L+q)}, {vr(V_X1)}")
            for db in range(8):
                for i in range(4):
                    r = V_O + 4 * (2 * db + q) + i
                    e(f"v_mul_f32 {vr(r)}, {vr(r)}, {vr(V_X1)}")
        for x in sm_linear(b): e(x)
        e("s_nop 1")
        e(f"s_branch L_ret{b}")

    nv = 256 if o.stamps else NVGPR
    out = HEADER
    out += f"; @launch grid=(256,1,1) block=(512,1,1) lds=163840\n"
    out += '.amdgcn_target "amdgcn-amd-amdhsa--gfx950"\n.text\n'
    out += f".globl {NAME}_kernel\n.p2align 8\n.type {NAME}_kernel,@function\n{NAME}_kernel:\n"
    out += "\n".join(g.lines) + "\n"
    out += f""".section .rodata,"a"
.p2align 6
.amdhsa_kernel {NAME}_kernel
  .amdhsa_next_free_vgpr {nv}
  .amdhsa_next_free_sgpr {102 if o.stamps else 48}
  .amdhsa_accum_offset {nv}
  .amdhsa_group_segment_fixed_size 0
  .amdhsa_kernarg_size 48
  .amdhsa_user_sgpr_count 2
  .amdhsa_user_sgpr_kernarg_segment_ptr 1
  .amdhsa_system_sgpr_workgroup_id_x 1
.end_amdhsa_kernel
"""
    return out

def main():
    ap = argparse.ArgumentParser()
    il = lambda s: [int(x) for x in s.split(",")]
    ap.add_argument("-o", default="out.s")
    ap.add_argument("--nocompute", dest="compute", action="store_false")
    ap.add_argument("--nostore", dest="store", action="store_false")
    ap.add_argument("--strided", action="store_true")
    ap.add_argument("--ldflags", default="nt")
    ap.add_argument("--qflags", default="")
    ap.add_argument("--stflags", default="")
    ap.add_argument("--thr", type=float, default=65536.0)
    ap.add_argument("--rdgaps", type=int, default=12)
    ap.add_argument("--kstep2", action="store_true")
    ap.add_argument("--dm0", type=int, default=0)
    ap.add_argument("--dm1", type=int, default=14)
    ap.add_argument("--st_iter", type=il, default=[2, 3, 4, 5, 6, 7, 8, 9])
    ap.add_argument("--q_iter", type=il, default=[3, 4, 5, 6, 7, 8, 9, 10])
    ap.add_argument("--prio", type=int, default=0)
    ap.add_argument("--pr_lo", type=int, default=4)
    ap.add_argument("--noprobar", dest="probar", action="store_false")
    ap.add_argument("--stamps", action="store_true")
    ap.add_argument("--stampmod", type=int, default=2)
    ap.add_argument("--l2only", type=int, default=0)
    ap.add_argument("--novalu", action="store_true")
    ap.add_argument("--halfrd", action="store_true")
    o = ap.parse_args()
    open(o.o, "w").write(build(o))

if __name__ == "__main__":
    main()
```

```python
import sys, struct, argparse

def f32bits(x):
    return struct.unpack('<I', struct.pack('<f', x))[0]

NAME = "standalone__mha_softmax__near_ridge"

HEADER = """; Kernarg layout for this problem (48 bytes, ptrs only, base s[0:1]):
"""

V_O, V_Q, V_S, V_P, V_KF, V_VF, V_KA, V_VA, V_T, V_PK = 0, 64, 96, 128, 144, 176, 208, 212, 220, 228
V_DK, V_DV, V_DQ = 232, 233, 234
V_L, V_BS, V_NMC, V_INV = 236, 238, 240, 242
V_X0, V_X1, V_X2, V_X3, V_OW, V_OR, V_X4 = 244, 245, 246, 247, 248, 249, 235
NVGPR = 252

S_QSRD, S_KSRD, S_VSRD, S_OSRD = 4, 8, 12, 16
S_QOFF, S_KOFF, S_VOFF, S_OOFF = 20, 21, 22, 23
S_HEAD, S_WLDS, S_C, S_THR = 24, 25, 26, 27
S_TMP, S_WQ, S_ONR, S_YOUNG = 28, 29, 30, 31
S_WSRD = 32
S_STAMPOFF = 38

BLK = 8192
KBASE, VBASE, QBASE = 0, 49152, 98304
SLOTS = [0, 1, 2, 3, 4, 5, 0, 1, 2, 3, 4, 0, 1, 2, 3, 4]
M16 = "v_mfma_f32_16x16x32_bf16"

def vr(b, n=1):
    return f"v{b}" if n == 1 else f"v[{b}:{b+n-1}]"
def sr(b, n=1):
    return f"s{b}" if n == 1 else f"s[{b}:{b+n-1}]"

class Gen:
    def __init__(self):
        self.lines = []
    def e(self, s):
        self.lines.append("    " + s)
    def lab(self, s):
        self.lines.append(s + ":")
    def c(self, s):
        self.lines.append("    ; " + s)

def build(o):
    g = Gen()
    e = g.e
    ldflags = (" " + o.ldflags) if o.ldflags else ""
    qflags = (" " + o.qflags) if o.qflags else ldflags
    stflags = (" " + o.stflags) if o.stflags else ""

    def dma_kv(kind, b):
        b %= 16
        srd = S_KSRD if kind == 'K' else S_VSRD
        soff = S_KOFF if kind == 'K' else S_VOFF
        v0 = V_DK if kind == 'K' else V_DV
        base = (KBASE if kind == 'K' else VBASE) + SLOTS[b] * BLK
        inc = BLK
        if o.strided and b == 15:
            inc += 255 * 131072
        return [f"s_add_u32 m0, {sr(S_WLDS)}, {base}",
                "s_nop 0",
                f"buffer_load_dwordx4 {vr(v0)}, {sr(srd,4)}, {sr(soff)} offen{ldflags} lds",
                f"s_add_u32 {sr(soff)}, {sr(soff)}, {inc}"]
    def dma_q(j):
        inc = 1024
        if j == 7:
            inc += 65536 - 8192
            if o.strided:
                inc += 255 * 65536
        r = [f"s_add_u32 m0, {sr(S_WQ)}, {j*1024}",
             f"v_xor_b32 {vr(V_X3)}, {(j&3)<<6}, {vr(V_DQ)}",
             f"buffer_load_dwordx4 {vr(V_X3)}, {sr(S_QSRD,4)}, {sr(S_QOFF)} offen{qflags} lds",
             f"s_add_u32 {sr(S_QOFF)}, {sr(S_QOFF)}, {inc}"]
        return r
    def o_read(j):
        return [f"ds_read_b128 {vr(V_PK,4)}, {vr(V_OR)} offset:{j*1024}"]
    def o_store(j):
        inc = 1024
        if j == 7:
            inc += 65536 - 8192
            if o.strided:
                inc += 255 * 65536
        r = []
        va = V_DQ
        if j & 1:
            r.append(f"v_xor_b32 {vr(V_X4)}, 64, {vr(V_DQ)}")
            va = V_X4
        r += [f"buffer_store_dwordx4 {vr(V_PK,4)}, {vr(va)}, {sr(S_OSRD,4)}, {sr(S_OOFF)} offen{stflags}",
              f"s_add_u32 {sr(S_OOFF)}, {sr(S_OOFF)}, {inc}"]
        if j == 7:
            r.append(f"s_mov_b32 {sr(S_OSRD+2)}, {sr(S_ONR)}")
        return r

    stampn = [0]
    def stamp():
        if not o.stamps:
            return
        i = stampn[0]
        if 56 + 2 * i + 1 > 101:
            return
        e(f"s_memtime s[{56+2*i}:{57+2*i}]")
        stampn[0] += 1
    def stamp_dump():
        if not o.stamps:
            return
        e(f"s_memrealtime s[54:55]")
        e("s_waitcnt lgkmcnt(0)")
        for i in range(stampn[0]):
            e(f"v_writelane_b32 v252, s{56+2*i}, {i}")
        e(f"v_writelane_b32 v252, s54, 31")
        e(f"v_writelane_b32 v252, s50, 30")
        e(f"v_writelane_b32 v252, s52, 29")
        e(f"s_getreg_b32 s55, hwreg(HW_REG_XCC_ID)")
        e(f"v_writelane_b32 v252, s55, 28")
        e(f"v_mbcnt_lo_u32_b32 v253, -1, 0")
        e(f"v_mbcnt_hi_u32_b32 v253, -1, v253")
        e(f"v_lshlrev_b32 v253, 2, v253")
        e(f"buffer_store_dword v252, v253, {sr(S_WSRD,4)}, {sr(S_STAMPOFF)} offen")

    st_iter = o.st_iter
    q_iter = o.q_iter
    ops = {b: [('K', b + 6), ('V', b + 4)] for b in range(16)}
    for j in range(8):
        if o.store:
            ops[st_iter[j]].append(('ST', j))
    for j in range(8):
        assert q_iter[j] >= st_iter[j]
        ops[q_iter[j]].append(('Q', j))
    if o.stamps:
        ops[15].append(('STAMP', 0))
    for b in range(12, 16):
        assert all(k in ('K', 'V', 'STAMP') for k, _ in ops[b])
    def vm_wait(b):
        seq = []
        for it in range(b - 16, b):
            for k, x in ops[it % 16]:
                seq.append((it, k, x))
        need = [i for i, (it, k, x) in enumerate(seq) if it == b - 4 and k in ('K', 'V')]
        if b == 14:
            need += [i for i, (it, k, x) in enumerate(seq) if k == 'Q' and it >= 0]
        return len(seq) - 1 - max(need)

    e(f"s_cmp_ge_u32 s2, 256")
    e("s_cbranch_scc1 L_end")
    e("s_load_dwordx4 s[40:43], s[0:1], 0")
    e("s_load_dwordx4 s[44:47], s[0:1], 16")
    if o.dbg:
        e("s_load_dwordx2 s[48:49], s[0:1], 32")
        e("s_memtime s[50:51]")
        e("s_memrealtime s[52:53]")
    if o.stamps:
        e("s_load_dwordx2 s[48:49], s[0:1], 40")
        e("s_memtime s[50:51]")
        e("s_memrealtime s[52:53]")
    e(f"v_lshrrev_b32 v1, 6, v0")
    e(f"v_and_b32 v2, 63, v0")
    e(f"v_readfirstlane_b32 {sr(S_TMP)}, v1")
    e(f"v_lshrrev_b32 v3, 4, v2")
    e(f"v_and_b32 v4, 15, v2")
    e(f"v_lshl_add_u32 v5, v1, 2, v3")
    e(f"v_and_b32 v6, 15, v5")
    e(f"v_xor_b32 v6, v6, v4")
    e(f"v_lshlrev_b32 v6, 4, v6")
    e(f"v_lshl_add_u32 {vr(V_DK)}, v5, 8, v6")
    e(f"v_and_b32 v6, 7, v5")
    e(f"v_lshlrev_b32 v6, 1, v6")
    e(f"v_xor_b32 v6, v6, v4")
    e(f"v_lshlrev_b32 v6, 4, v6")
    e(f"v_lshl_add_u32 {vr(V_DV)}, v5, 8, v6")
    e(f"v_lshl_add_u32 v5, v1, 5, v3")
    e(f"v_lshlrev_b32 v5, 8, v5")
    e(f"v_xor_b32 v6, v3, v4")
    e(f"v_lshl_add_u32 {vr(V_DQ)}, v6, 4, v5")
    e(f"s_lshl_b32 {sr(S_WLDS)}, {sr(S_TMP)}, 10")
    e(f"s_lshl_b32 {sr(S_WQ)}, {sr(S_TMP)}, 13")
    e(f"s_add_u32 {sr(S_WQ)}, {sr(S_WQ)}, {QBASE}")
    e(f"s_lshr_b32 {sr(S_YOUNG)}, {sr(S_TMP)}, 2")
    if o.strided:
        e(f"s_lshl_b32 {sr(S_QOFF)}, s2, 16")
        e(f"s_lshl_b32 {sr(S_KOFF)}, s2, 17")
        e(f"s_mov_b32 {sr(S_QSRD+2)}, {1<<26}")
        e(f"s_mov_b32 {sr(S_KSRD+2)}, {1<<27}")
        e(f"s_mov_b32 {sr(S_VSRD+2)}, {1<<27}")
        e(f"s_mov_b32 {sr(S_ONR)}, {1<<26}")
        e(f"s_sub_u32 {sr(S_OOFF)}, {sr(S_QOFF)}, {65536*256}")
    else:
        e(f"s_lshl_b32 {sr(S_QOFF)}, s2, 18")
        e(f"s_lshl_b32 {sr(S_KOFF)}, s2, 19")
        e(f"s_add_u32 {sr(S_QSRD+2)}, {sr(S_QOFF)}, {1<<18}")
        e(f"s_add_u32 {sr(S_KSRD+2)}, {sr(S_KOFF)}, {1<<19}")
        e(f"s_mov_b32 {sr(S_VSRD+2)}, {sr(S_KSRD+2)}")
        e(f"s_mov_b32 {sr(S_ONR)}, {sr(S_QSRD+2)}")
        e(f"s_sub_u32 {sr(S_OOFF)}, {sr(S_QOFF)}, 65536")
    e(f"s_mov_b32 {sr(S_OSRD+2)}, 0")
    if o.l2only:
        e(f"s_and_b32 {sr(S_QOFF)}, s2, {o.l2only-1}")
        e(f"s_lshl_b32 {sr(S_KOFF)}, {sr(S_QOFF)}, 19")
        e(f"s_lshl_b32 {sr(S_QOFF)}, {sr(S_QOFF)}, 18")
        e(f"s_add_u32 {sr(S_QSRD+2)}, {sr(S_QOFF)}, {1<<18}")
        e(f"s_add_u32 {sr(S_KSRD+2)}, {sr(S_KOFF)}, {1<<19}")
        e(f"s_mov_b32 {sr(S_VSRD+2)}, {sr(S_KSRD+2)}")
    e(f"s_mov_b32 {sr(S_VOFF)}, {sr(S_KOFF)}")
    for srd in (S_QSRD, S_KSRD, S_VSRD, S_OSRD):
        e(f"s_mov_b32 {sr(srd+3)}, 0x20000")
    e("s_waitcnt lgkmcnt(0)")
    for srd, p in ((S_KSRD, 42), (S_QSRD, 40), (S_VSRD, 44), (S_OSRD, 46)):
        e(f"s_mov_b32 {sr(srd)}, s{p}")
        e(f"s_and_b32 {sr(srd+1)}, s{p+1}, 0xffff")
    for x in dma_kv('K', 0): e(x)
    for j in range(4):
        for x in dma_q(j): e(x)
    if o.probar: e("s_barrier")
    for j in range(4, 8):
        for x in dma_q(j): e(x)
    for x in dma_kv('K', 1): e(x)
    if o.probar: e("s_barrier")
    e(f"v_xor_b32 v9, v3, v4")
    e(f"v_lshlrev_b32 v9, 4, v9")
    e(f"v_lshl_add_u32 {vr(V_KA)}, v4, 8, v9")
    for s in range(1, 4):
        e(f"v_xor_b32 {vr(V_KA+s)}, {s*64}, {vr(V_KA)}")
    e(f"v_lshrrev_b32 v9, 2, v2")
    e(f"v_and_b32 v10, 7, v9")
    e(f"v_lshlrev_b32 v10, 1, v10")
    e(f"v_bfe_u32 v11, v2, 1, 1")
    e(f"v_xor_b32 v10, v10, v11")
    e(f"v_lshlrev_b32 v10, 4, v10")
    e(f"v_lshl_add_u32 v10, v9, 8, v10")
    e(f"v_and_b32 v11, 1, v2")
    e(f"v_lshl_add_u32 v10, v11, 3, v10")
    e(f"v_add_u32 {vr(V_VA)}, {VBASE}, v10")
    for t in range(1, 8):
        e(f"v_xor_b32 {vr(V_VA+t)}, {t*32}, {vr(V_VA)}")
    e(f"v_and_b32 v9, 7, v4")
    e(f"v_lshrrev_b32 v10, 1, v3")
    e(f"v_xor_b32 v9, v9, v10")
    e(f"v_lshlrev_b32 v9, 4, v9")
    e(f"v_lshl_add_u32 v9, v4, 8, v9")
    e(f"v_and_b32 v10, 1, v3")
    e(f"v_lshl_add_u32 v9, v10, 3, v9")
    e(f"v_add_u32 {vr(V_OW)}, {sr(S_WQ)}, v9")
    e(f"v_lshlrev_b32 v9, 4, v2")
    e(f"v_add_u32 {vr(V_OR)}, {sr(S_WQ)}, v9")
    e(f"s_mov_b32 {sr(S_C)}, {hex(f32bits(128**-0.5 * 1.4426950408889634))}")
    e(f"s_mov_b32 {sr(S_THR)}, {hex(f32bits(o.thr))}")
    e(f"s_mov_b32 {sr(S_HEAD)}, 0")
    for i in range(2):
        e(f"v_mov_b32 {vr(V_L+i)}, 1.0")
        e(f"v_mov_b32 {vr(V_BS+i)}, 0")
    for b in range(4):
        for x in dma_kv('K', b + 2) + dma_kv('V', b): e(x)
    if o.stamps:
        e(f"s_mov_b32 {sr(S_WSRD)}, s48")
        e(f"s_and_b32 {sr(S_WSRD+1)}, s49, 0xffff")
        e(f"s_mov_b32 {sr(S_WSRD+2)}, {1<<24}")
        e(f"s_mov_b32 {sr(S_WSRD+3)}, 0x20000")
        e(f"s_lshl_b32 {sr(S_STAMPOFF)}, s2, 3")
        e(f"s_add_u32 {sr(S_STAMPOFF)}, {sr(S_STAMPOFF)}, {sr(S_TMP)}")
        e(f"s_lshl_b32 {sr(S_STAMPOFF)}, {sr(S_STAMPOFF)}, 11")
        stamp_dump()
    if o.prio == 1:
        e(f"s_cmp_ge_u32 {sr(S_TMP)}, 4")
        e("s_cbranch_scc0 L_prio_done")
        e("s_setprio 1")
        g.lab("L_prio_done")

    def kreads(b):
        off = KBASE + SLOTS[b % 16] * BLK
        return [f"ds_read_b128 {vr(V_KF+4*(4*kb+s),4)}, {vr(V_KA+s)} offset:{off+4096*kb}" for kb in range(2) for s in range(4)]
    def qreads():
        r = []
        for s in range(4):
            a = V_Q + 4 * (4 + s)
            r.append([f"v_add_u32 {vr(a)}, {sr(S_WQ)}, {vr(V_KA+s)}",
                      f"ds_read_b128 {vr(V_Q+4*s,4)}, {vr(a)}"])
            r.append([f"ds_read_b128 {vr(a,4)}, {vr(a)} offset:4096"])
        return r
    def vreads(b):
        r = []
        for db in range(8):
            for w in range(2):
                off = SLOTS[b % 16] * BLK + w * 4096
                r.append(f"ds_read_b64_tr_b16 {vr(V_VF+4*db+2*w,2)}, {vr(V_VA+db)} offset:{off}")
        return r
    def qk(b):
        S = V_S + 16 * (b % 2)
        r = []
        for qb in range(2):
            for kb in range(2):
                D = S + 8 * qb + 4 * kb
                for s in range(4):
                    r.append(f"{M16} {vr(D,4)}, {vr(V_KF+4*(4*kb+s),4)}, {vr(V_Q+4*(4*qb+s),4)}, " + ("0" if s == 0 else vr(D, 4)))
        return r
    def pv(b):
        b %= 16
        P = V_P + 8 * (b % 2)
        r = []
        for db in range(8):
            for qb in range(2):
                O = V_O + 4 * (2 * db + qb)
                cc = "0" if b == 0 else vr(O, 4)
                r.append(f"{M16} {vr(O,4)}, {vr(V_VF+4*db,4)}, {vr(P+4*qb,4)}, {cc}")
        return r
    T = lambda k: vr(V_T + k % 8)
    def sm_parts(b, lupd):
        S = V_S + 16 * (b % 2)
        P = V_P + 8 * (b % 2)
        F = lambda k: f"v_fma_f32 {T(k)}, {vr(S+k)}, {sr(S_C)}, {vr(V_NMC + k // 8)}"
        E = lambda k: f"v_exp_f32 {T(k)}, {T(k)}"
        def A(k):
            q = k // 8
            if k % 8 == 0:
                if lupd == 'add': return [f"v_add_f32 {vr(V_L+q)}, {vr(V_L+q)}, {vr(V_BS+q)}"]
                if lupd == 'mov': return [f"v_mov_b32 {vr(V_L+q)}, {vr(V_BS+q)}"]
                return []
            if k % 8 == 1:
                return [f"v_add_f32 {vr(V_BS+q)}, {T(k-1)}, {T(k)}"]
            return [f"v_add_f32 {vr(V_BS+q)}, {vr(V_BS+q)}, {T(k)}"]
        C = lambda k: f"v_cvt_pk_bf16_f32 {vr(P+k//2)}, {T(k-1)}, {T(k)}"
        gaps = [[] for _ in range(32)]
        for k in range(16):
            gaps[2 * k].append(E(k))
            if k + 1 < 16: gaps[2 * k + 1].append(F(k + 1))
            gaps[2 * k + 1] += A(k)
            if k % 2 == 1: gaps[2 * k + 1].append(C(k))
        return [F(0)], gaps
    def sm_linear(b):
        pre, gaps = sm_parts(b, None)
        r = list(pre)
        for i, gp in enumerate(gaps):
            if i == 31: r.append("s_nop 0")
            r += gp
        return r
    def xreduce(dst, op, tmp):
        return [f"v_mov_b32 {vr(tmp)}, {vr(dst)}", "s_nop 1",
                f"v_permlane32_swap_b32 {vr(dst)}, {vr(tmp)}",
                f"{op} {vr(dst)}, {vr(dst)}, {vr(tmp)}",
                f"v_mov_b32 {vr(tmp)}, {vr(dst)}", "s_nop 1",
                f"v_permlane16_swap_b32 {vr(dst)}, {vr(tmp)}",
                f"{op} {vr(dst)}, {vr(dst)}, {vr(tmp)}"]
    def rowmax(b, q, dst, tmp):
        S = V_S + 16 * (b % 2) + 8 * q
        r = [f"v_max3_f32 {vr(dst)}, {vr(S)}, {vr(S+1)}, {vr(S+2)}",
             f"v_max3_f32 {vr(dst)}, {vr(dst)}, {vr(S+3)}, {vr(S+4)}",
             f"v_max3_f32 {vr(dst)}, {vr(dst)}, {vr(S+5)}, {vr(S+6)}",
             f"v_max_f32 {vr(dst)}, {vr(dst)}, {vr(S+7)}"]
        return r + xreduce(dst, "v_max_f32", tmp)
    def zipl(a, b):
        r = []
        for x, y in zip(a, b):
            if x.startswith("s_nop"):
                r.append("s_nop 0")
            else:
                r += [x, y]
        return r
    def minit():
        a = rowmax(0, 0, V_X0, V_X1) + [f"v_mul_f32 {vr(V_NMC)}, {sr(S_C)}, {vr(V_X0)}", f"v_sub_f32 {vr(V_NMC)}, 0, {vr(V_NMC)}"]
        b = rowmax(0, 1, V_X2, V_X3) + [f"v_mul_f32 {vr(V_NMC+1)}, {sr(S_C)}, {vr(V_X2)}", f"v_sub_f32 {vr(V_NMC+1)}, 0, {vr(V_NMC+1)}"]
        return zipl(a, b)
    def linv():
        a = [f"v_add_f32 {vr(V_L)}, {vr(V_L)}, {vr(V_BS)}"] + xreduce(V_L, "v_add_f32", V_X0) + [f"v_rcp_f32 {vr(V_INV)}, {vr(V_L)}"]
        b = [f"v_add_f32 {vr(V_L+1)}, {vr(V_L+1)}, {vr(V_BS+1)}"] + xreduce(V_L + 1, "v_add_f32", V_X2) + [f"v_rcp_f32 {vr(V_INV+1)}, {vr(V_L+1)}"]
        return zipl(a, b)
    def opack():
        r = []
        n = 0
        for db in range(8):
            x = (db & 3) << 5
            va = V_OW
            if x:
                va = V_X2
                r.append(f"v_xor_b32 {vr(V_X2)}, {x}, {vr(V_OW)}")
            for qb in range(2):
                pk = V_PK + 2 * (n % 2); n += 1
                base = V_O + 4 * (2 * db + qb)
                for i in range(4):
                    r.append(f"v_mul_f32 {vr(base+i)}, {vr(base+i)}, {vr(V_INV+qb)}")
                for i in range(2):
                    r.append(f"v_cvt_pk_bf16_f32 {vr(pk+i)}, {vr(base+2*i)}, {vr(base+2*i+1)}")
                r.append(f"ds_write_b64 {vr(va)}, {vr(pk,2)} offset:{128*(db>>2)+4096*qb}")
        return r

    def spread(gaps, groups, a, b, front=False, step=1):
        idx = list(range(a, b, step))
        for i, gr in enumerate(groups):
            gi = idx[i * len(idx) // max(len(groups), 1)]
            if front: gaps[gi] = list(gr) + gaps[gi]
            else: gaps[gi] += list(gr)
    single = lambda l: [[x] for x in l]

    comp = o.compute
    nafter = 8 + (1 if o.stamps else 0)
    e(f"s_waitcnt vmcnt({nafter})")
    e("s_barrier")
    if comp:
        for gr in qreads():
            for x in gr: e(x)
        for x in kreads(0): e(x)
        e("s_waitcnt lgkmcnt(0)")
        for x in qk(0): e(x)
        for x in kreads(1): e(x)
        e("s_nop 3")
    if o.dbg:
        e("s_memrealtime s[56:57]")
        e(f"v_mov_b32 v252, 0")
    g.lines.append(".p2align 6")
    g.lab("L_head")
    fallbacks = []
    def prio_young(p):
        lab = f"L_pr{len(g.lines)}"
        return [f"s_cmp_eq_u32 {sr(S_YOUNG)}, 0", f"s_cbranch_scc1 {lab}", f"s_setprio {p}", f"{lab}:"]
    def emit(x):
        if x.endswith(":"): g.lab(x[:-1])
        else: e(x)
    for b in range(16):
        g.c(f"==== iter {b} phase A")
        if b == 0: stamp()
        pre, gaps = sm_parts(b, None if b == 0 else ('mov' if b == 1 else 'add'))
        if o.novalu and b >= 2:
            pre, gaps = [], [[] for _ in range(32)]
        if b == 0:
            lin = pre + [x for gp in gaps for x in gp]
            pre = []
            gaps = [[] for _ in range(32)]
            ini = linv() + minit()
            spread(gaps, single(ini), 0, 10)
            lin.insert(len(lin) - 2, "s_nop 0")
            spread(gaps, single(lin), 10, 32)
        nr = o.rdgaps
        vrd = vreads(b - 1); krd = kreads(b + 2)
        if o.halfrd:
            vrd = vrd[:8] if b % 2 else vrd[8:]
            krd = krd[:4] if b % 2 else krd[4:]
        spread(gaps, single(vrd), 0, nr)
        for j in range(8):
            if o.store and st_iter[j] == b:
                spread(gaps, [o_read(j)], nr, nr + 1)
        if b == 1:
            spread(gaps, single(opack()), 2, 16)
        spread(gaps, single(krd), 16, 16 + nr, step=(2 if o.kstep2 and nr >= 16 else 1))
        if b == 14:
            spread(gaps, qreads(), 16, 16 + nr)
        dm = []
        for k, x in ops[b]:
            if k in ('K', 'V'): dm.append(dma_kv(k, x))
            elif k == 'ST': dm.append(o_store(x))
            elif k == 'Q': dm.append(dma_q(x))
        spread(gaps, dm, 16 + o.dm0, 16 + o.dm1)
        if o.prio == 2:
            gaps[o.pr_lo] = gaps[o.pr_lo] + prio_young(0)
        e("s_waitcnt lgkmcnt(0)")
        if comp:
            for x in pre: e(x)
            mf = qk(b + 1)
            for i in range(16):
                e(mf[i])
                for x in gaps[i]: emit(x)
        g.c(f"==== iter {b} phase B")
        if b % o.stampmod == 0: stamp()
        if o.prio == 2:
            for x in prio_young(1): emit(x)
        e(f"s_waitcnt vmcnt({vm_wait(b)}) lgkmcnt(0)")
        e("s_barrier")
        if b % o.stampmod == 0: stamp()
        if comp:
            mf = pv(b - 1)
            for i in range(16):
                e(mf[i])
                for x in gaps[16 + i]: emit(x)
            if b >= 1:
                e(f"v_add_f32 {vr(V_X0)}, {vr(V_BS)}, {vr(V_BS+1)}")
                e(f"v_cmp_nge_f32 vcc, {sr(S_THR)}, {vr(V_X0)}")
                e(f"s_cbranch_vccnz L_fb{b}")
                g.lab(f"L_ret{b}")
                fallbacks.append(b)
        else:
            for gr in dm:
                for x in gr: e(x)
    stamp()
    stamp_dump()
    if o.stamps:
        e(f"s_add_u32 {sr(S_STAMPOFF)}, {sr(S_STAMPOFF)}, 256")
    if o.dbg:
        e("s_memrealtime s[58:59]")
        e("s_waitcnt lgkmcnt(0)")
        e("s_sub_u32 s58, s58, s52")
        e(f"s_add_u32 m0, {sr(S_HEAD)}, 4")
        e("s_nop 3")
        e(f"v_writelane_b32 v252, s58, m0")
    e(f"s_add_u32 {sr(S_HEAD)}, {sr(S_HEAD)}, 1")
    e(f"s_cmp_lt_u32 {sr(S_HEAD)}, 4")
    e("s_cbranch_scc1 L_head")
    g.c("==== tail")
    if comp:
        for x in vreads(15): e(x)
        for x in linv(): e(x)
        e("s_waitcnt lgkmcnt(0)")
        for x in pv(15): e(x)
        for x in opack(): e(x)
    if o.store:
        e(f"v_xor_b32 {vr(V_X4)}, 64, {vr(V_DQ)}")
        for j in range(8):
            pk = V_KF + 4 * j
            e(f"ds_read_b128 {vr(pk,4)}, {vr(V_OR)} offset:{j*1024}")
        for j in range(8):
            pk = V_KF + 4 * j
            e(f"s_waitcnt lgkmcnt({7-j})")
            if j == 4:
                e(f"s_add_u32 {sr(S_OOFF)}, {sr(S_OOFF)}, 4096")
            e(f"buffer_store_dwordx4 {vr(pk,4)}, {vr(V_X4 if j & 1 else V_DQ)}, {sr(S_OSRD,4)}, {sr(S_OOFF)} offen offset:{1024*(j%4)}{stflags}")
    if o.stamps:
        e("s_waitcnt vmcnt(0)")
        stampn[0] = 0
        stamp()
        stamp_dump()
    if o.dbg:
        e(f"s_cmp_lg_u32 {sr(S_TMP)}, 7")
        e("s_cbranch_scc1 L_end")
        e("s_waitcnt vmcnt(0)")
        e("s_memrealtime s[58:59]")
        e("s_memtime s[60:61]")
        e("s_waitcnt lgkmcnt(0)")
        e("s_mov_b32 s32, s48")
        e("s_and_b32 s33, s49, 0xffff")
        e("s_mov_b32 s34, 64")
        e("s_mov_b32 s35, 0x20000")
        e("s_not_b32 s62, s52")
        e("v_writelane_b32 v252, s62, 0")
        e("v_writelane_b32 v252, s58, 1")
        e("s_sub_u32 s62, s58, s52")
        e("v_writelane_b32 v252, s62, 2")
        e("s_sub_u32 s62, s56, s52")
        e("v_writelane_b32 v252, s62, 3")
        e("s_sub_u32 s62, s60, s50")
        e("v_writelane_b32 v252, s62, 8")
        e("v_writelane_b32 v252, s52, 9")
        e("s_not_b32 s62, s58")
        e("v_writelane_b32 v252, s62, 10")
        e(f"v_mbcnt_lo_u32_b32 {vr(V_X1)}, -1, 0")
        e(f"v_mbcnt_hi_u32_b32 {vr(V_X1)}, -1, {vr(V_X1)}")
        e(f"v_lshlrev_b32 {vr(V_X1)}, 2, {vr(V_X1)}")
        e(f"buffer_atomic_umax v252, {vr(V_X1)}, s[32:35], 0 offen")
    g.lab("L_end")
    e("s_endpgm")
    for b in fallbacks:
        g.lab(f"L_fb{b}")
        e("s_nop 15")
        for q in range(2):
            for x in rowmax(b, q, V_X0, V_X1): e(x)
            e(f"v_mul_f32 {vr(V_X0)}, {sr(S_C)}, {vr(V_X0)}")
            e(f"v_sub_f32 {vr(V_X0)}, 0, {vr(V_X0)}")
            e(f"v_min_f32 {vr(V_X0)}, {vr(V_X0)}, {vr(V_NMC+q)}")
            e(f"v_sub_f32 {vr(V_X1)}, {vr(V_X0)}, {vr(V_NMC+q)}")
            e(f"v_exp_f32 {vr(V_X1)}, {vr(V_X1)}")
            e(f"v_mov_b32 {vr(V_NMC+q)}, {vr(V_X0)}")
            e(f"v_mul_f32 {vr(V_L+q)}, {vr(V_L+q)}, {vr(V_X1)}")
            for db in range(8):
                for i in range(4):
                    r = V_O + 4 * (2 * db + q) + i
                    e(f"v_mul_f32 {vr(r)}, {vr(r)}, {vr(V_X1)}")
        for x in sm_linear(b): e(x)
        e("s_nop 1")
        e(f"s_branch L_ret{b}")

    nv = 256 if (o.stamps or o.dbg) else NVGPR
    out = HEADER
    out += f"; @launch grid=(256,1,1) block=(512,1,1) lds=163840\n"
    out += '.amdgcn_target "amdgcn-amd-amdhsa--gfx950"\n.text\n'
    out += f".globl {NAME}_kernel\n.p2align 8\n.type {NAME}_kernel,@function\n{NAME}_kernel:\n"
    out += "\n".join(g.lines) + "\n"
    out += f""".section .rodata,"a"
.p2align 6
.amdhsa_kernel {NAME}_kernel
  .amdhsa_next_free_vgpr {nv}
  .amdhsa_next_free_sgpr {102 if (o.stamps or o.dbg) else 48}
  .amdhsa_accum_offset {nv}
  .amdhsa_group_segment_fixed_size 0
  .amdhsa_kernarg_size 48
  .amdhsa_user_sgpr_count 2
  .amdhsa_user_sgpr_kernarg_segment_ptr 1
  .amdhsa_system_sgpr_workgroup_id_x 1
.end_amdhsa_kernel
"""
    return out

def main():
    ap = argparse.ArgumentParser()
    il = lambda s: [int(x) for x in s.split(",")]
    ap.add_argument("-o", default="out.s")
    ap.add_argument("--nocompute", dest="compute", action="store_false")
    ap.add_argument("--nostore", dest="store", action="store_false")
    ap.add_argument("--strided", action="store_true")
    ap.add_argument("--ldflags", default="nt")
    ap.add_argument("--qflags", default="")
    ap.add_argument("--stflags", default="")
    ap.add_argument("--thr", type=float, default=65536.0)
    ap.add_argument("--rdgaps", type=int, default=12)
    ap.add_argument("--kstep2", action="store_true")
    ap.add_argument("--dm0", type=int, default=0)
    ap.add_argument("--dm1", type=int, default=14)
    ap.add_argument("--st_iter", type=il, default=[2, 3, 4, 5, 6, 7, 8, 9])
    ap.add_argument("--q_iter", type=il, default=[3, 4, 5, 6, 7, 8, 9, 10])
    ap.add_argument("--prio", type=int, default=0)
    ap.add_argument("--pr_lo", type=int, default=4)
    ap.add_argument("--noprobar", dest="probar", action="store_false")
    ap.add_argument("--stamps", action="store_true")
    ap.add_argument("--stampmod", type=int, default=2)
    ap.add_argument("--l2only", type=int, default=0)
    ap.add_argument("--novalu", action="store_true")
    ap.add_argument("--dbg", action="store_true")
    ap.add_argument("--halfrd", action="store_true")
    o = ap.parse_args()
    open(o.o, "w").write(build(o))

if __name__ == "__main__":
    main()
```

```python
import sys, struct, argparse

def f32bits(x):
    return struct.unpack('<I', struct.pack('<f', x))[0]

NAME = "standalone__mha_softmax__near_ridge"

HEADER = """; Kernarg layout for this problem (48 bytes, ptrs only, base s[0:1]):
"""

V_O, V_Q, V_S, V_P, V_KF, V_VF, V_KA, V_VA, V_T, V_PK = 0, 64, 96, 128, 144, 176, 208, 212, 220, 228
V_DK, V_DV, V_DQ = 232, 233, 234
V_L, V_BS, V_NMC, V_INV = 236, 238, 240, 242
V_X0, V_X1, V_X2, V_X3, V_OW, V_OR, V_X4 = 244, 245, 246, 247, 248, 249, 235
NVGPR = 252

S_QSRD, S_KSRD, S_VSRD, S_OSRD = 4, 8, 12, 16
S_QOFF, S_KOFF, S_VOFF, S_OOFF = 20, 21, 22, 23
S_HEAD, S_WLDS, S_C, S_THR = 24, 25, 26, 27
S_TMP, S_WQ, S_ONR, S_YOUNG = 28, 29, 30, 31
S_WSRD = 32
S_STAMPOFF = 38

BLK = 8192
KBASE, VBASE, QBASE = 0, 49152, 98304
SLOTS = [0, 1, 2, 3, 4, 5, 0, 1, 2, 3, 4, 0, 1, 2, 3, 4]
M16 = "v_mfma_f32_16x16x32_bf16"

def vr(b, n=1):
    return f"v{b}" if n == 1 else f"v[{b}:{b+n-1}]"
def sr(b, n=1):
    return f"s{b}" if n == 1 else f"s[{b}:{b+n-1}]"

class Gen:
    def __init__(self):
        self.lines = []
    def e(self, s):
        if s is None: return
        self.lines.append("    " + s)
    def lab(self, s):
        self.lines.append(s + ":")
    def c(self, s):
        self.lines.append("    ; " + s)

def build(o):
    g = Gen()
    e = g.e
    ldflags = (" " + o.ldflags) if o.ldflags else ""
    qflags = (" " + o.qflags) if o.qflags else ldflags
    stflags = (" " + o.stflags) if o.stflags else ""

    def dma_kv(kind, b):
        b %= 16
        srd = S_KSRD if kind == 'K' else S_VSRD
        soff = S_KOFF if kind == 'K' else S_VOFF
        v0 = V_DK if kind == 'K' else V_DV
        base = (KBASE if kind == 'K' else VBASE) + SLOTS[b] * BLK
        inc = BLK
        if o.strided and b == 15:
            inc += 255 * 131072
        return [f"s_add_u32 m0, {sr(S_WLDS)}, {base}",
                "s_nop 0",
                f"buffer_load_dwordx4 {vr(v0)}, {sr(srd,4)}, {sr(soff)} offen{ldflags} lds",
                f"s_add_u32 {sr(soff)}, {sr(soff)}, {inc}"]
    def dma_q(j):
        inc = 1024
        if j == 7:
            inc += 65536 - 8192
            if o.strided:
                inc += 255 * 65536
        r = [f"s_add_u32 m0, {sr(S_WQ)}, {j*1024}",
             f"v_xor_b32 {vr(V_X3)}, {(j&3)<<6}, {vr(V_DQ)}",
             f"buffer_load_dwordx4 {vr(V_X3)}, {sr(S_QSRD,4)}, {sr(S_QOFF)} offen{qflags} lds",
             f"s_add_u32 {sr(S_QOFF)}, {sr(S_QOFF)}, {inc}"]
        return r
    def o_read(j):
        return [f"ds_read_b128 {vr(V_PK,4)}, {vr(V_OR)} offset:{j*1024}"]
    def o_store(j):
        inc = 1024
        if j == 7:
            inc += 65536 - 8192
            if o.strided:
                inc += 255 * 65536
        r = []
        va = V_DQ
        if j & 1:
            r.append(f"v_xor_b32 {vr(V_X4)}, 64, {vr(V_DQ)}")
            va = V_X4
        r += [f"buffer_store_dwordx4 {vr(V_PK,4)}, {vr(va)}, {sr(S_OSRD,4)}, {sr(S_OOFF)} offen{stflags}",
              f"s_add_u32 {sr(S_OOFF)}, {sr(S_OOFF)}, {inc}"]
        if j == 7:
            r.append(f"s_mov_b32 {sr(S_OSRD+2)}, {sr(S_ONR)}")
        return r

    stampn = [0]
    def stamp():
        if not o.stamps or o.tst:
            return
        i = stampn[0]
        if 56 + 2 * i + 1 > 101:
            return
        e(f"s_memtime s[{56+2*i}:{57+2*i}]")
        stampn[0] += 1
    def stamp_dump():
        if not o.stamps:
            return
        e(f"s_memrealtime s[54:55]")
        e("s_waitcnt lgkmcnt(0)")
        if o.tst:
            e(f"v_writelane_b32 v252, s56, 15")
            e(f"v_writelane_b32 v252, s58, 47")
        for i in range(stampn[0]):
            e(f"v_writelane_b32 v252, s{56+2*i}, {i}")
        e(f"v_writelane_b32 v252, s54, 31")
        e(f"v_writelane_b32 v252, s50, 30")
        e(f"v_writelane_b32 v252, s52, 29")
        e(f"s_getreg_b32 s55, hwreg(HW_REG_XCC_ID)")
        e(f"v_writelane_b32 v252, s55, 28")
        e(f"v_mbcnt_lo_u32_b32 v253, -1, 0")
        e(f"v_mbcnt_hi_u32_b32 v253, -1, v253")
        e(f"v_lshlrev_b32 v253, 2, v253")
        e(f"buffer_store_dword v252, v253, {sr(S_WSRD,4)}, {sr(S_STAMPOFF)} offen")

    st_iter = o.st_iter
    q_iter = o.q_iter
    VLA = 3 if o.stagger else 4
    ops = {b: [('K', b + 6), ('V', b + VLA)] for b in range(16)}
    for j in range(8):
        if o.store:
            ops[st_iter[j]].append(('ST', j))
    for j in range(8):
        assert q_iter[j] >= st_iter[j]
        ops[q_iter[j]].append(('Q', j))
    if o.xfirst:
        for b in range(16):
            ops[b] = ops[b][2:] + ops[b][:2]
    if o.stamps:
        ops[15].append(('STAMP', 0))
    for b in range(13 if o.xfirst else 12, 16):
        assert all(k in ('K', 'V', 'STAMP') for k, _ in ops[b])
    def vm_wait(b):
        seq = []
        for it in range(b - 16, b):
            for k, x in ops[it % 16]:
                seq.append((it, k, x))
        need = [i for i, (it, k, x) in enumerate(seq) if (it == b - 4 and k == 'K') or (it == b - VLA and k == 'V')]
        if b == 14:
            need += [i for i, (it, k, x) in enumerate(seq) if k == 'Q' and it >= 0]
        return len(seq) - 1 - max(need)

    e(f"s_cmp_ge_u32 s2, 256")
    e("s_cbranch_scc1 L_end")
    e("s_load_dwordx4 s[40:43], s[0:1], 0")
    e("s_load_dwordx4 s[44:47], s[0:1], 16")
    if o.dbg:
        e("s_load_dwordx2 s[48:49], s[0:1], 32")
        e("s_memtime s[50:51]")
        e("s_memrealtime s[52:53]")
    if o.stamps:
        e("s_load_dwordx2 s[48:49], s[0:1], 40")
        e("s_memtime s[50:51]")
        e("s_memrealtime s[52:53]")
    e(f"v_lshrrev_b32 v1, 6, v0")
    e(f"v_and_b32 v2, 63, v0")
    e(f"v_readfirstlane_b32 {sr(S_TMP)}, v1")
    e(f"v_lshrrev_b32 v3, 4, v2")
    e(f"v_and_b32 v4, 15, v2")
    e(f"v_lshl_add_u32 v5, v1, 2, v3")
    e(f"v_and_b32 v6, 15, v5")
    e(f"v_xor_b32 v6, v6, v4")
    e(f"v_lshlrev_b32 v6, 4, v6")
    e(f"v_lshl_add_u32 {vr(V_DK)}, v5, 8, v6")
    e(f"v_and_b32 v6, 7, v5")
    e(f"v_lshlrev_b32 v6, 1, v6")
    e(f"v_xor_b32 v6, v6, v4")
    e(f"v_lshlrev_b32 v6, 4, v6")
    e(f"v_lshl_add_u32 {vr(V_DV)}, v5, 8, v6")
    e(f"v_lshl_add_u32 v5, v1, 5, v3")
    e(f"v_lshlrev_b32 v5, 8, v5")
    e(f"v_xor_b32 v6, v3, v4")
    e(f"v_lshl_add_u32 {vr(V_DQ)}, v6, 4, v5")
    e(f"s_lshl_b32 {sr(S_WLDS)}, {sr(S_TMP)}, 10")
    e(f"s_lshl_b32 {sr(S_WQ)}, {sr(S_TMP)}, 13")
    e(f"s_add_u32 {sr(S_WQ)}, {sr(S_WQ)}, {QBASE}")
    e(f"s_lshr_b32 {sr(S_YOUNG)}, {sr(S_TMP)}, 2")
    if o.strided:
        e(f"s_lshl_b32 {sr(S_QOFF)}, s2, 16")
        e(f"s_lshl_b32 {sr(S_KOFF)}, s2, 17")
        e(f"s_mov_b32 {sr(S_QSRD+2)}, {1<<26}")
        e(f"s_mov_b32 {sr(S_KSRD+2)}, {1<<27}")
        e(f"s_mov_b32 {sr(S_VSRD+2)}, {1<<27}")
        e(f"s_mov_b32 {sr(S_ONR)}, {1<<26}")
        e(f"s_sub_u32 {sr(S_OOFF)}, {sr(S_QOFF)}, {65536*256}")
    else:
        e(f"s_lshl_b32 {sr(S_QOFF)}, s2, 18")
        e(f"s_lshl_b32 {sr(S_KOFF)}, s2, 19")
        e(f"s_add_u32 {sr(S_QSRD+2)}, {sr(S_QOFF)}, {1<<18}")
        e(f"s_add_u32 {sr(S_KSRD+2)}, {sr(S_KOFF)}, {1<<19}")
        e(f"s_mov_b32 {sr(S_VSRD+2)}, {sr(S_KSRD+2)}")
        e(f"s_mov_b32 {sr(S_ONR)}, {sr(S_QSRD+2)}")
        e(f"s_sub_u32 {sr(S_OOFF)}, {sr(S_QOFF)}, 65536")
    e(f"s_mov_b32 {sr(S_OSRD+2)}, 0")
    if o.l2only:
        e(f"s_and_b32 {sr(S_QOFF)}, s2, {o.l2only-1}")
        e(f"s_lshl_b32 {sr(S_KOFF)}, {sr(S_QOFF)}, 19")
        e(f"s_lshl_b32 {sr(S_QOFF)}, {sr(S_QOFF)}, 18")
        e(f"s_add_u32 {sr(S_QSRD+2)}, {sr(S_QOFF)}, {1<<18}")
        e(f"s_add_u32 {sr(S_KSRD+2)}, {sr(S_KOFF)}, {1<<19}")
        e(f"s_mov_b32 {sr(S_VSRD+2)}, {sr(S_KSRD+2)}")
    e(f"s_mov_b32 {sr(S_VOFF)}, {sr(S_KOFF)}")
    for srd in (S_QSRD, S_KSRD, S_VSRD, S_OSRD):
        e(f"s_mov_b32 {sr(srd+3)}, 0x20000")
    e("s_waitcnt lgkmcnt(0)")
    for srd, p in ((S_KSRD, 42), (S_QSRD, 40), (S_VSRD, 44), (S_OSRD, 46)):
        e(f"s_mov_b32 {sr(srd)}, s{p}")
        e(f"s_and_b32 {sr(srd+1)}, s{p+1}, 0xffff")
    for x in dma_kv('K', 0): e(x)
    for j in range(4):
        for x in dma_q(j): e(x)
    if o.probar: e("s_barrier")
    for j in range(4, 8):
        for x in dma_q(j): e(x)
    for x in dma_kv('K', 1): e(x)
    if o.probar: e("s_barrier")
    e(f"v_xor_b32 v9, v3, v4")
    e(f"v_lshlrev_b32 v9, 4, v9")
    e(f"v_lshl_add_u32 {vr(V_KA)}, v4, 8, v9")
    for s in range(1, 4):
        e(f"v_xor_b32 {vr(V_KA+s)}, {s*64}, {vr(V_KA)}")
    e(f"v_lshrrev_b32 v9, 2, v2")
    e(f"v_and_b32 v10, 7, v9")
    e(f"v_lshlrev_b32 v10, 1, v10")
    e(f"v_bfe_u32 v11, v2, 1, 1")
    e(f"v_xor_b32 v10, v10, v11")
    e(f"v_lshlrev_b32 v10, 4, v10")
    e(f"v_lshl_add_u32 v10, v9, 8, v10")
    e(f"v_and_b32 v11, 1, v2")
    e(f"v_lshl_add_u32 v10, v11, 3, v10")
    e(f"v_add_u32 {vr(V_VA)}, {VBASE}, v10")
    for t in range(1, 8):
        e(f"v_xor_b32 {vr(V_VA+t)}, {t*32}, {vr(V_VA)}")
    e(f"v_and_b32 v9, 7, v4")
    e(f"v_lshrrev_b32 v10, 1, v3")
    e(f"v_xor_b32 v9, v9, v10")
    e(f"v_lshlrev_b32 v9, 4, v9")
    e(f"v_lshl_add_u32 v9, v4, 8, v9")
    e(f"v_and_b32 v10, 1, v3")
    e(f"v_lshl_add_u32 v9, v10, 3, v9")
    e(f"v_add_u32 {vr(V_OW)}, {sr(S_WQ)}, v9")
    e(f"v_lshlrev_b32 v9, 4, v2")
    e(f"v_add_u32 {vr(V_OR)}, {sr(S_WQ)}, v9")
    e(f"s_mov_b32 {sr(S_C)}, {hex(f32bits(128**-0.5 * 1.4426950408889634))}")
    e(f"s_mov_b32 {sr(S_THR)}, {hex(f32bits(o.thr))}")
    e(f"s_mov_b32 {sr(S_HEAD)}, 0")
    for i in range(2):
        e(f"v_mov_b32 {vr(V_L+i)}, 1.0")
        e(f"v_mov_b32 {vr(V_BS+i)}, 0")
    npro = 0
    for b in range(-4, 0):
        for x in dma_kv('K', b + 6): e(x)
        npro += 1
        if b + VLA >= 0:
            for x in dma_kv('V', b + VLA): e(x)
            npro += 1
    if o.nodma:
        for bb in range(VLA, 6):
            for x in dma_kv('V', bb): e(x)
        e("s_waitcnt vmcnt(0)")
    if o.stamps:
        e(f"s_mov_b32 {sr(S_WSRD)}, s48")
        e(f"s_and_b32 {sr(S_WSRD+1)}, s49, 0xffff")
        e(f"s_mov_b32 {sr(S_WSRD+2)}, {1<<24}")
        e(f"s_mov_b32 {sr(S_WSRD+3)}, 0x20000")
        e(f"s_lshl_b32 {sr(S_STAMPOFF)}, s2, 3")
        e(f"s_add_u32 {sr(S_STAMPOFF)}, {sr(S_STAMPOFF)}, {sr(S_TMP)}")
        e(f"s_lshl_b32 {sr(S_STAMPOFF)}, {sr(S_STAMPOFF)}, 11")
        stamp_dump()
    if o.prio == 1:
        e(f"s_cmp_ge_u32 {sr(S_TMP)}, 4")
        e("s_cbranch_scc0 L_prio_done")
        e("s_setprio 1")
        g.lab("L_prio_done")

    def kreads(b):
        off = KBASE + SLOTS[b % 16] * BLK
        return [f"ds_read_b128 {vr(V_KF+4*(4*kb+s),4)}, {vr(V_KA+s)} offset:{off+4096*kb}" for kb in range(2) for s in range(4)]
    def qreads():
        r = []
        for s in range(4):
            a = V_Q + 4 * (4 + s)
            r.append([f"v_add_u32 {vr(a)}, {sr(S_WQ)}, {vr(V_KA+s)}",
                      f"ds_read_b128 {vr(V_Q+4*s,4)}, {vr(a)}"])
            r.append([f"ds_read_b128 {vr(a,4)}, {vr(a)} offset:4096"])
        return r
    def vreads(b):
        r = []
        for db in range(8):
            for w in range(2):
                off = SLOTS[b % 16] * BLK + w * 4096
                r.append(f"ds_read_b64_tr_b16 {vr(V_VF+4*db+2*w,2)}, {vr(V_VA+db)} offset:{off}")
        return r
    def qk(b):
        S = V_S + 16 * (b % 2)
        if o.mf32 in (1, 2):
            r = []
            for s in range(8):
                r += [f"v_mfma_f32_32x32x16_bf16 {vr(S,16)}, {vr(V_KF+4*s,4)}, {vr(V_Q+4*s,4)}, " + ("0" if s == 0 else vr(S, 16)), None]
            return r
        if o.nomfma: return [None] * 16
        order = [(qb, kb, s) for qb in range(2) for kb in range(2) for s in range(4)]
        if o.qkord == 1:
            order = [(qb, kb, s) for s in range(4) for qb in range(2) for kb in range(2)]
        if o.qkord == 2:
            order = [(qb, kb, s) for kb in range(2) for s in range(4) for qb in range(2)]
        r = []
        for qb, kb, s in order:
            D = S + 8 * qb + 4 * kb
            r.append(f"{M16} {vr(D,4)}, {vr(V_KF+4*(4*kb+s),4)}, {vr(V_Q+4*(4*qb+s),4)}, " + ("0" if s == 0 else vr(D, 4)))
        return r
    def pv(b):
        b %= 16
        P = V_P + 8 * (b % 2)
        r = []
        if o.mf32 in (1, 3):
            for u in range(2):
                for t in range(4):
                    O = V_O + 16 * t
                    cc = "0" if (b == 0 and u == 0) else vr(O, 16)
                    r += [f"v_mfma_f32_32x32x16_bf16 {vr(O,16)}, {vr(V_VF+4*(4*u+t),4)}, {vr(P+4*u,4)}, {cc}", None]
            return r
        if o.nomfma: return [None] * 16
        for db in range(8):
            for qb in range(2):
                O = V_O + 4 * (2 * db + qb)
                cc = "0" if b == 0 else vr(O, 4)
                r.append(f"{M16} {vr(O,4)}, {vr(V_VF+4*db,4)}, {vr(P+4*qb,4)}, {cc}")
        return r
    T = lambda k: vr(V_T + k % 8)
    def sm_parts(b, lupd):
        S = V_S + 16 * (b % 2)
        P = V_P + 8 * (b % 2)
        F = lambda k: f"v_fma_f32 {T(k)}, {vr(S+k)}, {sr(S_C)}, {vr(V_NMC + k // 8)}"
        E = lambda k: f"v_exp_f32 {T(k)}, {T(k)}"
        def A(k):
            q = k // 8
            if k % 8 == 0:
                if lupd == 'add': return [f"v_add_f32 {vr(V_L+q)}, {vr(V_L+q)}, {vr(V_BS+q)}"]
                if lupd == 'mov': return [f"v_mov_b32 {vr(V_L+q)}, {vr(V_BS+q)}"]
                return []
            if k % 8 == 1:
                return [f"v_add_f32 {vr(V_BS+q)}, {T(k-1)}, {T(k)}"]
            return [f"v_add_f32 {vr(V_BS+q)}, {vr(V_BS+q)}, {T(k)}"]
        C = lambda k: f"v_cvt_pk_bf16_f32 {vr(P+k//2)}, {T(k-1)}, {T(k)}"
        gaps = [[] for _ in range(32)]
        for k in range(16):
            gaps[2 * k].append(E(k))
            if k + 1 < 16: gaps[2 * k + 1].append(F(k + 1))
            gaps[2 * k + 1] += A(k)
            if k % 2 == 1: gaps[2 * k + 1].append(C(k))
        return [F(0)], gaps
    def sm_linear(b):
        pre, gaps = sm_parts(b, None)
        r = list(pre)
        for i, gp in enumerate(gaps):
            if i == 31: r.append("s_nop 0")
            r += gp
        return r
    def xreduce(dst, op, tmp):
        return [f"v_mov_b32 {vr(tmp)}, {vr(dst)}", "s_nop 1",
                f"v_permlane32_swap_b32 {vr(dst)}, {vr(tmp)}",
                f"{op} {vr(dst)}, {vr(dst)}, {vr(tmp)}",
                f"v_mov_b32 {vr(tmp)}, {vr(dst)}", "s_nop 1",
                f"v_permlane16_swap_b32 {vr(dst)}, {vr(tmp)}",
                f"{op} {vr(dst)}, {vr(dst)}, {vr(tmp)}"]
    def rowmax(b, q, dst, tmp):
        S = V_S + 16 * (b % 2) + 8 * q
        r = [f"v_max3_f32 {vr(dst)}, {vr(S)}, {vr(S+1)}, {vr(S+2)}",
             f"v_max3_f32 {vr(dst)}, {vr(dst)}, {vr(S+3)}, {vr(S+4)}",
             f"v_max3_f32 {vr(dst)}, {vr(dst)}, {vr(S+5)}, {vr(S+6)}",
             f"v_max_f32 {vr(dst)}, {vr(dst)}, {vr(S+7)}"]
        return r + xreduce(dst, "v_max_f32", tmp)
    def zipl(a, b):
        r = []
        for x, y in zip(a, b):
            if x.startswith("s_nop"):
                r.append("s_nop 0")
            else:
                r += [x, y]
        return r
    def minit():
        a = rowmax(0, 0, V_X0, V_X1) + [f"v_mul_f32 {vr(V_NMC)}, {sr(S_C)}, {vr(V_X0)}", f"v_sub_f32 {vr(V_NMC)}, 0, {vr(V_NMC)}"]
        b = rowmax(0, 1, V_X2, V_X3) + [f"v_mul_f32 {vr(V_NMC+1)}, {sr(S_C)}, {vr(V_X2)}", f"v_sub_f32 {vr(V_NMC+1)}, 0, {vr(V_NMC+1)}"]
        return zipl(a, b)
    def linv():
        a = [f"v_add_f32 {vr(V_L)}, {vr(V_L)}, {vr(V_BS)}"] + xreduce(V_L, "v_add_f32", V_X0) + [f"v_rcp_f32 {vr(V_INV)}, {vr(V_L)}"]
        b = [f"v_add_f32 {vr(V_L+1)}, {vr(V_L+1)}, {vr(V_BS+1)}"] + xreduce(V_L + 1, "v_add_f32", V_X2) + [f"v_rcp_f32 {vr(V_INV+1)}, {vr(V_L+1)}"]
        return zipl(a, b)
    def opack():
        r = []
        n = 0
        for db in range(8):
            x = (db & 3) << 5
            va = V_OW
            if x:
                va = V_X2
                r.append(f"v_xor_b32 {vr(V_X2)}, {x}, {vr(V_OW)}")
            for qb in range(2):
                pk = V_PK + 2 * (n % 2); n += 1
                base = V_O + 4 * (2 * db + qb)
                for i in range(4):
                    r.append(f"v_mul_f32 {vr(base+i)}, {vr(base+i)}, {vr(V_INV+qb)}")
                for i in range(2):
                    r.append(f"v_cvt_pk_bf16_f32 {vr(pk+i)}, {vr(base+2*i)}, {vr(base+2*i+1)}")
                r.append(f"ds_write_b64 {vr(va)}, {vr(pk,2)} offset:{128*(db>>2)+4096*qb}")
        return r

    def spread(gaps, groups, a, b, front=False, step=1):
        idx = list(range(a, b, step))
        for i, gr in enumerate(groups):
            gi = idx[i * len(idx) // max(len(groups), 1)]
            if front: gaps[gi] = list(gr) + gaps[gi]
            else: gaps[gi] += list(gr)
    single = lambda l: [[x] for x in l]

    comp = o.compute
    nafter = npro + (1 if o.stamps else 0)
    e(f"s_waitcnt vmcnt({nafter})")
    e("s_barrier")
    if comp:
        for gr in qreads():
            for x in gr: e(x)
        for x in kreads(0): e(x)
        e("s_waitcnt lgkmcnt(0)")
        for x in qk(0): e(x)
        for x in kreads(1): e(x)
        e("s_nop 3")
    if o.dbg:
        e("s_memrealtime s[56:57]")
        e(f"v_mov_b32 v252, 0")
    g.lines.append(".p2align 6")
    g.lab("L_head")
    fallbacks = []
    def prio_young(p):
        lab = f"L_pr{len(g.lines)}"
        return [f"s_cmp_eq_u32 {sr(S_YOUNG)}, 0", f"s_cbranch_scc1 {lab}", f"s_setprio {p}", f"{lab}:"]
    def emit(x):
        if x.endswith(":"): g.lab(x[:-1])
        else: e(x)
    for b in range(16):
        g.c(f"==== iter {b} phase A")
        if b == 0: stamp()
        pre, gaps = sm_parts(b, None if b == 0 else ('mov' if b == 1 else 'add'))
        if o.novalu and b >= 2:
            pre, gaps = [], [[] for _ in range(32)]
        if b == 0:
            lin = pre + [x for gp in gaps for x in gp]
            pre = []
            gaps = [[] for _ in range(32)]
            ini = linv() + minit()
            spread(gaps, single(ini), 0, 10)
            lin.insert(len(lin) - 2, "s_nop 0")
            spread(gaps, single(lin), 10, 32)
        nr = o.rdgaps
        vrd = vreads(b - 1); krd = kreads(b + 2)
        if o.nord and b > 1:
            vrd = []; krd = []
        if o.halfrd:
            vrd = vrd[:8] if b % 2 else vrd[8:]
            krd = krd[:4] if b % 2 else krd[4:]
        if o.rdmode == 0:
            spread(gaps, single(vrd), 0, nr)
        elif o.rdmode == 1:
            spread(gaps, [vrd[i:i+2] for i in range(0, len(vrd), 2)], 0, nr, step=2)
        elif o.rdmode == 2:
            spread(gaps, single(vrd), 0, nr, front=True)
        elif o.rdmode == 3:
            spread(gaps, [vrd[i:i+4] for i in range(0, len(vrd), 4)], 0, nr, step=2)
        for j in range(8):
            if o.store and st_iter[j] == b:
                spread(gaps, [o_read(j)], nr, nr + 1)
        if b == 1:
            spread(gaps, single(opack()), 2, 16)
        if o.rdmode == 1:
            spread(gaps, single(krd), 16, 16 + nr, step=2)
        elif o.rdmode == 2:
            spread(gaps, single(krd), 16, 16 + nr, front=True)
        elif o.rdmode == 3:
            spread(gaps, [krd[i:i+2] for i in range(0, len(krd), 2)], 16, 16 + nr, step=2)
        else:
            spread(gaps, single(krd), 16, 16 + nr)
        if b == 14 and not o.nodma:
            spread(gaps, qreads(), 16, 16 + nr)
        dm = []
        for k, x in ops[b]:
            cap = [f"s_waitcnt vmcnt({o.win-1})"] if o.win else []
            if k in ('K', 'V'): dm.append(cap + dma_kv(k, x))
            elif k == 'ST': dm.append(cap + o_store(x))
            elif k == 'Q': dm.append(cap + dma_q(x))
        if o.nodma: dm = []
        spread(gaps, dm, 16 + o.dm0, 16 + o.dm1)
        if o.prio == 2:
            gaps[o.pr_lo] = gaps[o.pr_lo] + prio_young(0)
        if o.stagger:
            e(f"s_cmp_eq_u32 {sr(S_YOUNG)}, {0 if o.stagger == 1 else 1}")
            e(f"s_cbranch_scc1 L_sa{b}")
            e(f"s_waitcnt vmcnt({vm_wait(b)}) lgkmcnt(0)")
            e("s_barrier")
            g.lab(f"L_sa{b}")
        e("s_waitcnt lgkmcnt(0)")
        if o.tst and b > 0:
            e(f"v_writelane_b32 v252, s56, {b-1}")
            e(f"v_writelane_b32 v252, s58, {32+b-1}")
        if comp:
            for x in pre: e(x)
            mf = qk(b + 1)
            for i in range(16):
                e(mf[i])
                for x in gaps[i]: emit(x)
        g.c(f"==== iter {b} phase B")
        if b % o.stampmod == 0: stamp()
        if o.prio == 2:
            for x in prio_young(1): emit(x)
        if o.stagger:
            e(f"s_cmp_lg_u32 {sr(S_YOUNG)}, {0 if o.stagger == 1 else 1}")
            e(f"s_cbranch_scc1 L_sb{b}")
        e(f"s_waitcnt vmcnt({vm_wait(b)}) lgkmcnt(0)")
        if not o.nobar: e("s_barrier")
        if o.stagger:
            g.lab(f"L_sb{b}")
            e("s_waitcnt lgkmcnt(0)")
        if o.tst:
            e("s_memtime s[56:57]")
            e("s_memrealtime s[58:59]")
        if b % o.stampmod == 0: stamp()
        if comp:
            mf = pv(b - 1)
            for i in range(16):
                e(mf[i])
                for x in gaps[16 + i]: emit(x)
            if b >= 1 and not o.nochk:
                e(f"v_add_f32 {vr(V_X0)}, {vr(V_BS)}, {vr(V_BS+1)}")
                e(f"v_cmp_nge_f32 vcc, {sr(S_THR)}, {vr(V_X0)}")
                e(f"s_cbranch_vccnz L_fb{b}")
                g.lab(f"L_ret{b}")
                fallbacks.append(b)
        else:
            for gr in dm:
                for x in gr: e(x)
    stamp()
    stamp_dump()
    if o.stamps:
        e(f"s_add_u32 {sr(S_STAMPOFF)}, {sr(S_STAMPOFF)}, 256")
    if o.dbg:
        e("s_memrealtime s[58:59]")
        e("s_waitcnt lgkmcnt(0)")
        e("s_sub_u32 s58, s58, s52")
        e(f"s_add_u32 m0, {sr(S_HEAD)}, 4")
        e("s_nop 3")
        e(f"v_writelane_b32 v252, s58, m0")
    e(f"s_add_u32 {sr(S_HEAD)}, {sr(S_HEAD)}, 1")
    e(f"s_cmp_lt_u32 {sr(S_HEAD)}, 4")
    e("s_cbranch_scc1 L_head")
    g.c("==== tail")
    if comp:
        for x in vreads(15): e(x)
        for x in linv(): e(x)
        e("s_waitcnt lgkmcnt(0)")
        for x in pv(15): e(x)
        for x in opack(): e(x)
    if o.store:
        e(f"v_xor_b32 {vr(V_X4)}, 64, {vr(V_DQ)}")
        for j in range(8):
            pk = V_KF + 4 * j
            e(f"ds_read_b128 {vr(pk,4)}, {vr(V_OR)} offset:{j*1024}")
        for j in range(8):
            pk = V_KF + 4 * j
            e(f"s_waitcnt lgkmcnt({7-j})")
            if j == 4:
                e(f"s_add_u32 {sr(S_OOFF)}, {sr(S_OOFF)}, 4096")
            e(f"buffer_store_dwordx4 {vr(pk,4)}, {vr(V_X4 if j & 1 else V_DQ)}, {sr(S_OSRD,4)}, {sr(S_OOFF)} offen offset:{1024*(j%4)}{stflags}")
    if o.stamps:
        e("s_waitcnt vmcnt(0)")
        stampn[0] = 0
        stamp()
        stamp_dump()
    if o.dbg:
        e(f"s_cmp_lg_u32 {sr(S_TMP)}, 7")
        e("s_cbranch_scc1 L_end")
        e("s_waitcnt vmcnt(0)")
        e("s_memrealtime s[58:59]")
        e("s_memtime s[60:61]")
        e("s_waitcnt lgkmcnt(0)")
        e("s_mov_b32 s32, s48")
        e("s_and_b32 s33, s49, 0xffff")
        e("s_mov_b32 s34, 64")
        e("s_mov_b32 s35, 0x20000")
        e("s_not_b32 s62, s52")
        e("v_writelane_b32 v252, s62, 0")
        e("v_writelane_b32 v252, s58, 1")
        e("s_sub_u32 s62, s58, s52")
        e("v_writelane_b32 v252, s62, 2")
        e("s_sub_u32 s62, s56, s52")
        e("v_writelane_b32 v252, s62, 3")
        e("s_sub_u32 s62, s60, s50")
        e("v_writelane_b32 v252, s62, 8")
        e("v_writelane_b32 v252, s52, 9")
        e("s_not_b32 s62, s58")
        e("v_writelane_b32 v252, s62, 10")
        e(f"v_mbcnt_lo_u32_b32 {vr(V_X1)}, -1, 0")
        e(f"v_mbcnt_hi_u32_b32 {vr(V_X1)}, -1, {vr(V_X1)}")
        e(f"v_lshlrev_b32 {vr(V_X1)}, 2, {vr(V_X1)}")
        e(f"buffer_atomic_umax v252, {vr(V_X1)}, s[32:35], 0 offen")
    g.lab("L_end")
    e("s_endpgm")
    for b in fallbacks:
        g.lab(f"L_fb{b}")
        e("s_nop 15")
        for q in range(2):
            for x in rowmax(b, q, V_X0, V_X1): e(x)
            e(f"v_mul_f32 {vr(V_X0)}, {sr(S_C)}, {vr(V_X0)}")
            e(f"v_sub_f32 {vr(V_X0)}, 0, {vr(V_X0)}")
            e(f"v_min_f32 {vr(V_X0)}, {vr(V_X0)}, {vr(V_NMC+q)}")
            e(f"v_sub_f32 {vr(V_X1)}, {vr(V_X0)}, {vr(V_NMC+q)}")
            e(f"v_exp_f32 {vr(V_X1)}, {vr(V_X1)}")
            e(f"v_mov_b32 {vr(V_NMC+q)}, {vr(V_X0)}")
            e(f"v_mul_f32 {vr(V_L+q)}, {vr(V_L+q)}, {vr(V_X1)}")
            for db in range(8):
                for i in range(4):
                    r = V_O + 4 * (2 * db + q) + i
                    e(f"v_mul_f32 {vr(r)}, {vr(r)}, {vr(V_X1)}")
        for x in sm_linear(b): e(x)
        e("s_nop 1")
        e(f"s_branch L_ret{b}")

    nv = 256 if (o.stamps or o.dbg) else NVGPR
    out = HEADER
    out += f"; @launch grid=(256,1,1) block=(512,1,1) lds=163840\n"
    out += '.amdgcn_target "amdgcn-amd-amdhsa--gfx950"\n.text\n'
    out += f".globl {NAME}_kernel\n.p2align 8\n.type {NAME}_kernel,@function\n{NAME}_kernel:\n"
    out += "\n".join(g.lines) + "\n"
    out += f""".section .rodata,"a"
.p2align 6
.amdhsa_kernel {NAME}_kernel
  .amdhsa_next_free_vgpr {nv}
  .amdhsa_next_free_sgpr {102 if (o.stamps or o.dbg) else 48}
  .amdhsa_accum_offset {nv}
  .amdhsa_group_segment_fixed_size 0
  .amdhsa_kernarg_size 48
  .amdhsa_user_sgpr_count 2
  .amdhsa_user_sgpr_kernarg_segment_ptr 1
  .amdhsa_system_sgpr_workgroup_id_x 1
.end_amdhsa_kernel
"""
    return out

def main():
    ap = argparse.ArgumentParser()
    il = lambda s: [int(x) for x in s.split(",")]
    ap.add_argument("-o", default="out.s")
    ap.add_argument("--nocompute", dest="compute", action="store_false")
    ap.add_argument("--nostore", dest="store", action="store_false")
    ap.add_argument("--strided", action="store_true")
    ap.add_argument("--ldflags", default="nt")
    ap.add_argument("--qflags", default="")
    ap.add_argument("--stflags", default="")
    ap.add_argument("--thr", type=float, default=65536.0)
    ap.add_argument("--rdgaps", type=int, default=12)
    ap.add_argument("--kstep2", action="store_true")
    ap.add_argument("--dm0", type=int, default=0)
    ap.add_argument("--dm1", type=int, default=14)
    ap.add_argument("--st_iter", type=il, default=[2, 3, 4, 5, 6, 7, 8, 9])
    ap.add_argument("--q_iter", type=il, default=[3, 4, 5, 6, 7, 8, 9, 10])
    ap.add_argument("--prio", type=int, default=0)
    ap.add_argument("--pr_lo", type=int, default=4)
    ap.add_argument("--noprobar", dest="probar", action="store_false")
    ap.add_argument("--stamps", action="store_true")
    ap.add_argument("--stampmod", type=int, default=2)
    ap.add_argument("--l2only", type=int, default=0)
    ap.add_argument("--novalu", action="store_true")
    ap.add_argument("--dbg", action="store_true")
    ap.add_argument("--win", type=int, default=0)
    ap.add_argument("--xfirst", action="store_true")
    ap.add_argument("--stagger", type=int, default=0)
    ap.add_argument("--rdmode", type=int, default=0)
    ap.add_argument("--mf32", type=int, default=0)
    ap.add_argument("--nomfma", action="store_true")
    ap.add_argument("--qkord", type=int, default=0)
    ap.add_argument("--nodma", action="store_true")
    ap.add_argument("--nobar", action="store_true")
    ap.add_argument("--nord", action="store_true")
    ap.add_argument("--nochk", action="store_true")
    ap.add_argument("--tst", action="store_true")
    ap.add_argument("--halfrd", action="store_true")
    o = ap.parse_args()
    open(o.o, "w").write(build(o))

if __name__ == "__main__":
    main()
```

```python
import sys, struct, argparse

def f32bits(x):
    return struct.unpack('<I', struct.pack('<f', x))[0]

NAME = "standalone__mha_softmax__near_ridge"

HEADER = """; Kernarg layout for this problem (48 bytes, ptrs only, base s[0:1]):
"""

V_O, V_Q, V_S, V_P, V_KF, V_VF, V_KA, V_VA, V_T, V_PK = 0, 64, 96, 128, 144, 176, 208, 212, 220, 228
V_DK, V_DV, V_DQ = 232, 233, 234
V_L, V_BS, V_NMC, V_INV = 236, 238, 240, 242
V_X0, V_X1, V_X2, V_X3, V_OW, V_OR, V_X4 = 244, 245, 246, 247, 248, 249, 235
NVGPR = 252

S_QSRD, S_KSRD, S_VSRD, S_OSRD = 4, 8, 12, 16
S_QOFF, S_KOFF, S_VOFF, S_OOFF = 20, 21, 22, 23
S_HEAD, S_WLDS, S_C, S_THR = 24, 25, 26, 27
S_TMP, S_WQ, S_ONR, S_YOUNG = 28, 29, 30, 31
S_WSRD = 32
S_STAMPOFF = 38

BLK = 8192
KBASE, VBASE, QBASE = 0, 49152, 98304
SLOTS = [0, 1, 2, 3, 4, 5, 0, 1, 2, 3, 4, 0, 1, 2, 3, 4]
M16 = "v_mfma_f32_16x16x32_bf16"

def vr(b, n=1):
    return f"v{b}" if n == 1 else f"v[{b}:{b+n-1}]"
def sr(b, n=1):
    return f"s{b}" if n == 1 else f"s[{b}:{b+n-1}]"

class Gen:
    def __init__(self):
        self.lines = []
    def e(self, s):
        if s is None: return
        self.lines.append("    " + s)
    def lab(self, s):
        self.lines.append(s + ":")
    def c(self, s):
        self.lines.append("    ; " + s)

def build(o):
    g = Gen()
    e = g.e
    ldflags = (" " + o.ldflags) if o.ldflags else ""
    qflags = (" " + o.qflags) if o.qflags else ldflags
    stflags = (" " + o.stflags) if o.stflags else ""

    def dma_kv(kind, b):
        b %= 16
        srd = S_KSRD if kind == 'K' else S_VSRD
        soff = S_KOFF if kind == 'K' else S_VOFF
        v0 = V_DK if kind == 'K' else V_DV
        base = (KBASE if kind == 'K' else VBASE) + SLOTS[b] * BLK
        inc = BLK
        if o.strided and b == 15:
            inc += 255 * 131072
        return [f"s_add_u32 m0, {sr(S_WLDS)}, {base}",
                "s_nop 0",
                f"buffer_load_dwordx4 {vr(v0)}, {sr(srd,4)}, {sr(soff)} offen{ldflags} lds",
                f"s_add_u32 {sr(soff)}, {sr(soff)}, {inc}"]
    def dma_q(j):
        inc = 1024
        if j == 7:
            inc += 65536 - 8192
            if o.strided:
                inc += 255 * 65536
        r = [f"s_add_u32 m0, {sr(S_WQ)}, {j*1024}",
             f"v_xor_b32 {vr(V_X3)}, {(j&3)<<6}, {vr(V_DQ)}",
             f"buffer_load_dwordx4 {vr(V_X3)}, {sr(S_QSRD,4)}, {sr(S_QOFF)} offen{qflags} lds",
             f"s_add_u32 {sr(S_QOFF)}, {sr(S_QOFF)}, {inc}"]
        return r
    def o_read(j):
        return [f"ds_read_b128 {vr(V_PK,4)}, {vr(V_OR)} offset:{j*1024}"]
    def o_store(j):
        inc = 1024
        if j == 7:
            inc += 65536 - 8192
            if o.strided:
                inc += 255 * 65536
        r = []
        va = V_DQ
        if j & 1:
            r.append(f"v_xor_b32 {vr(V_X4)}, 64, {vr(V_DQ)}")
            va = V_X4
        r += [f"buffer_store_dwordx4 {vr(V_PK,4)}, {vr(va)}, {sr(S_OSRD,4)}, {sr(S_OOFF)} offen{stflags}",
              f"s_add_u32 {sr(S_OOFF)}, {sr(S_OOFF)}, {inc}"]
        if j == 7:
            r.append(f"s_mov_b32 {sr(S_OSRD+2)}, {sr(S_ONR)}")
        return r

    stampn = [0]
    def stamp():
        if not o.stamps or o.tst:
            return
        i = stampn[0]
        if 56 + 2 * i + 1 > 101:
            return
        e(f"s_memtime s[{56+2*i}:{57+2*i}]")
        stampn[0] += 1
    def stamp_dump():
        if not o.stamps:
            return
        e(f"s_memrealtime s[54:55]")
        e("s_waitcnt lgkmcnt(0)")
        if o.tst:
            e(f"v_writelane_b32 v252, s56, 15")
            e(f"v_writelane_b32 v252, s58, 47")
        for i in range(stampn[0]):
            e(f"v_writelane_b32 v252, s{56+2*i}, {i}")
        e(f"v_writelane_b32 v252, s54, 31")
        e(f"v_writelane_b32 v252, s50, 30")
        e(f"v_writelane_b32 v252, s52, 29")
        e(f"s_getreg_b32 s55, hwreg(HW_REG_XCC_ID)")
        e(f"v_writelane_b32 v252, s55, 28")
        e(f"v_mbcnt_lo_u32_b32 v253, -1, 0")
        e(f"v_mbcnt_hi_u32_b32 v253, -1, v253")
        e(f"v_lshlrev_b32 v253, 2, v253")
        e(f"buffer_store_dword v252, v253, {sr(S_WSRD,4)}, {sr(S_STAMPOFF)} offen")

    st_iter = o.st_iter
    q_iter = o.q_iter
    VLA = 3 if o.stagger else 4
    ops = {b: [('K', b + 6), ('V', b + VLA)] for b in range(16)}
    for j in range(8):
        if o.store:
            ops[st_iter[j]].append(('ST', j))
    for j in range(8):
        assert q_iter[j] >= st_iter[j]
        ops[q_iter[j]].append(('Q', j))
    if o.xfirst:
        for b in range(16):
            ops[b] = ops[b][2:] + ops[b][:2]
    if o.stamps:
        ops[15].append(('STAMP', 0))
    for b in range(13 if o.xfirst else 12, 16):
        assert all(k in ('K', 'V', 'STAMP') for k, _ in ops[b])
    def vm_wait(b):
        seq = []
        for it in range(b - 16, b):
            for k, x in ops[it % 16]:
                seq.append((it, k, x))
        need = [i for i, (it, k, x) in enumerate(seq) if (it == b - 4 and k == 'K') or (it == b - VLA and k == 'V')]
        if b == 14:
            need += [i for i, (it, k, x) in enumerate(seq) if k == 'Q' and it >= 0]
        return len(seq) - 1 - max(need)

    e(f"s_cmp_ge_u32 s2, 256")
    e("s_cbranch_scc1 L_end")
    e("s_load_dwordx4 s[40:43], s[0:1], 0")
    e("s_load_dwordx4 s[44:47], s[0:1], 16")
    if o.dbg:
        e("s_load_dwordx2 s[48:49], s[0:1], 32")
        e("s_memtime s[50:51]")
        e("s_memrealtime s[52:53]")
    if o.stamps:
        e("s_load_dwordx2 s[48:49], s[0:1], 40")
        e("s_memtime s[50:51]")
        e("s_memrealtime s[52:53]")
    e(f"v_lshrrev_b32 v1, 6, v0")
    e(f"v_and_b32 v2, 63, v0")
    e(f"v_readfirstlane_b32 {sr(S_TMP)}, v1")
    e(f"v_lshrrev_b32 v3, 4, v2")
    e(f"v_and_b32 v4, 15, v2")
    e(f"v_lshl_add_u32 v5, v1, 2, v3")
    e(f"v_and_b32 v6, 15, v5")
    e(f"v_xor_b32 v6, v6, v4")
    e(f"v_lshlrev_b32 v6, 4, v6")
    e(f"v_lshl_add_u32 {vr(V_DK)}, v5, 8, v6")
    e(f"v_and_b32 v6, 7, v5")
    e(f"v_lshlrev_b32 v6, 1, v6")
    e(f"v_xor_b32 v6, v6, v4")
    e(f"v_lshlrev_b32 v6, 4, v6")
    e(f"v_lshl_add_u32 {vr(V_DV)}, v5, 8, v6")
    e(f"v_lshl_add_u32 v5, v1, 5, v3")
    e(f"v_lshlrev_b32 v5, 8, v5")
    e(f"v_xor_b32 v6, v3, v4")
    e(f"v_lshl_add_u32 {vr(V_DQ)}, v6, 4, v5")
    e(f"s_lshl_b32 {sr(S_WLDS)}, {sr(S_TMP)}, 10")
    e(f"s_lshl_b32 {sr(S_WQ)}, {sr(S_TMP)}, 13")
    e(f"s_add_u32 {sr(S_WQ)}, {sr(S_WQ)}, {QBASE}")
    e(f"s_lshr_b32 {sr(S_YOUNG)}, {sr(S_TMP)}, 2")
    if o.strided:
        e(f"s_lshl_b32 {sr(S_QOFF)}, s2, 16")
        e(f"s_lshl_b32 {sr(S_KOFF)}, s2, 17")
        e(f"s_mov_b32 {sr(S_QSRD+2)}, {1<<26}")
        e(f"s_mov_b32 {sr(S_KSRD+2)}, {1<<27}")
        e(f"s_mov_b32 {sr(S_VSRD+2)}, {1<<27}")
        e(f"s_mov_b32 {sr(S_ONR)}, {1<<26}")
        e(f"s_sub_u32 {sr(S_OOFF)}, {sr(S_QOFF)}, {65536*256}")
    else:
        e(f"s_lshl_b32 {sr(S_QOFF)}, s2, 18")
        e(f"s_lshl_b32 {sr(S_KOFF)}, s2, 19")
        e(f"s_add_u32 {sr(S_QSRD+2)}, {sr(S_QOFF)}, {1<<18}")
        e(f"s_add_u32 {sr(S_KSRD+2)}, {sr(S_KOFF)}, {1<<19}")
        e(f"s_mov_b32 {sr(S_VSRD+2)}, {sr(S_KSRD+2)}")
        e(f"s_mov_b32 {sr(S_ONR)}, {sr(S_QSRD+2)}")
        e(f"s_sub_u32 {sr(S_OOFF)}, {sr(S_QOFF)}, 65536")
    e(f"s_mov_b32 {sr(S_OSRD+2)}, 0")
    if o.l2only:
        e(f"s_and_b32 {sr(S_QOFF)}, s2, {o.l2only-1}")
        e(f"s_lshl_b32 {sr(S_KOFF)}, {sr(S_QOFF)}, 19")
        e(f"s_lshl_b32 {sr(S_QOFF)}, {sr(S_QOFF)}, 18")
        e(f"s_add_u32 {sr(S_QSRD+2)}, {sr(S_QOFF)}, {1<<18}")
        e(f"s_add_u32 {sr(S_KSRD+2)}, {sr(S_KOFF)}, {1<<19}")
        e(f"s_mov_b32 {sr(S_VSRD+2)}, {sr(S_KSRD+2)}")
    e(f"s_mov_b32 {sr(S_VOFF)}, {sr(S_KOFF)}")
    for srd in (S_QSRD, S_KSRD, S_VSRD, S_OSRD):
        e(f"s_mov_b32 {sr(srd+3)}, 0x20000")
    e("s_waitcnt lgkmcnt(0)")
    for srd, p in ((S_KSRD, 42), (S_QSRD, 40), (S_VSRD, 44), (S_OSRD, 46)):
        e(f"s_mov_b32 {sr(srd)}, s{p}")
        e(f"s_and_b32 {sr(srd+1)}, s{p+1}, 0xffff")
    for x in dma_kv('K', 0): e(x)
    for j in range(4):
        for x in dma_q(j): e(x)
    if o.probar: e("s_barrier")
    for j in range(4, 8):
        for x in dma_q(j): e(x)
    for x in dma_kv('K', 1): e(x)
    if o.probar: e("s_barrier")
    e(f"v_xor_b32 v9, v3, v4")
    e(f"v_lshlrev_b32 v9, 4, v9")
    e(f"v_lshl_add_u32 {vr(V_KA)}, v4, 8, v9")
    for s in range(1, 4):
        e(f"v_xor_b32 {vr(V_KA+s)}, {s*64}, {vr(V_KA)}")
    e(f"v_lshrrev_b32 v9, 2, v2")
    e(f"v_and_b32 v10, 7, v9")
    e(f"v_lshlrev_b32 v10, 1, v10")
    e(f"v_bfe_u32 v11, v2, 1, 1")
    e(f"v_xor_b32 v10, v10, v11")
    e(f"v_lshlrev_b32 v10, 4, v10")
    e(f"v_lshl_add_u32 v10, v9, 8, v10")
    e(f"v_and_b32 v11, 1, v2")
    e(f"v_lshl_add_u32 v10, v11, 3, v10")
    e(f"v_add_u32 {vr(V_VA)}, {VBASE}, v10")
    for t in range(1, 8):
        e(f"v_xor_b32 {vr(V_VA+t)}, {t*32}, {vr(V_VA)}")
    e(f"v_and_b32 v9, 7, v4")
    e(f"v_lshrrev_b32 v10, 1, v3")
    e(f"v_xor_b32 v9, v9, v10")
    e(f"v_lshlrev_b32 v9, 4, v9")
    e(f"v_lshl_add_u32 v9, v4, 8, v9")
    e(f"v_and_b32 v10, 1, v3")
    e(f"v_lshl_add_u32 v9, v10, 3, v9")
    e(f"v_add_u32 {vr(V_OW)}, {sr(S_WQ)}, v9")
    e(f"v_lshlrev_b32 v9, 4, v2")
    e(f"v_add_u32 {vr(V_OR)}, {sr(S_WQ)}, v9")
    e(f"s_mov_b32 {sr(S_C)}, {hex(f32bits(128**-0.5 * 1.4426950408889634))}")
    e(f"s_mov_b32 {sr(S_THR)}, {hex(f32bits(o.thr))}")
    e(f"s_mov_b32 {sr(S_HEAD)}, 0")
    for i in range(2):
        e(f"v_mov_b32 {vr(V_L+i)}, 1.0")
        e(f"v_mov_b32 {vr(V_BS+i)}, 0")
    npro = 0
    for b in range(-4, 0):
        for x in dma_kv('K', b + 6): e(x)
        npro += 1
        if b + VLA >= 0:
            for x in dma_kv('V', b + VLA): e(x)
            npro += 1
    if o.nodma:
        for bb in range(VLA, 6):
            for x in dma_kv('V', bb): e(x)
        e("s_waitcnt vmcnt(0)")
    if o.stamps:
        e(f"s_mov_b32 {sr(S_WSRD)}, s48")
        e(f"s_and_b32 {sr(S_WSRD+1)}, s49, 0xffff")
        e(f"s_mov_b32 {sr(S_WSRD+2)}, {1<<24}")
        e(f"s_mov_b32 {sr(S_WSRD+3)}, 0x20000")
        e(f"s_lshl_b32 {sr(S_STAMPOFF)}, s2, 3")
        e(f"s_add_u32 {sr(S_STAMPOFF)}, {sr(S_STAMPOFF)}, {sr(S_TMP)}")
        e(f"s_lshl_b32 {sr(S_STAMPOFF)}, {sr(S_STAMPOFF)}, 11")
        stamp_dump()
    if o.prio == 1:
        e(f"s_cmp_ge_u32 {sr(S_TMP)}, 4")
        e("s_cbranch_scc0 L_prio_done")
        e("s_setprio 1")
        g.lab("L_prio_done")

    def kreads(b):
        off = KBASE + SLOTS[b % 16] * BLK
        return [f"ds_read_b128 {vr(V_KF+4*(4*kb+s),4)}, {vr(V_KA+s)} offset:{off+4096*kb}" for kb in range(2) for s in range(4)]
    def qreads():
        r = []
        for s in range(4):
            a = V_Q + 4 * (4 + s)
            r.append([f"v_add_u32 {vr(a)}, {sr(S_WQ)}, {vr(V_KA+s)}",
                      f"ds_read_b128 {vr(V_Q+4*s,4)}, {vr(a)}"])
            r.append([f"ds_read_b128 {vr(a,4)}, {vr(a)} offset:4096"])
        return r
    def vreads(b):
        r = []
        for db in range(8):
            for w in range(2):
                off = SLOTS[b % 16] * BLK + w * 4096
                r.append(f"ds_read_b64_tr_b16 {vr(V_VF+4*db+2*w,2)}, {vr(V_VA+db)} offset:{off}")
        return r
    def qk(b):
        S = V_S + 16 * (b % 2)
        if o.mf32 in (1, 2):
            r = []
            for s in range(8):
                r += [f"v_mfma_f32_32x32x16_bf16 {vr(S,16)}, {vr(V_KF+4*s,4)}, {vr(V_Q+4*s,4)}, " + ("0" if s == 0 else vr(S, 16)), None]
            return r
        if o.nomfma: return [None] * 16
        order = [(qb, kb, s) for qb in range(2) for kb in range(2) for s in range(4)]
        if o.qkord == 1:
            order = [(qb, kb, s) for s in range(4) for qb in range(2) for kb in range(2)]
        if o.qkord == 2:
            order = [(qb, kb, s) for kb in range(2) for s in range(4) for qb in range(2)]
        r = []
        for qb, kb, s in order:
            D = S + 8 * qb + 4 * kb
            r.append(f"{M16} {vr(D,4)}, {vr(V_KF+4*(4*kb+s),4)}, {vr(V_Q+4*(4*qb+s),4)}, " + ("0" if s == 0 else vr(D, 4)))
        return r
    def pv(b):
        b %= 16
        P = V_P + 8 * (b % 2)
        r = []
        if o.mf32 in (1, 3):
            for u in range(2):
                for t in range(4):
                    O = V_O + 16 * t
                    cc = "0" if (b == 0 and u == 0) else vr(O, 16)
                    r += [f"v_mfma_f32_32x32x16_bf16 {vr(O,16)}, {vr(V_VF+4*(4*u+t),4)}, {vr(P+4*u,4)}, {cc}", None]
            return r
        if o.nomfma: return [None] * 16
        for db in range(8):
            for qb in range(2):
                O = V_O + 4 * (2 * db + qb)
                cc = "0" if b == 0 else vr(O, 4)
                r.append(f"{M16} {vr(O,4)}, {vr(V_VF+4*db,4)}, {vr(P+4*qb,4)}, {cc}")
        return r
    T = lambda k: vr(V_T + k % 8)
    def sm_parts(b, lupd):
        S = V_S + 16 * (b % 2)
        P = V_P + 8 * (b % 2)
        F = lambda k: f"v_fma_f32 {T(k)}, {vr(S+k)}, {sr(S_C)}, {vr(V_NMC + k // 8)}"
        E = lambda k: f"v_exp_f32 {T(k)}, {T(k)}"
        def A(k):
            q = k // 8
            if k % 8 == 0:
                if lupd == 'add': return [f"v_add_f32 {vr(V_L+q)}, {vr(V_L+q)}, {vr(V_BS+q)}"]
                if lupd == 'mov': return [f"v_mov_b32 {vr(V_L+q)}, {vr(V_BS+q)}"]
                return []
            if k % 8 == 1:
                return [f"v_add_f32 {vr(V_BS+q)}, {T(k-1)}, {T(k)}"]
            return [f"v_add_f32 {vr(V_BS+q)}, {vr(V_BS+q)}, {T(k)}"]
        C = lambda k: f"v_cvt_pk_bf16_f32 {vr(P+k//2)}, {T(k-1)}, {T(k)}"
        gaps = [[] for _ in range(32)]
        for k in range(16):
            gaps[2 * k].append(E(k))
            if k + 1 < 16: gaps[2 * k + 1].append(F(k + 1))
            gaps[2 * k + 1] += A(k)
            if k % 2 == 1: gaps[2 * k + 1].append(C(k))
        return [F(0)], gaps
    def sm_linear(b):
        pre, gaps = sm_parts(b, None)
        r = list(pre)
        for i, gp in enumerate(gaps):
            if i == 31: r.append("s_nop 0")
            r += gp
        return r
    def xreduce(dst, op, tmp):
        return [f"v_mov_b32 {vr(tmp)}, {vr(dst)}", "s_nop 1",
                f"v_permlane32_swap_b32 {vr(dst)}, {vr(tmp)}",
                f"{op} {vr(dst)}, {vr(dst)}, {vr(tmp)}",
                f"v_mov_b32 {vr(tmp)}, {vr(dst)}", "s_nop 1",
                f"v_permlane16_swap_b32 {vr(dst)}, {vr(tmp)}",
                f"{op} {vr(dst)}, {vr(dst)}, {vr(tmp)}"]
    def rowmax(b, q, dst, tmp):
        S = V_S + 16 * (b % 2) + 8 * q
        r = [f"v_max3_f32 {vr(dst)}, {vr(S)}, {vr(S+1)}, {vr(S+2)}",
             f"v_max3_f32 {vr(dst)}, {vr(dst)}, {vr(S+3)}, {vr(S+4)}",
             f"v_max3_f32 {vr(dst)}, {vr(dst)}, {vr(S+5)}, {vr(S+6)}",
             f"v_max_f32 {vr(dst)}, {vr(dst)}, {vr(S+7)}"]
        return r + xreduce(dst, "v_max_f32", tmp)
    def zipl(a, b):
        r = []
        for x, y in zip(a, b):
            if x.startswith("s_nop"):
                r.append("s_nop 0")
            else:
                r += [x, y]
        return r
    def minit():
        a = rowmax(0, 0, V_X0, V_X1) + [f"v_mul_f32 {vr(V_NMC)}, {sr(S_C)}, {vr(V_X0)}", f"v_sub_f32 {vr(V_NMC)}, 0, {vr(V_NMC)}"]
        b = rowmax(0, 1, V_X2, V_X3) + [f"v_mul_f32 {vr(V_NMC+1)}, {sr(S_C)}, {vr(V_X2)}", f"v_sub_f32 {vr(V_NMC+1)}, 0, {vr(V_NMC+1)}"]
        return zipl(a, b)
    def linv():
        a = [f"v_add_f32 {vr(V_L)}, {vr(V_L)}, {vr(V_BS)}"] + xreduce(V_L, "v_add_f32", V_X0) + [f"v_rcp_f32 {vr(V_INV)}, {vr(V_L)}"]
        b = [f"v_add_f32 {vr(V_L+1)}, {vr(V_L+1)}, {vr(V_BS+1)}"] + xreduce(V_L + 1, "v_add_f32", V_X2) + [f"v_rcp_f32 {vr(V_INV+1)}, {vr(V_L+1)}"]
        return zipl(a, b)
    def opack():
        r = []
        n = 0
        for db in range(8):
            x = (db & 3) << 5
            va = V_OW
            if x:
                va = V_X2
                r.append(f"v_xor_b32 {vr(V_X2)}, {x}, {vr(V_OW)}")
            for qb in range(2):
                pk = V_PK + 2 * (n % 2); n += 1
                base = V_O + 4 * (2 * db + qb)
                for i in range(4):
                    r.append(f"v_mul_f32 {vr(base+i)}, {vr(base+i)}, {vr(V_INV+qb)}")
                for i in range(2):
                    r.append(f"v_cvt_pk_bf16_f32 {vr(pk+i)}, {vr(base+2*i)}, {vr(base+2*i+1)}")
                r.append(f"ds_write_b64 {vr(va)}, {vr(pk,2)} offset:{128*(db>>2)+4096*qb}")
        return r

    def spread(gaps, groups, a, b, front=False, step=1):
        idx = list(range(a, b, step))
        for i, gr in enumerate(groups):
            gi = idx[i * len(idx) // max(len(groups), 1)]
            if front: gaps[gi] = list(gr) + gaps[gi]
            else: gaps[gi] += list(gr)
    single = lambda l: [[x] for x in l]

    comp = o.compute
    nafter = npro + (1 if o.stamps else 0)
    e(f"s_waitcnt vmcnt({nafter})")
    e("s_barrier")
    if comp:
        for gr in qreads():
            for x in gr: e(x)
        for x in kreads(0): e(x)
        e("s_waitcnt lgkmcnt(0)")
        for x in qk(0): e(x)
        for x in kreads(1): e(x)
        e("s_nop 3")
    if o.dbg:
        e("s_memrealtime s[56:57]")
        e(f"v_mov_b32 v252, 0")
    g.lines.append(".p2align 6")
    g.lab("L_head")
    fallbacks = []
    def prio_young(p):
        lab = f"L_pr{len(g.lines)}"
        return [f"s_cmp_eq_u32 {sr(S_YOUNG)}, 0", f"s_cbranch_scc1 {lab}", f"s_setprio {p}", f"{lab}:"]
    def emit(x):
        if x.endswith(":"): g.lab(x[:-1])
        else: e(x)
    for b in range(16):
        g.c(f"==== iter {b} phase A")
        if b == 0: stamp()
        pre, gaps = sm_parts(b, None if b == 0 else ('mov' if b == 1 else 'add'))
        if o.novalu and b >= 2:
            pre, gaps = [], [[] for _ in range(32)]
        if b == 0:
            lin = pre + [x for gp in gaps for x in gp]
            pre = []
            gaps = [[] for _ in range(32)]
            ini = linv() + minit()
            spread(gaps, single(ini), 0, 10)
            lin.insert(len(lin) - 2, "s_nop 0")
            spread(gaps, single(lin), 10, 32)
        nr = o.rdgaps
        vrd = vreads(b - 1); krd = kreads(b + 2)
        if o.nord and b > 1:
            vrd = []; krd = []
        if o.halfrd:
            vrd = vrd[:8] if b % 2 else vrd[8:]
            krd = krd[:4] if b % 2 else krd[4:]
        if o.rdmode == 0:
            spread(gaps, single(vrd), 0, nr)
        elif o.rdmode == 1:
            spread(gaps, [vrd[i:i+2] for i in range(0, len(vrd), 2)], 0, nr, step=2)
        elif o.rdmode == 2:
            spread(gaps, single(vrd), 0, nr, front=True)
        elif o.rdmode == 3:
            spread(gaps, [vrd[i:i+4] for i in range(0, len(vrd), 4)], 0, nr, step=2)
        for j in range(8):
            if o.store and st_iter[j] == b:
                spread(gaps, [o_read(j)], nr, nr + 1)
        if b == 1:
            spread(gaps, single(opack()), 2, 16)
        if o.rdmode == 1:
            spread(gaps, single(krd), 16, 16 + nr, step=2)
        elif o.rdmode == 2:
            spread(gaps, single(krd), 16, 16 + nr, front=True)
        elif o.rdmode == 3:
            spread(gaps, [krd[i:i+2] for i in range(0, len(krd), 2)], 16, 16 + nr, step=2)
        else:
            spread(gaps, single(krd), 16, 16 + nr)
        if b == 14 and not o.nodma:
            spread(gaps, qreads(), 16, 16 + nr)
        dm = []
        for k, x in ops[b]:
            cap = [f"s_waitcnt vmcnt({o.win-1})"] if o.win else []
            if k in ('K', 'V'): dm.append(cap + dma_kv(k, x))
            elif k == 'ST': dm.append(cap + o_store(x))
            elif k == 'Q': dm.append(cap + dma_q(x))
        if o.nodma: dm = []
        spread(gaps, dm, 16 + o.dm0, 16 + o.dm1)
        if o.prio == 2:
            gaps[o.pr_lo] = gaps[o.pr_lo] + prio_young(0)
        if o.stagger:
            e(f"s_cmp_eq_u32 {sr(S_YOUNG)}, {0 if o.stagger == 1 else 1}")
            e(f"s_cbranch_scc1 L_sa{b}")
            e(f"s_waitcnt vmcnt({vm_wait(b)}) lgkmcnt(0)")
            e("s_barrier")
            g.lab(f"L_sa{b}")
        e("s_waitcnt lgkmcnt(0)")
        if o.tst and b > 0:
            e(f"v_writelane_b32 v252, s56, {b-1}")
            e(f"v_writelane_b32 v252, s58, {32+b-1}")
        if comp:
            for x in pre: e(x)
            mf = qk(b + 1)
            for i in range(16):
                e(mf[i])
                for x in gaps[i]: emit(x)
        g.c(f"==== iter {b} phase B")
        if b % o.stampmod == 0: stamp()
        if o.prio == 2:
            for x in prio_young(1): emit(x)
        if o.stagger:
            e(f"s_cmp_lg_u32 {sr(S_YOUNG)}, {0 if o.stagger == 1 else 1}")
            e(f"s_cbranch_scc1 L_sb{b}")
        e(f"s_waitcnt vmcnt({vm_wait(b)}) lgkmcnt(0)")
        if not o.nobar: e("s_barrier")
        if o.stagger:
            g.lab(f"L_sb{b}")
            e("s_waitcnt lgkmcnt(0)")
        if o.tst:
            e("s_memtime s[56:57]")
            e("s_memrealtime s[58:59]")
        if b % o.stampmod == 0: stamp()
        if comp:
            mf = pv(b - 1)
            for i in range(16):
                e(mf[i])
                for x in gaps[16 + i]: emit(x)
            if b >= 1 and not o.nochk:
                e(f"v_add_f32 {vr(V_X0)}, {vr(V_BS)}, {vr(V_BS+1)}")
                e(f"v_cmp_nge_f32 vcc, {sr(S_THR)}, {vr(V_X0)}")
                e(f"s_cbranch_vccnz L_fb{b}")
                g.lab(f"L_ret{b}")
                fallbacks.append(b)
        else:
            for gr in dm:
                for x in gr: e(x)
    stamp()
    stamp_dump()
    if o.stamps:
        e(f"s_add_u32 {sr(S_STAMPOFF)}, {sr(S_STAMPOFF)}, 256")
    if o.dbg:
        e("s_memrealtime s[58:59]")
        e("s_waitcnt lgkmcnt(0)")
        e("s_sub_u32 s58, s58, s52")
        e(f"s_add_u32 m0, {sr(S_HEAD)}, 4")
        e("s_nop 3")
        e(f"v_writelane_b32 v252, s58, m0")
    e(f"s_add_u32 {sr(S_HEAD)}, {sr(S_HEAD)}, 1")
    e(f"s_cmp_lt_u32 {sr(S_HEAD)}, 4")
    e("s_cbranch_scc1 L_head")
    g.c("==== tail")
    if comp:
        for x in vreads(15): e(x)
        for x in linv(): e(x)
        e("s_waitcnt lgkmcnt(0)")
        for x in pv(15): e(x)
        for x in opack(): e(x)
    if o.store:
        e(f"v_xor_b32 {vr(V_X4)}, 64, {vr(V_DQ)}")
        for j in range(8):
            pk = V_KF + 4 * j
            e(f"ds_read_b128 {vr(pk,4)}, {vr(V_OR)} offset:{j*1024}")
        for j in range(8):
            pk = V_KF + 4 * j
            e(f"s_waitcnt lgkmcnt({7-j})")
            if j == 4:
                e(f"s_add_u32 {sr(S_OOFF)}, {sr(S_OOFF)}, 4096")
            e(f"buffer_store_dwordx4 {vr(pk,4)}, {vr(V_X4 if j & 1 else V_DQ)}, {sr(S_OSRD,4)}, {sr(S_OOFF)} offen offset:{1024*(j%4)}{stflags}")
    if o.stamps:
        e("s_waitcnt vmcnt(0)")
        stampn[0] = 0
        stamp()
        stamp_dump()
    if o.dbg:
        e(f"s_cmp_lg_u32 {sr(S_TMP)}, 7")
        e("s_cbranch_scc1 L_end")
        e("s_waitcnt vmcnt(0)")
        e("s_memrealtime s[58:59]")
        e("s_memtime s[60:61]")
        e("s_waitcnt lgkmcnt(0)")
        e("s_mov_b32 s32, s48")
        e("s_and_b32 s33, s49, 0xffff")
        e("s_mov_b32 s34, 64")
        e("s_mov_b32 s35, 0x20000")
        e("s_not_b32 s62, s52")
        e("v_writelane_b32 v252, s62, 0")
        e("v_writelane_b32 v252, s58, 1")
        e("s_not_b32 s62, s58")
        e("v_writelane_b32 v252, s62, 2")
        e("s_sub_u32 s62, s56, s52")
        e("v_writelane_b32 v252, s62, 3")
        e("s_sub_u32 s62, s58, s52")
        e("s_lshl_b32 s62, s62, 16")
        e("s_sub_u32 s63, s60, s50")
        e("s_lshr_b32 s63, s63, 3")
        e("s_or_b32 s62, s62, s63")
        e("s_getreg_b32 s63, hwreg(HW_REG_XCC_ID)")
        e("s_and_b32 s63, s63, 7")
        e("s_add_u32 m0, s63, 8")
        e("s_nop 3")
        e("v_writelane_b32 v252, s62, m0")
        e(f"v_mbcnt_lo_u32_b32 {vr(V_X1)}, -1, 0")
        e(f"v_mbcnt_hi_u32_b32 {vr(V_X1)}, -1, {vr(V_X1)}")
        e(f"v_lshlrev_b32 {vr(V_X1)}, 2, {vr(V_X1)}")
        e(f"buffer_atomic_umax v252, {vr(V_X1)}, s[32:35], 0 offen")
    g.lab("L_end")
    e("s_endpgm")
    for b in fallbacks:
        g.lab(f"L_fb{b}")
        e("s_nop 15")
        for q in range(2):
            for x in rowmax(b, q, V_X0, V_X1): e(x)
            e(f"v_mul_f32 {vr(V_X0)}, {sr(S_C)}, {vr(V_X0)}")
            e(f"v_sub_f32 {vr(V_X0)}, 0, {vr(V_X0)}")
            e(f"v_min_f32 {vr(V_X0)}, {vr(V_X0)}, {vr(V_NMC+q)}")
            e(f"v_sub_f32 {vr(V_X1)}, {vr(V_X0)}, {vr(V_NMC+q)}")
            e(f"v_exp_f32 {vr(V_X1)}, {vr(V_X1)}")
            e(f"v_mov_b32 {vr(V_NMC+q)}, {vr(V_X0)}")
            e(f"v_mul_f32 {vr(V_L+q)}, {vr(V_L+q)}, {vr(V_X1)}")
            for db in range(8):
                for i in range(4):
                    r = V_O + 4 * (2 * db + q) + i
                    e(f"v_mul_f32 {vr(r)}, {vr(r)}, {vr(V_X1)}")
        for x in sm_linear(b): e(x)
        e("s_nop 1")
        e(f"s_branch L_ret{b}")

    nv = 256 if (o.stamps or o.dbg) else NVGPR
    out = HEADER
    out += f"; @launch grid=(256,1,1) block=(512,1,1) lds=163840\n"
    out += '.amdgcn_target "amdgcn-amd-amdhsa--gfx950"\n.text\n'
    out += f".globl {NAME}_kernel\n.p2align 8\n.type {NAME}_kernel,@function\n{NAME}_kernel:\n"
    out += "\n".join(g.lines) + "\n"
    out += f""".section .rodata,"a"
.p2align 6
.amdhsa_kernel {NAME}_kernel
  .amdhsa_next_free_vgpr {nv}
  .amdhsa_next_free_sgpr {102 if (o.stamps or o.dbg) else 48}
  .amdhsa_accum_offset {nv}
  .amdhsa_group_segment_fixed_size 0
  .amdhsa_kernarg_size 48
  .amdhsa_user_sgpr_count 2
  .amdhsa_user_sgpr_kernarg_segment_ptr 1
  .amdhsa_system_sgpr_workgroup_id_x 1
.end_amdhsa_kernel
"""
    return out

def main():
    ap = argparse.ArgumentParser()
    il = lambda s: [int(x) for x in s.split(",")]
    ap.add_argument("-o", default="out.s")
    ap.add_argument("--nocompute", dest="compute", action="store_false")
    ap.add_argument("--nostore", dest="store", action="store_false")
    ap.add_argument("--strided", action="store_true")
    ap.add_argument("--ldflags", default="nt")
    ap.add_argument("--qflags", default="")
    ap.add_argument("--stflags", default="")
    ap.add_argument("--thr", type=float, default=65536.0)
    ap.add_argument("--rdgaps", type=int, default=12)
    ap.add_argument("--kstep2", action="store_true")
    ap.add_argument("--dm0", type=int, default=0)
    ap.add_argument("--dm1", type=int, default=14)
    ap.add_argument("--st_iter", type=il, default=[2, 3, 4, 5, 6, 7, 8, 9])
    ap.add_argument("--q_iter", type=il, default=[3, 4, 5, 6, 7, 8, 9, 10])
    ap.add_argument("--prio", type=int, default=0)
    ap.add_argument("--pr_lo", type=int, default=4)
    ap.add_argument("--noprobar", dest="probar", action="store_false")
    ap.add_argument("--stamps", action="store_true")
    ap.add_argument("--stampmod", type=int, default=2)
    ap.add_argument("--l2only", type=int, default=0)
    ap.add_argument("--novalu", action="store_true")
    ap.add_argument("--dbg", action="store_true")
    ap.add_argument("--win", type=int, default=0)
    ap.add_argument("--xfirst", action="store_true")
    ap.add_argument("--stagger", type=int, default=0)
    ap.add_argument("--rdmode", type=int, default=0)
    ap.add_argument("--mf32", type=int, default=0)
    ap.add_argument("--nomfma", action="store_true")
    ap.add_argument("--qkord", type=int, default=0)
    ap.add_argument("--nodma", action="store_true")
    ap.add_argument("--nobar", action="store_true")
    ap.add_argument("--nord", action="store_true")
    ap.add_argument("--nochk", action="store_true")
    ap.add_argument("--tst", action="store_true")
    ap.add_argument("--halfrd", action="store_true")
    o = ap.parse_args()
    open(o.o, "w").write(build(o))

if __name__ == "__main__":
    main()
```

```python
import sys, struct, argparse

def f32bits(x):
    return struct.unpack('<I', struct.pack('<f', x))[0]

NAME = "standalone__mha_softmax__near_ridge"

HEADER = """; Kernarg layout for this problem (48 bytes, ptrs only, base s[0:1]):
"""

V_O, V_Q, V_S, V_P, V_KF, V_VF, V_KA, V_VA, V_T, V_PK = 0, 64, 96, 128, 144, 176, 208, 212, 220, 228
V_DK, V_DV, V_DQ = 232, 233, 234
V_L, V_BS, V_NMC, V_INV = 236, 238, 240, 242
V_X0, V_X1, V_X2, V_X3, V_OW, V_OR, V_X4 = 244, 245, 246, 247, 248, 249, 235
NVGPR = 252

S_QSRD, S_KSRD, S_VSRD, S_OSRD = 4, 8, 12, 16
S_QOFF, S_KOFF, S_VOFF, S_OOFF = 20, 21, 22, 23
S_HEAD, S_WLDS, S_C, S_THR = 24, 25, 26, 27
S_TMP, S_WQ, S_ONR, S_YOUNG = 28, 29, 30, 31
S_WSRD = 32
S_STAMPOFF = 38

BLK = 8192
KBASE, VBASE, QBASE = 0, 49152, 98304
SLOTS = [0, 1, 2, 3, 4, 5, 0, 1, 2, 3, 4, 0, 1, 2, 3, 4]
M16 = "v_mfma_f32_16x16x32_bf16"

def vr(b, n=1):
    return f"v{b}" if n == 1 else f"v[{b}:{b+n-1}]"
def sr(b, n=1):
    return f"s{b}" if n == 1 else f"s[{b}:{b+n-1}]"

class Gen:
    def __init__(self):
        self.lines = []
    def e(self, s):
        if s is None: return
        self.lines.append("    " + s)
    def lab(self, s):
        self.lines.append(s + ":")
    def c(self, s):
        self.lines.append("    ; " + s)

def build(o):
    g = Gen()
    e = g.e
    ldflags = (" " + o.ldflags) if o.ldflags else ""
    qflags = (" " + o.qflags) if o.qflags else ldflags
    stflags = (" " + o.stflags) if o.stflags else ""

    def dma_kv(kind, b):
        b %= 16
        srd = S_KSRD if kind == 'K' else S_VSRD
        soff = S_KOFF if kind == 'K' else S_VOFF
        v0 = V_DK if kind == 'K' else V_DV
        base = (KBASE if kind == 'K' else VBASE) + SLOTS[b] * BLK
        inc = BLK
        if o.strided and b == 15:
            inc += 255 * 131072
        return [f"s_add_u32 m0, {sr(S_WLDS)}, {base}",
                "s_nop 0",
                f"buffer_load_dwordx4 {vr(v0)}, {sr(srd,4)}, {sr(soff)} offen{ldflags} lds",
                f"s_add_u32 {sr(soff)}, {sr(soff)}, {inc}"]
    def dma_q(j):
        inc = 1024
        if j == 7:
            inc += 65536 - 8192
            if o.strided:
                inc += 255 * 65536
        r = [f"s_add_u32 m0, {sr(S_WQ)}, {j*1024}",
             f"v_xor_b32 {vr(V_X3)}, {(j&3)<<6}, {vr(V_DQ)}",
             f"buffer_load_dwordx4 {vr(V_X3)}, {sr(S_QSRD,4)}, {sr(S_QOFF)} offen{qflags} lds",
             f"s_add_u32 {sr(S_QOFF)}, {sr(S_QOFF)}, {inc}"]
        return r
    def o_read(j):
        return [f"ds_read_b128 {vr(V_PK,4)}, {vr(V_OR)} offset:{j*1024}"]
    def o_store(j):
        inc = 1024
        if j == 7:
            inc += 65536 - 8192
            if o.strided:
                inc += 255 * 65536
        r = []
        va = V_DQ
        if j & 1:
            r.append(f"v_xor_b32 {vr(V_X4)}, 64, {vr(V_DQ)}")
            va = V_X4
        r += [f"buffer_store_dwordx4 {vr(V_PK,4)}, {vr(va)}, {sr(S_OSRD,4)}, {sr(S_OOFF)} offen{stflags}",
              f"s_add_u32 {sr(S_OOFF)}, {sr(S_OOFF)}, {inc}"]
        if j == 7:
            r.append(f"s_mov_b32 {sr(S_OSRD+2)}, {sr(S_ONR)}")
        return r

    stampn = [0]
    def stamp():
        if not o.stamps or o.tst:
            return
        i = stampn[0]
        if 56 + 2 * i + 1 > 101:
            return
        e(f"s_memtime s[{56+2*i}:{57+2*i}]")
        stampn[0] += 1
    def stamp_dump():
        if not o.stamps:
            return
        e(f"s_memrealtime s[54:55]")
        e("s_waitcnt lgkmcnt(0)")
        if o.tst:
            e(f"v_writelane_b32 v252, s56, 15")
            e(f"v_writelane_b32 v252, s58, 47")
        for i in range(stampn[0]):
            e(f"v_writelane_b32 v252, s{56+2*i}, {i}")
        e(f"v_writelane_b32 v252, s54, 31")
        e(f"v_writelane_b32 v252, s50, 30")
        e(f"v_writelane_b32 v252, s52, 29")
        e(f"s_getreg_b32 s55, hwreg(HW_REG_XCC_ID)")
        e(f"v_writelane_b32 v252, s55, 28")
        e(f"v_mbcnt_lo_u32_b32 v253, -1, 0")
        e(f"v_mbcnt_hi_u32_b32 v253, -1, v253")
        e(f"v_lshlrev_b32 v253, 2, v253")
        e(f"buffer_store_dword v252, v253, {sr(S_WSRD,4)}, {sr(S_STAMPOFF)} offen")

    st_iter = o.st_iter
    q_iter = o.q_iter
    VLA = 3 if o.stagger else 4
    ops = {b: [('K', b + 6), ('V', b + VLA)] for b in range(16)}
    for j in range(8):
        if o.store:
            ops[st_iter[j]].append(('ST', j))
    for j in range(8):
        assert q_iter[j] >= st_iter[j]
        ops[q_iter[j]].append(('Q', j))
    if o.xfirst:
        for b in range(16):
            ops[b] = ops[b][2:] + ops[b][:2]
    if o.stamps:
        ops[15].append(('STAMP', 0))
    for b in range(13 if o.xfirst else 12, 16):
        assert all(k in ('K', 'V', 'STAMP') for k, _ in ops[b])
    def vm_wait(b):
        seq = []
        for it in range(b - 16, b):
            for k, x in ops[it % 16]:
                seq.append((it, k, x))
        need = [i for i, (it, k, x) in enumerate(seq) if (it == b - 4 and k == 'K') or (it == b - VLA and k == 'V')]
        if b == 14:
            need += [i for i, (it, k, x) in enumerate(seq) if k == 'Q' and it >= 0]
        return len(seq) - 1 - max(need)

    e(f"s_cmp_ge_u32 s2, 256")
    e("s_cbranch_scc1 L_end")
    e("s_load_dwordx4 s[40:43], s[0:1], 0")
    e("s_load_dwordx4 s[44:47], s[0:1], 16")
    if o.dbg:
        e("s_load_dwordx2 s[48:49], s[0:1], 32")
        e("s_memtime s[50:51]")
        e("s_memrealtime s[52:53]")
    if o.stamps:
        e("s_load_dwordx2 s[48:49], s[0:1], 40")
        e("s_memtime s[50:51]")
        e("s_memrealtime s[52:53]")
    e(f"v_lshrrev_b32 v1, 6, v0")
    e(f"v_and_b32 v2, 63, v0")
    e(f"v_readfirstlane_b32 {sr(S_TMP)}, v1")
    e(f"v_lshrrev_b32 v3, 4, v2")
    e(f"v_and_b32 v4, 15, v2")
    e(f"v_lshl_add_u32 v5, v1, 2, v3")
    e(f"v_and_b32 v6, 15, v5")
    e(f"v_xor_b32 v6, v6, v4")
    e(f"v_lshlrev_b32 v6, 4, v6")
    e(f"v_lshl_add_u32 {vr(V_DK)}, v5, 8, v6")
    e(f"v_and_b32 v6, 7, v5")
    e(f"v_lshlrev_b32 v6, 1, v6")
    e(f"v_xor_b32 v6, v6, v4")
    e(f"v_lshlrev_b32 v6, 4, v6")
    e(f"v_lshl_add_u32 {vr(V_DV)}, v5, 8, v6")
    e(f"v_lshl_add_u32 v5, v1, 5, v3")
    e(f"v_lshlrev_b32 v5, 8, v5")
    e(f"v_xor_b32 v6, v3, v4")
    e(f"v_lshl_add_u32 {vr(V_DQ)}, v6, 4, v5")
    e(f"s_lshl_b32 {sr(S_WLDS)}, {sr(S_TMP)}, 10")
    e(f"s_lshl_b32 {sr(S_WQ)}, {sr(S_TMP)}, 13")
    e(f"s_add_u32 {sr(S_WQ)}, {sr(S_WQ)}, {QBASE}")
    e(f"s_lshr_b32 {sr(S_YOUNG)}, {sr(S_TMP)}, 2")
    if o.strided:
        e(f"s_lshl_b32 {sr(S_QOFF)}, s2, 16")
        e(f"s_lshl_b32 {sr(S_KOFF)}, s2, 17")
        e(f"s_mov_b32 {sr(S_QSRD+2)}, {1<<26}")
        e(f"s_mov_b32 {sr(S_KSRD+2)}, {1<<27}")
        e(f"s_mov_b32 {sr(S_VSRD+2)}, {1<<27}")
        e(f"s_mov_b32 {sr(S_ONR)}, {1<<26}")
        e(f"s_sub_u32 {sr(S_OOFF)}, {sr(S_QOFF)}, {65536*256}")
    else:
        e(f"s_lshl_b32 {sr(S_QOFF)}, s2, 18")
        e(f"s_lshl_b32 {sr(S_KOFF)}, s2, 19")
        e(f"s_add_u32 {sr(S_QSRD+2)}, {sr(S_QOFF)}, {1<<18}")
        e(f"s_add_u32 {sr(S_KSRD+2)}, {sr(S_KOFF)}, {1<<19}")
        e(f"s_mov_b32 {sr(S_VSRD+2)}, {sr(S_KSRD+2)}")
        e(f"s_mov_b32 {sr(S_ONR)}, {sr(S_QSRD+2)}")
        e(f"s_sub_u32 {sr(S_OOFF)}, {sr(S_QOFF)}, 65536")
    e(f"s_mov_b32 {sr(S_OSRD+2)}, 0")
    if o.l2only:
        e(f"s_and_b32 {sr(S_QOFF)}, s2, {o.l2only-1}")
        e(f"s_lshl_b32 {sr(S_KOFF)}, {sr(S_QOFF)}, 19")
        e(f"s_lshl_b32 {sr(S_QOFF)}, {sr(S_QOFF)}, 18")
        e(f"s_add_u32 {sr(S_QSRD+2)}, {sr(S_QOFF)}, {1<<18}")
        e(f"s_add_u32 {sr(S_KSRD+2)}, {sr(S_KOFF)}, {1<<19}")
        e(f"s_mov_b32 {sr(S_VSRD+2)}, {sr(S_KSRD+2)}")
    e(f"s_mov_b32 {sr(S_VOFF)}, {sr(S_KOFF)}")
    for srd in (S_QSRD, S_KSRD, S_VSRD, S_OSRD):
        e(f"s_mov_b32 {sr(srd+3)}, 0x20000")
    e("s_waitcnt lgkmcnt(0)")
    for srd, p in ((S_KSRD, 42), (S_QSRD, 40), (S_VSRD, 44), (S_OSRD, 46)):
        e(f"s_mov_b32 {sr(srd)}, s{p}")
        e(f"s_and_b32 {sr(srd+1)}, s{p+1}, 0xffff")
    for x in dma_kv('K', 0): e(x)
    for j in range(4):
        for x in dma_q(j): e(x)
    if o.probar: e("s_barrier")
    for j in range(4, 8):
        for x in dma_q(j): e(x)
    for x in dma_kv('K', 1): e(x)
    if o.probar: e("s_barrier")
    e(f"v_xor_b32 v9, v3, v4")
    e(f"v_lshlrev_b32 v9, 4, v9")
    e(f"v_lshl_add_u32 {vr(V_KA)}, v4, 8, v9")
    for s in range(1, 4):
        e(f"v_xor_b32 {vr(V_KA+s)}, {s*64}, {vr(V_KA)}")
    e(f"v_lshrrev_b32 v9, 2, v2")
    e(f"v_and_b32 v10, 7, v9")
    e(f"v_lshlrev_b32 v10, 1, v10")
    e(f"v_bfe_u32 v11, v2, 1, 1")
    e(f"v_xor_b32 v10, v10, v11")
    e(f"v_lshlrev_b32 v10, 4, v10")
    e(f"v_lshl_add_u32 v10, v9, 8, v10")
    e(f"v_and_b32 v11, 1, v2")
    e(f"v_lshl_add_u32 v10, v11, 3, v10")
    e(f"v_add_u32 {vr(V_VA)}, {VBASE}, v10")
    for t in range(1, 8):
        e(f"v_xor_b32 {vr(V_VA+t)}, {t*32}, {vr(V_VA)}")
    e(f"v_and_b32 v9, 7, v4")
    e(f"v_lshrrev_b32 v10, 1, v3")
    e(f"v_xor_b32 v9, v9, v10")
    e(f"v_lshlrev_b32 v9, 4, v9")
    e(f"v_lshl_add_u32 v9, v4, 8, v9")
    e(f"v_and_b32 v10, 1, v3")
    e(f"v_lshl_add_u32 v9, v10, 3, v9")
    e(f"v_add_u32 {vr(V_OW)}, {sr(S_WQ)}, v9")
    e(f"v_lshlrev_b32 v9, 4, v2")
    e(f"v_add_u32 {vr(V_OR)}, {sr(S_WQ)}, v9")
    e(f"s_mov_b32 {sr(S_C)}, {hex(f32bits(128**-0.5 * 1.4426950408889634))}")
    e(f"s_mov_b32 {sr(S_THR)}, {hex(f32bits(o.thr))}")
    e(f"s_mov_b32 {sr(S_HEAD)}, 0")
    for i in range(2):
        e(f"v_mov_b32 {vr(V_L+i)}, 1.0")
        e(f"v_mov_b32 {vr(V_BS+i)}, 0")
    npro = 0
    for b in range(-4, 0):
        for x in dma_kv('K', b + 6): e(x)
        npro += 1
        if b + VLA >= 0:
            for x in dma_kv('V', b + VLA): e(x)
            npro += 1
    if o.nodma:
        for bb in range(VLA, 6):
            for x in dma_kv('V', bb): e(x)
        e("s_waitcnt vmcnt(0)")
    if o.stamps:
        e(f"s_mov_b32 {sr(S_WSRD)}, s48")
        e(f"s_and_b32 {sr(S_WSRD+1)}, s49, 0xffff")
        e(f"s_mov_b32 {sr(S_WSRD+2)}, {1<<24}")
        e(f"s_mov_b32 {sr(S_WSRD+3)}, 0x20000")
        e(f"s_lshl_b32 {sr(S_STAMPOFF)}, s2, 3")
        e(f"s_add_u32 {sr(S_STAMPOFF)}, {sr(S_STAMPOFF)}, {sr(S_TMP)}")
        e(f"s_lshl_b32 {sr(S_STAMPOFF)}, {sr(S_STAMPOFF)}, 11")
        stamp_dump()
    if o.prio == 1:
        e(f"s_cmp_ge_u32 {sr(S_TMP)}, 4")
        e("s_cbranch_scc0 L_prio_done")
        e("s_setprio 1")
        g.lab("L_prio_done")

    def kreads(b):
        off = KBASE + SLOTS[b % 16] * BLK
        return [f"ds_read_b128 {vr(V_KF+4*(4*kb+s),4)}, {vr(V_KA+s)} offset:{off+4096*kb}" for kb in range(2) for s in range(4)]
    def qreads():
        r = []
        for s in range(4):
            a = V_Q + 4 * (4 + s)
            r.append([f"v_add_u32 {vr(a)}, {sr(S_WQ)}, {vr(V_KA+s)}",
                      f"ds_read_b128 {vr(V_Q+4*s,4)}, {vr(a)}"])
            r.append([f"ds_read_b128 {vr(a,4)}, {vr(a)} offset:4096"])
        return r
    def vreads(b):
        r = []
        for db in range(8):
            for w in range(2):
                off = SLOTS[b % 16] * BLK + w * 4096
                r.append(f"ds_read_b64_tr_b16 {vr(V_VF+4*db+2*w,2)}, {vr(V_VA+db)} offset:{off}")
        return r
    def qk(b):
        S = V_S + 16 * (b % 2)
        if o.mf32 in (1, 2):
            r = []
            for s in range(8):
                r += [f"v_mfma_f32_32x32x16_bf16 {vr(S,16)}, {vr(V_KF+4*s,4)}, {vr(V_Q+4*s,4)}, " + ("0" if s == 0 else vr(S, 16)), None]
            return r
        if o.nomfma: return [None] * 16
        order = [(qb, kb, s) for qb in range(2) for kb in range(2) for s in range(4)]
        if o.qkord == 1:
            order = [(qb, kb, s) for s in range(4) for qb in range(2) for kb in range(2)]
        if o.qkord == 2:
            order = [(qb, kb, s) for kb in range(2) for s in range(4) for qb in range(2)]
        r = []
        for qb, kb, s in order:
            D = S + 8 * qb + 4 * kb
            r.append(f"{M16} {vr(D,4)}, {vr(V_KF+4*(4*kb+s),4)}, {vr(V_Q+4*(4*qb+s),4)}, " + ("0" if s == 0 else vr(D, 4)))
        return r
    def pv(b):
        b %= 16
        P = V_P + 8 * (b % 2)
        r = []
        if o.mf32 in (1, 3):
            for u in range(2):
                for t in range(4):
                    O = V_O + 16 * t
                    cc = "0" if (b == 0 and u == 0) else vr(O, 16)
                    r += [f"v_mfma_f32_32x32x16_bf16 {vr(O,16)}, {vr(V_VF+4*(4*u+t),4)}, {vr(P+4*u,4)}, {cc}", None]
            return r
        if o.nomfma: return [None] * 16
        for db in range(8):
            for qb in range(2):
                O = V_O + 4 * (2 * db + qb)
                cc = "0" if b == 0 else vr(O, 4)
                r.append(f"{M16} {vr(O,4)}, {vr(V_VF+4*db,4)}, {vr(P+4*qb,4)}, {cc}")
        return r
    T = lambda k: vr(V_T + k % 8)
    def sm_parts(b, lupd):
        S = V_S + 16 * (b % 2)
        P = V_P + 8 * (b % 2)
        F = lambda k: f"v_fma_f32 {T(k)}, {vr(S+k)}, {sr(S_C)}, {vr(V_NMC + k // 8)}"
        E = lambda k: f"v_exp_f32 {T(k)}, {T(k)}"
        def A(k):
            q = k // 8
            if k % 8 == 0:
                if lupd == 'add': return [f"v_add_f32 {vr(V_L+q)}, {vr(V_L+q)}, {vr(V_BS+q)}"]
                if lupd == 'mov': return [f"v_mov_b32 {vr(V_L+q)}, {vr(V_BS+q)}"]
                return []
            if k % 8 == 1:
                return [f"v_add_f32 {vr(V_BS+q)}, {T(k-1)}, {T(k)}"]
            return [f"v_add_f32 {vr(V_BS+q)}, {vr(V_BS+q)}, {T(k)}"]
        C = lambda k: f"v_cvt_pk_bf16_f32 {vr(P+k//2)}, {T(k-1)}, {T(k)}"
        gaps = [[] for _ in range(32)]
        for k in range(16):
            gaps[2 * k].append(E(k))
            if k + 1 < 16: gaps[2 * k + 1].append(F(k + 1))
            gaps[2 * k + 1] += A(k)
            if k % 2 == 1: gaps[2 * k + 1].append(C(k))
        return [F(0)], gaps
    def sm_linear(b):
        pre, gaps = sm_parts(b, None)
        r = list(pre)
        for i, gp in enumerate(gaps):
            if i == 31: r.append("s_nop 0")
            r += gp
        return r
    def xreduce(dst, op, tmp):
        return [f"v_mov_b32 {vr(tmp)}, {vr(dst)}", "s_nop 1",
                f"v_permlane32_swap_b32 {vr(dst)}, {vr(tmp)}",
                f"{op} {vr(dst)}, {vr(dst)}, {vr(tmp)}",
                f"v_mov_b32 {vr(tmp)}, {vr(dst)}", "s_nop 1",
                f"v_permlane16_swap_b32 {vr(dst)}, {vr(tmp)}",
                f"{op} {vr(dst)}, {vr(dst)}, {vr(tmp)}"]
    def rowmax(b, q, dst, tmp):
        S = V_S + 16 * (b % 2) + 8 * q
        r = [f"v_max3_f32 {vr(dst)}, {vr(S)}, {vr(S+1)}, {vr(S+2)}",
             f"v_max3_f32 {vr(dst)}, {vr(dst)}, {vr(S+3)}, {vr(S+4)}",
             f"v_max3_f32 {vr(dst)}, {vr(dst)}, {vr(S+5)}, {vr(S+6)}",
             f"v_max_f32 {vr(dst)}, {vr(dst)}, {vr(S+7)}"]
        return r + xreduce(dst, "v_max_f32", tmp)
    def zipl(a, b):
        r = []
        for x, y in zip(a, b):
            if x.startswith("s_nop"):
                r.append("s_nop 0")
            else:
                r += [x, y]
        return r
    def minit():
        a = rowmax(0, 0, V_X0, V_X1) + [f"v_mul_f32 {vr(V_NMC)}, {sr(S_C)}, {vr(V_X0)}", f"v_sub_f32 {vr(V_NMC)}, 0, {vr(V_NMC)}"]
        b = rowmax(0, 1, V_X2, V_X3) + [f"v_mul_f32 {vr(V_NMC+1)}, {sr(S_C)}, {vr(V_X2)}", f"v_sub_f32 {vr(V_NMC+1)}, 0, {vr(V_NMC+1)}"]
        return zipl(a, b)
    def linv():
        a = [f"v_add_f32 {vr(V_L)}, {vr(V_L)}, {vr(V_BS)}"] + xreduce(V_L, "v_add_f32", V_X0) + [f"v_rcp_f32 {vr(V_INV)}, {vr(V_L)}"]
        b = [f"v_add_f32 {vr(V_L+1)}, {vr(V_L+1)}, {vr(V_BS+1)}"] + xreduce(V_L + 1, "v_add_f32", V_X2) + [f"v_rcp_f32 {vr(V_INV+1)}, {vr(V_L+1)}"]
        return zipl(a, b)
    def opack():
        r = []
        n = 0
        for db in range(8):
            x = (db & 3) << 5
            va = V_OW
            if x:
                va = V_X2
                r.append(f"v_xor_b32 {vr(V_X2)}, {x}, {vr(V_OW)}")
            for qb in range(2):
                pk = V_PK + 2 * (n % 2); n += 1
                base = V_O + 4 * (2 * db + qb)
                for i in range(4):
                    r.append(f"v_mul_f32 {vr(base+i)}, {vr(base+i)}, {vr(V_INV+qb)}")
                for i in range(2):
                    r.append(f"v_cvt_pk_bf16_f32 {vr(pk+i)}, {vr(base+2*i)}, {vr(base+2*i+1)}")
                r.append(f"ds_write_b64 {vr(va)}, {vr(pk,2)} offset:{128*(db>>2)+4096*qb}")
        return r

    def spread(gaps, groups, a, b, front=False, step=1):
        idx = list(range(a, b, step))
        for i, gr in enumerate(groups):
            gi = idx[i * len(idx) // max(len(groups), 1)]
            if front: gaps[gi] = list(gr) + gaps[gi]
            else: gaps[gi] += list(gr)
    single = lambda l: [[x] for x in l]

    comp = o.compute
    nafter = npro + (1 if o.stamps else 0)
    e(f"s_waitcnt vmcnt({nafter})")
    e("s_barrier")
    if comp:
        for gr in qreads():
            for x in gr: e(x)
        for x in kreads(0): e(x)
        e("s_waitcnt lgkmcnt(0)")
        for x in qk(0): e(x)
        for x in kreads(1): e(x)
        e("s_nop 3")
    if o.dbg:
        e("s_memrealtime s[56:57]")
        e(f"v_mov_b32 v252, 0")
    g.lines.append(".p2align 6")
    g.lab("L_head")
    fallbacks = []
    def prio_young(p):
        lab = f"L_pr{len(g.lines)}"
        return [f"s_cmp_eq_u32 {sr(S_YOUNG)}, 0", f"s_cbranch_scc1 {lab}", f"s_setprio {p}", f"{lab}:"]
    def emit(x):
        if x.endswith(":"): g.lab(x[:-1])
        else: e(x)
    for b in range(16):
        g.c(f"==== iter {b} phase A")
        if b == 0: stamp()
        pre, gaps = sm_parts(b, None if b == 0 else ('mov' if b == 1 else 'add'))
        if o.novalu and b >= 2:
            pre, gaps = [], [[] for _ in range(32)]
        if b == 0:
            lin = pre + [x for gp in gaps for x in gp]
            pre = []
            gaps = [[] for _ in range(32)]
            ini = linv() + minit()
            spread(gaps, single(ini), 0, 10)
            lin.insert(len(lin) - 2, "s_nop 0")
            spread(gaps, single(lin), 10, 32)
        nr = o.rdgaps
        vrd = vreads(b - 1); krd = kreads(b + 2)
        if o.nord and b > 1:
            vrd = []; krd = []
        if o.halfrd:
            vrd = vrd[:8] if b % 2 else vrd[8:]
            krd = krd[:4] if b % 2 else krd[4:]
        if o.rdmode == 0:
            spread(gaps, single(vrd), 0, nr)
        elif o.rdmode == 1:
            spread(gaps, [vrd[i:i+2] for i in range(0, len(vrd), 2)], 0, nr, step=2)
        elif o.rdmode == 2:
            spread(gaps, single(vrd), 0, nr, front=True)
        elif o.rdmode == 3:
            spread(gaps, [vrd[i:i+4] for i in range(0, len(vrd), 4)], 0, nr, step=2)
        for j in range(8):
            if o.store and st_iter[j] == b:
                spread(gaps, [o_read(j)], nr, nr + 1)
        if b == 1:
            spread(gaps, single(opack()), 2, 16)
        if o.rdmode == 1:
            spread(gaps, single(krd), 16, 16 + nr, step=2)
        elif o.rdmode == 2:
            spread(gaps, single(krd), 16, 16 + nr, front=True)
        elif o.rdmode == 3:
            spread(gaps, [krd[i:i+2] for i in range(0, len(krd), 2)], 16, 16 + nr, step=2)
        else:
            spread(gaps, single(krd), 16, 16 + nr)
        if b == 14 and not o.nodma:
            spread(gaps, qreads(), 16, 16 + nr)
        dm = []
        for k, x in ops[b]:
            cap = [f"s_waitcnt vmcnt({o.win-1})"] if o.win else []
            if k in ('K', 'V'): dm.append(cap + dma_kv(k, x))
            elif k == 'ST': dm.append(cap + o_store(x))
            elif k == 'Q': dm.append(cap + dma_q(x))
        if o.nodma: dm = []
        spread(gaps, dm, 16 + o.dm0, 16 + o.dm1)
        if o.prio == 2:
            gaps[o.pr_lo] = gaps[o.pr_lo] + prio_young(0)
        if o.stagger:
            e(f"s_cmp_eq_u32 {sr(S_YOUNG)}, {0 if o.stagger == 1 else 1}")
            e(f"s_cbranch_scc1 L_sa{b}")
            e(f"s_waitcnt vmcnt({vm_wait(b)}) lgkmcnt(0)")
            e("s_barrier")
            g.lab(f"L_sa{b}")
        e("s_waitcnt lgkmcnt(0)")
        if o.tst and b > 0:
            e(f"v_writelane_b32 v252, s56, {b-1}")
            e(f"v_writelane_b32 v252, s58, {32+b-1}")
        if comp:
            for x in pre: e(x)
            mf = qk(b + 1)
            for i in range(16):
                e(mf[i])
                for x in gaps[i]: emit(x)
        g.c(f"==== iter {b} phase B")
        if b % o.stampmod == 0: stamp()
        if o.prio == 2:
            for x in prio_young(1): emit(x)
        if o.stagger:
            e(f"s_cmp_lg_u32 {sr(S_YOUNG)}, {0 if o.stagger == 1 else 1}")
            e(f"s_cbranch_scc1 L_sb{b}")
        e(f"s_waitcnt vmcnt({vm_wait(b)}) lgkmcnt(0)")
        if not o.nobar: e("s_barrier")
        if o.stagger:
            g.lab(f"L_sb{b}")
            e("s_waitcnt lgkmcnt(0)")
        if o.tst:
            e("s_memtime s[56:57]")
            e("s_memrealtime s[58:59]")
        if b % o.stampmod == 0: stamp()
        if comp:
            mf = pv(b - 1)
            for i in range(16):
                e(mf[i])
                for x in gaps[16 + i]: emit(x)
            if b >= 1 and not o.nochk:
                e(f"v_add_f32 {vr(V_X0)}, {vr(V_BS)}, {vr(V_BS+1)}")
                e(f"v_cmp_nge_f32 vcc, {sr(S_THR)}, {vr(V_X0)}")
                e(f"s_cbranch_vccnz L_fb{b}")
                g.lab(f"L_ret{b}")
                fallbacks.append(b)
        else:
            for gr in dm:
                for x in gr: e(x)
    stamp()
    stamp_dump()
    if o.stamps:
        e(f"s_add_u32 {sr(S_STAMPOFF)}, {sr(S_STAMPOFF)}, 256")
    if o.dbg:
        e("s_memrealtime s[58:59]")
        e("s_waitcnt lgkmcnt(0)")
        e("s_sub_u32 s58, s58, s52")
        e(f"s_add_u32 m0, {sr(S_HEAD)}, 4")
        e("s_nop 3")
        e(f"v_writelane_b32 v252, s58, m0")
    e(f"s_add_u32 {sr(S_HEAD)}, {sr(S_HEAD)}, 1")
    e(f"s_cmp_lt_u32 {sr(S_HEAD)}, 4")
    e("s_cbranch_scc1 L_head")
    g.c("==== tail")
    if comp:
        for x in vreads(15): e(x)
        for x in linv(): e(x)
        e("s_waitcnt lgkmcnt(0)")
        for x in pv(15): e(x)
        for x in opack(): e(x)
    if o.store:
        e(f"v_xor_b32 {vr(V_X4)}, 64, {vr(V_DQ)}")
        for j in range(8):
            pk = V_KF + 4 * j
            e(f"ds_read_b128 {vr(pk,4)}, {vr(V_OR)} offset:{j*1024}")
        for j in range(8):
            pk = V_KF + 4 * j
            e(f"s_waitcnt lgkmcnt({7-j})")
            if j == 4:
                e(f"s_add_u32 {sr(S_OOFF)}, {sr(S_OOFF)}, 4096")
            e(f"buffer_store_dwordx4 {vr(pk,4)}, {vr(V_X4 if j & 1 else V_DQ)}, {sr(S_OSRD,4)}, {sr(S_OOFF)} offen offset:{1024*(j%4)}{stflags}")
    if o.stamps:
        e("s_waitcnt vmcnt(0)")
        stampn[0] = 0
        stamp()
        stamp_dump()
    if o.spin:
        e("s_waitcnt vmcnt(0)")
        e("s_memrealtime s[58:59]")
        e("s_waitcnt lgkmcnt(0)")
        if o.spin == 1:
            e("s_mov_b32 s64, 20000")
        elif o.spin == 2:
            e("s_sub_u32 s64, s58, s52")
            e("s_mul_i32 s64, s64, 3")
        elif o.spin == 3:
            e("s_sub_u32 s64, s56, s52")
            e("s_mul_i32 s64, s64, 30")
        elif o.spin >= 4:
            e(f"v_readlane_b32 s64, v252, {o.spin}")
            e("s_nop 3")
            e("s_mul_i32 s64, s64, 10")
        g.lab("L_spin")
        e("s_sleep 2")
        e("s_memrealtime s[58:59]")
        e("s_waitcnt lgkmcnt(0)")
        e("s_sub_u32 s65, s58, s52")
        e("s_cmp_lt_u32 s65, s64")
        e("s_cbranch_scc1 L_spin")
        e("s_endpgm")
    if o.dbg:
        e(f"s_cmp_lg_u32 {sr(S_TMP)}, 7")
        e("s_cbranch_scc1 L_end")
        e("s_waitcnt vmcnt(0)")
        e("s_memrealtime s[58:59]")
        e("s_memtime s[60:61]")
        e("s_waitcnt lgkmcnt(0)")
        e("s_mov_b32 s32, s48")
        e("s_and_b32 s33, s49, 0xffff")
        e("s_mov_b32 s34, 64")
        e("s_mov_b32 s35, 0x20000")
        e("s_not_b32 s62, s52")
        e("v_writelane_b32 v252, s62, 0")
        e("v_writelane_b32 v252, s58, 1")
        e("s_not_b32 s62, s58")
        e("v_writelane_b32 v252, s62, 2")
        e("s_sub_u32 s62, s56, s52")
        e("v_writelane_b32 v252, s62, 3")
        e("s_sub_u32 s62, s58, s52")
        e("s_lshl_b32 s62, s62, 16")
        e("s_sub_u32 s63, s60, s50")
        e("s_lshr_b32 s63, s63, 3")
        e("s_or_b32 s62, s62, s63")
        e("s_getreg_b32 s63, hwreg(HW_REG_XCC_ID)")
        e("s_and_b32 s63, s63, 7")
        e("s_add_u32 m0, s63, 8")
        e("s_nop 3")
        e("v_writelane_b32 v252, s62, m0")
        e(f"v_mbcnt_lo_u32_b32 {vr(V_X1)}, -1, 0")
        e(f"v_mbcnt_hi_u32_b32 {vr(V_X1)}, -1, {vr(V_X1)}")
        e(f"v_lshlrev_b32 {vr(V_X1)}, 2, {vr(V_X1)}")
        e(f"buffer_atomic_umax v252, {vr(V_X1)}, s[32:35], 0 offen")
    g.lab("L_end")
    e("s_endpgm")
    for b in fallbacks:
        g.lab(f"L_fb{b}")
        e("s_nop 15")
        for q in range(2):
            for x in rowmax(b, q, V_X0, V_X1): e(x)
            e(f"v_mul_f32 {vr(V_X0)}, {sr(S_C)}, {vr(V_X0)}")
            e(f"v_sub_f32 {vr(V_X0)}, 0, {vr(V_X0)}")
            e(f"v_min_f32 {vr(V_X0)}, {vr(V_X0)}, {vr(V_NMC+q)}")
            e(f"v_sub_f32 {vr(V_X1)}, {vr(V_X0)}, {vr(V_NMC+q)}")
            e(f"v_exp_f32 {vr(V_X1)}, {vr(V_X1)}")
            e(f"v_mov_b32 {vr(V_NMC+q)}, {vr(V_X0)}")
            e(f"v_mul_f32 {vr(V_L+q)}, {vr(V_L+q)}, {vr(V_X1)}")
            for db in range(8):
                for i in range(4):
                    r = V_O + 4 * (2 * db + q) + i
                    e(f"v_mul_f32 {vr(r)}, {vr(r)}, {vr(V_X1)}")
        for x in sm_linear(b): e(x)
        e("s_nop 1")
        e(f"s_branch L_ret{b}")

    nv = 256 if (o.stamps or o.dbg) else NVGPR
    out = HEADER
    out += f"; @launch grid=(256,1,1) block=(512,1,1) lds=163840\n"
    out += '.amdgcn_target "amdgcn-amd-amdhsa--gfx950"\n.text\n'
    out += f".globl {NAME}_kernel\n.p2align 8\n.type {NAME}_kernel,@function\n{NAME}_kernel:\n"
    out += "\n".join(g.lines) + "\n"
    out += f""".section .rodata,"a"
.p2align 6
.amdhsa_kernel {NAME}_kernel
  .amdhsa_next_free_vgpr {nv}
  .amdhsa_next_free_sgpr {102 if (o.stamps or o.dbg) else 48}
  .amdhsa_accum_offset {nv}
  .amdhsa_group_segment_fixed_size 0
  .amdhsa_kernarg_size 48
  .amdhsa_user_sgpr_count 2
  .amdhsa_user_sgpr_kernarg_segment_ptr 1
  .amdhsa_system_sgpr_workgroup_id_x 1
.end_amdhsa_kernel
"""
    return out

def main():
    ap = argparse.ArgumentParser()
    il = lambda s: [int(x) for x in s.split(",")]
    ap.add_argument("-o", default="out.s")
    ap.add_argument("--nocompute", dest="compute", action="store_false")
    ap.add_argument("--nostore", dest="store", action="store_false")
    ap.add_argument("--strided", action="store_true")
    ap.add_argument("--ldflags", default="nt")
    ap.add_argument("--qflags", default="")
    ap.add_argument("--stflags", default="")
    ap.add_argument("--thr", type=float, default=65536.0)
    ap.add_argument("--rdgaps", type=int, default=12)
    ap.add_argument("--kstep2", action="store_true")
    ap.add_argument("--dm0", type=int, default=0)
    ap.add_argument("--dm1", type=int, default=14)
    ap.add_argument("--st_iter", type=il, default=[2, 3, 4, 5, 6, 7, 8, 9])
    ap.add_argument("--q_iter", type=il, default=[3, 4, 5, 6, 7, 8, 9, 10])
    ap.add_argument("--prio", type=int, default=0)
    ap.add_argument("--pr_lo", type=int, default=4)
    ap.add_argument("--noprobar", dest="probar", action="store_false")
    ap.add_argument("--stamps", action="store_true")
    ap.add_argument("--stampmod", type=int, default=2)
    ap.add_argument("--l2only", type=int, default=0)
    ap.add_argument("--novalu", action="store_true")
    ap.add_argument("--dbg", action="store_true")
    ap.add_argument("--spin", type=int, default=0)
    ap.add_argument("--win", type=int, default=0)
    ap.add_argument("--xfirst", action="store_true")
    ap.add_argument("--stagger", type=int, default=0)
    ap.add_argument("--rdmode", type=int, default=0)
    ap.add_argument("--mf32", type=int, default=0)
    ap.add_argument("--nomfma", action="store_true")
    ap.add_argument("--qkord", type=int, default=0)
    ap.add_argument("--nodma", action="store_true")
    ap.add_argument("--nobar", action="store_true")
    ap.add_argument("--nord", action="store_true")
    ap.add_argument("--nochk", action="store_true")
    ap.add_argument("--tst", action="store_true")
    ap.add_argument("--halfrd", action="store_true")
    o = ap.parse_args()
    open(o.o, "w").write(build(o))

if __name__ == "__main__":
    main()
```

```python
import sys, struct, argparse

def f32bits(x):
    return struct.unpack('<I', struct.pack('<f', x))[0]

NAME = "standalone__mha_softmax__near_ridge"

HEADER = """; Kernarg layout for this problem (48 bytes, ptrs only, base s[0:1]):
"""

V_O, V_Q, V_S, V_P, V_KF, V_VF, V_KA, V_VA, V_T, V_PK = 0, 64, 96, 128, 144, 176, 208, 212, 220, 228
V_DK, V_DV, V_DQ = 232, 233, 234
V_L, V_BS, V_NMC, V_INV = 236, 238, 240, 242
V_X0, V_X1, V_X2, V_X3, V_OW, V_OR, V_X4 = 244, 245, 246, 247, 248, 249, 235
NVGPR = 252

S_QSRD, S_KSRD, S_VSRD, S_OSRD = 4, 8, 12, 16
S_QOFF, S_KOFF, S_VOFF, S_OOFF = 20, 21, 22, 23
S_HEAD, S_WLDS, S_C, S_THR = 24, 25, 26, 27
S_TMP, S_WQ, S_ONR, S_YOUNG = 28, 29, 30, 31
S_WSRD = 32
S_STAMPOFF = 38

BLK = 8192
KBASE, VBASE, QBASE = 0, 49152, 98304
SLOTS = [0, 1, 2, 3, 4, 5, 0, 1, 2, 3, 4, 0, 1, 2, 3, 4]
M16 = "v_mfma_f32_16x16x32_bf16"

def vr(b, n=1):
    return f"v{b}" if n == 1 else f"v[{b}:{b+n-1}]"
def sr(b, n=1):
    return f"s{b}" if n == 1 else f"s[{b}:{b+n-1}]"

class Gen:
    def __init__(self):
        self.lines = []
    def e(self, s):
        if s is None: return
        self.lines.append("    " + s)
    def lab(self, s):
        self.lines.append(s + ":")
    def c(self, s):
        self.lines.append("    ; " + s)

def build(o):
    g = Gen()
    e = g.e
    ldflags = (" " + o.ldflags) if o.ldflags else ""
    qflags = (" " + o.qflags) if o.qflags else ldflags
    stflags = (" " + o.stflags) if o.stflags else ""

    def dma_kv(kind, b):
        b %= 16
        srd = S_KSRD if kind == 'K' else S_VSRD
        soff = S_KOFF if kind == 'K' else S_VOFF
        v0 = V_DK if kind == 'K' else V_DV
        base = (KBASE if kind == 'K' else VBASE) + SLOTS[b] * BLK
        inc = BLK
        if o.strided and b == 15:
            inc += 255 * 131072
        return [f"s_add_u32 m0, {sr(S_WLDS)}, {base}",
                "s_nop 0",
                f"buffer_load_dwordx4 {vr(v0)}, {sr(srd,4)}, {sr(soff)} offen{ldflags} lds",
                f"s_add_u32 {sr(soff)}, {sr(soff)}, {inc}"]
    def dma_q(j):
        inc = 1024
        if j == 7:
            inc += 65536 - 8192
            if o.strided:
                inc += 255 * 65536
        r = [f"s_add_u32 m0, {sr(S_WQ)}, {j*1024}",
             f"v_xor_b32 {vr(V_X3)}, {(j&3)<<6}, {vr(V_DQ)}",
             f"buffer_load_dwordx4 {vr(V_X3)}, {sr(S_QSRD,4)}, {sr(S_QOFF)} offen{qflags} lds",
             f"s_add_u32 {sr(S_QOFF)}, {sr(S_QOFF)}, {inc}"]
        return r
    def o_read(j):
        return [f"ds_read_b128 {vr(V_PK,4)}, {vr(V_OR)} offset:{j*1024}"]
    def o_store(j):
        inc = 1024
        if j == 7:
            inc += 65536 - 8192
            if o.strided:
                inc += 255 * 65536
        r = []
        va = V_DQ
        if j & 1:
            r.append(f"v_xor_b32 {vr(V_X4)}, 64, {vr(V_DQ)}")
            va = V_X4
        r += [f"buffer_store_dwordx4 {vr(V_PK,4)}, {vr(va)}, {sr(S_OSRD,4)}, {sr(S_OOFF)} offen{stflags}",
              f"s_add_u32 {sr(S_OOFF)}, {sr(S_OOFF)}, {inc}"]
        if j == 7:
            r.append(f"s_mov_b32 {sr(S_OSRD+2)}, {sr(S_ONR)}")
        return r

    stampn = [0]
    def stamp():
        if not o.stamps or o.tst:
            return
        i = stampn[0]
        if 56 + 2 * i + 1 > 101:
            return
        e(f"s_memtime s[{56+2*i}:{57+2*i}]")
        stampn[0] += 1
    def stamp_dump():
        if not o.stamps:
            return
        e(f"s_memrealtime s[54:55]")
        e("s_waitcnt lgkmcnt(0)")
        if o.tst:
            e(f"v_writelane_b32 v252, s56, 15")
            e(f"v_writelane_b32 v252, s58, 47")
        for i in range(stampn[0]):
            e(f"v_writelane_b32 v252, s{56+2*i}, {i}")
        e(f"v_writelane_b32 v252, s54, 31")
        e(f"v_writelane_b32 v252, s50, 30")
        e(f"v_writelane_b32 v252, s52, 29")
        e(f"s_getreg_b32 s55, hwreg(HW_REG_XCC_ID)")
        e(f"v_writelane_b32 v252, s55, 28")
        e(f"v_mbcnt_lo_u32_b32 v253, -1, 0")
        e(f"v_mbcnt_hi_u32_b32 v253, -1, v253")
        e(f"v_lshlrev_b32 v253, 2, v253")
        e(f"buffer_store_dword v252, v253, {sr(S_WSRD,4)}, {sr(S_STAMPOFF)} offen")

    st_iter = o.st_iter
    q_iter = o.q_iter
    VLA = 3 if o.stagger else 4
    nkv = o.nkv
    assert sum(nkv) == 32
    lag0 = 0
    while True:
        c = -lag0; ok = True
        for b in range(16):
            c += nkv[b]
            if c > 2 * (b + 1): ok = False
        if ok: break
        lag0 += 1
    item = lambda i: ('K', i // 2 + 6) if i % 2 == 0 else ('V', i // 2 + VLA)
    kvops = {}
    c = -lag0
    for b in range(16):
        kvops[b] = [item(i) for i in range(c, c + nkv[b])]
        c += nkv[b]
    ext = {b: [] for b in range(16)}
    for j in range(8):
        if o.store:
            ext[st_iter[j]].append(('ST', j))
    for j in range(8):
        assert q_iter[j] >= st_iter[j]
        ext[q_iter[j]].append(('Q', j))
    ops = {b: (ext[b] + kvops[b] if o.xfirst else kvops[b] + ext[b]) for b in range(16)}
    if o.stamps:
        ops[15].append(('STAMP', 0))
    def seq_before(b):
        seq = []
        for it in range(b - 16, b):
            for k, x in ops[it % 16]:
                if it < 0 and k in ('K', 'V'): x -= 16
                seq.append((it, k, x))
        return seq
    def vm_wait(b):
        seq = seq_before(b)
        need = [i for i, (it, k, x) in enumerate(seq) if (k, x) in (('K', b + 2), ('V', b))]
        assert len(need) == 2, (b, need)
        if b == 14:
            need += [i for i, (it, k, x) in enumerate(seq) if k == 'Q' and it >= 0]
        for i, (it, k, x) in enumerate(seq):
            if it < 0 and k in ('ST', 'Q'): assert i < max(need)
        return len(seq) - 1 - max(need)
    pro_items = [(k, x) for (it, k, x) in seq_before(0) if (k == 'K' and x >= 2) or (k == 'V' and x >= 0)]
    if o.verbose:
        for b in range(16):
            fl = [b - it for (it, k, x) in seq_before(b) if (k, x) in (('K', b + 2), ('V', b))]
            print(b, ops[b], "wait", vm_wait(b), "flight", fl, file=sys.stderr)
        print("prologue", pro_items, file=sys.stderr)

    e(f"s_cmp_ge_u32 s2, 256")
    e("s_cbranch_scc1 L_end")
    e("s_load_dwordx4 s[40:43], s[0:1], 0")
    e("s_load_dwordx4 s[44:47], s[0:1], 16")
    if o.dbg:
        e("s_load_dwordx2 s[48:49], s[0:1], 32")
        e("s_memtime s[50:51]")
        e("s_memrealtime s[52:53]")
    if o.stamps:
        e("s_load_dwordx2 s[48:49], s[0:1], 40")
        e("s_memtime s[50:51]")
        e("s_memrealtime s[52:53]")
    e(f"v_lshrrev_b32 v1, 6, v0")
    e(f"v_and_b32 v2, 63, v0")
    e(f"v_readfirstlane_b32 {sr(S_TMP)}, v1")
    e(f"v_lshrrev_b32 v3, 4, v2")
    e(f"v_and_b32 v4, 15, v2")
    e(f"v_lshl_add_u32 v5, v1, 2, v3")
    e(f"v_and_b32 v6, 15, v5")
    e(f"v_xor_b32 v6, v6, v4")
    e(f"v_lshlrev_b32 v6, 4, v6")
    e(f"v_lshl_add_u32 {vr(V_DK)}, v5, 8, v6")
    e(f"v_and_b32 v6, 7, v5")
    e(f"v_lshlrev_b32 v6, 1, v6")
    e(f"v_xor_b32 v6, v6, v4")
    e(f"v_lshlrev_b32 v6, 4, v6")
    e(f"v_lshl_add_u32 {vr(V_DV)}, v5, 8, v6")
    e(f"v_lshl_add_u32 v5, v1, 5, v3")
    e(f"v_lshlrev_b32 v5, 8, v5")
    e(f"v_xor_b32 v6, v3, v4")
    e(f"v_lshl_add_u32 {vr(V_DQ)}, v6, 4, v5")
    e(f"s_lshl_b32 {sr(S_WLDS)}, {sr(S_TMP)}, 10")
    e(f"s_lshl_b32 {sr(S_WQ)}, {sr(S_TMP)}, 13")
    e(f"s_add_u32 {sr(S_WQ)}, {sr(S_WQ)}, {QBASE}")
    e(f"s_lshr_b32 {sr(S_YOUNG)}, {sr(S_TMP)}, 2")
    if o.strided:
        e(f"s_lshl_b32 {sr(S_QOFF)}, s2, 16")
        e(f"s_lshl_b32 {sr(S_KOFF)}, s2, 17")
        e(f"s_mov_b32 {sr(S_QSRD+2)}, {1<<26}")
        e(f"s_mov_b32 {sr(S_KSRD+2)}, {1<<27}")
        e(f"s_mov_b32 {sr(S_VSRD+2)}, {1<<27}")
        e(f"s_mov_b32 {sr(S_ONR)}, {1<<26}")
        e(f"s_sub_u32 {sr(S_OOFF)}, {sr(S_QOFF)}, {65536*256}")
    else:
        e(f"s_lshl_b32 {sr(S_QOFF)}, s2, 18")
        e(f"s_lshl_b32 {sr(S_KOFF)}, s2, 19")
        e(f"s_add_u32 {sr(S_QSRD+2)}, {sr(S_QOFF)}, {1<<18}")
        e(f"s_add_u32 {sr(S_KSRD+2)}, {sr(S_KOFF)}, {1<<19}")
        e(f"s_mov_b32 {sr(S_VSRD+2)}, {sr(S_KSRD+2)}")
        e(f"s_mov_b32 {sr(S_ONR)}, {sr(S_QSRD+2)}")
        e(f"s_sub_u32 {sr(S_OOFF)}, {sr(S_QOFF)}, 65536")
    e(f"s_mov_b32 {sr(S_OSRD+2)}, 0")
    if o.l2only:
        e(f"s_and_b32 {sr(S_QOFF)}, s2, {o.l2only-1}")
        e(f"s_lshl_b32 {sr(S_KOFF)}, {sr(S_QOFF)}, 19")
        e(f"s_lshl_b32 {sr(S_QOFF)}, {sr(S_QOFF)}, 18")
        e(f"s_add_u32 {sr(S_QSRD+2)}, {sr(S_QOFF)}, {1<<18}")
        e(f"s_add_u32 {sr(S_KSRD+2)}, {sr(S_KOFF)}, {1<<19}")
        e(f"s_mov_b32 {sr(S_VSRD+2)}, {sr(S_KSRD+2)}")
    e(f"s_mov_b32 {sr(S_VOFF)}, {sr(S_KOFF)}")
    for srd in (S_QSRD, S_KSRD, S_VSRD, S_OSRD):
        e(f"s_mov_b32 {sr(srd+3)}, 0x20000")
    e("s_waitcnt lgkmcnt(0)")
    for srd, p in ((S_KSRD, 42), (S_QSRD, 40), (S_VSRD, 44), (S_OSRD, 46)):
        e(f"s_mov_b32 {sr(srd)}, s{p}")
        e(f"s_and_b32 {sr(srd+1)}, s{p+1}, 0xffff")
    for x in dma_kv('K', 0): e(x)
    for j in range(4):
        for x in dma_q(j): e(x)
    if o.probar: e("s_barrier")
    for j in range(4, 8):
        for x in dma_q(j): e(x)
    for x in dma_kv('K', 1): e(x)
    if o.probar: e("s_barrier")
    e(f"v_xor_b32 v9, v3, v4")
    e(f"v_lshlrev_b32 v9, 4, v9")
    e(f"v_lshl_add_u32 {vr(V_KA)}, v4, 8, v9")
    for s in range(1, 4):
        e(f"v_xor_b32 {vr(V_KA+s)}, {s*64}, {vr(V_KA)}")
    e(f"v_lshrrev_b32 v9, 2, v2")
    e(f"v_and_b32 v10, 7, v9")
    e(f"v_lshlrev_b32 v10, 1, v10")
    e(f"v_bfe_u32 v11, v2, 1, 1")
    e(f"v_xor_b32 v10, v10, v11")
    e(f"v_lshlrev_b32 v10, 4, v10")
    e(f"v_lshl_add_u32 v10, v9, 8, v10")
    e(f"v_and_b32 v11, 1, v2")
    e(f"v_lshl_add_u32 v10, v11, 3, v10")
    e(f"v_add_u32 {vr(V_VA)}, {VBASE}, v10")
    for t in range(1, 8):
        e(f"v_xor_b32 {vr(V_VA+t)}, {t*32}, {vr(V_VA)}")
    e(f"v_and_b32 v9, 7, v4")
    e(f"v_lshrrev_b32 v10, 1, v3")
    e(f"v_xor_b32 v9, v9, v10")
    e(f"v_lshlrev_b32 v9, 4, v9")
    e(f"v_lshl_add_u32 v9, v4, 8, v9")
    e(f"v_and_b32 v10, 1, v3")
    e(f"v_lshl_add_u32 v9, v10, 3, v9")
    e(f"v_add_u32 {vr(V_OW)}, {sr(S_WQ)}, v9")
    e(f"v_lshlrev_b32 v9, 4, v2")
    e(f"v_add_u32 {vr(V_OR)}, {sr(S_WQ)}, v9")
    e(f"s_mov_b32 {sr(S_C)}, {hex(f32bits(128**-0.5 * 1.4426950408889634))}")
    e(f"s_mov_b32 {sr(S_THR)}, {hex(f32bits(o.thr))}")
    e(f"s_mov_b32 {sr(S_HEAD)}, 0")
    for i in range(2):
        e(f"v_mov_b32 {vr(V_L+i)}, 1.0")
        e(f"v_mov_b32 {vr(V_BS+i)}, 0")
    npro = min(o.pro1, len(pro_items))
    for k, x in pro_items[:npro]:
        for y in dma_kv(k, x): e(y)
    pro_rest = pro_items[npro:]
    if o.nodma:
        for k, x in pro_rest:
            for y in dma_kv(k, x): e(y)
        pro_rest = []
        for bb in range(VLA, 6):
            for x in dma_kv('V', bb): e(x)
        e("s_waitcnt vmcnt(0)")
    if o.stamps:
        e(f"s_mov_b32 {sr(S_WSRD)}, s48")
        e(f"s_and_b32 {sr(S_WSRD+1)}, s49, 0xffff")
        e(f"s_mov_b32 {sr(S_WSRD+2)}, {1<<24}")
        e(f"s_mov_b32 {sr(S_WSRD+3)}, 0x20000")
        e(f"s_lshl_b32 {sr(S_STAMPOFF)}, s2, 3")
        e(f"s_add_u32 {sr(S_STAMPOFF)}, {sr(S_STAMPOFF)}, {sr(S_TMP)}")
        e(f"s_lshl_b32 {sr(S_STAMPOFF)}, {sr(S_STAMPOFF)}, 11")
    if o.prio == 1:
        e(f"s_cmp_ge_u32 {sr(S_TMP)}, 4")
        e("s_cbranch_scc0 L_prio_done")
        e("s_setprio 1")
        g.lab("L_prio_done")

    def kreads(b):
        off = KBASE + SLOTS[b % 16] * BLK
        return [f"ds_read_b128 {vr(V_KF+4*(4*kb+s),4)}, {vr(V_KA+s)} offset:{off+4096*kb}" for kb in range(2) for s in range(4)]
    def qreads():
        r = []
        for s in range(4):
            a = V_Q + 4 * (4 + s)
            r.append([f"v_add_u32 {vr(a)}, {sr(S_WQ)}, {vr(V_KA+s)}",
                      f"ds_read_b128 {vr(V_Q+4*s,4)}, {vr(a)}"])
            r.append([f"ds_read_b128 {vr(a,4)}, {vr(a)} offset:4096"])
        return r
    def vreads(b):
        r = []
        for db in range(8):
            for w in range(2):
                off = SLOTS[b % 16] * BLK + w * 4096
                r.append(f"ds_read_b64_tr_b16 {vr(V_VF+4*db+2*w,2)}, {vr(V_VA+db)} offset:{off}")
        return r
    def qk(b):
        S = V_S + 16 * (b % 2)
        if o.mf32 in (1, 2):
            r = []
            for s in range(8):
                r += [f"v_mfma_f32_32x32x16_bf16 {vr(S,16)}, {vr(V_KF+4*s,4)}, {vr(V_Q+4*s,4)}, " + ("0" if s == 0 else vr(S, 16)), None]
            return r
        if o.nomfma: return [None] * 16
        order = [(qb, kb, s) for qb in range(2) for kb in range(2) for s in range(4)]
        if o.qkord == 1:
            order = [(qb, kb, s) for s in range(4) for qb in range(2) for kb in range(2)]
        if o.qkord == 2:
            order = [(qb, kb, s) for kb in range(2) for s in range(4) for qb in range(2)]
        r = []
        for qb, kb, s in order:
            D = S + 8 * qb + 4 * kb
            r.append(f"{M16} {vr(D,4)}, {vr(V_KF+4*(4*kb+s),4)}, {vr(V_Q+4*(4*qb+s),4)}, " + ("0" if s == 0 else vr(D, 4)))
        return r
    def pv(b):
        b %= 16
        P = V_P + 8 * (b % 2)
        r = []
        if o.mf32 in (1, 3):
            for u in range(2):
                for t in range(4):
                    O = V_O + 16 * t
                    cc = "0" if (b == 0 and u == 0) else vr(O, 16)
                    r += [f"v_mfma_f32_32x32x16_bf16 {vr(O,16)}, {vr(V_VF+4*(4*u+t),4)}, {vr(P+4*u,4)}, {cc}", None]
            return r
        if o.nomfma: return [None] * 16
        for db in range(8):
            for qb in range(2):
                O = V_O + 4 * (2 * db + qb)
                cc = "0" if b == 0 else vr(O, 4)
                r.append(f"{M16} {vr(O,4)}, {vr(V_VF+4*db,4)}, {vr(P+4*qb,4)}, {cc}")
        return r
    T = lambda k: vr(V_T + k % 8)
    def sm_parts(b, lupd):
        S = V_S + 16 * (b % 2)
        P = V_P + 8 * (b % 2)
        F = lambda k: f"v_fma_f32 {T(k)}, {vr(S+k)}, {sr(S_C)}, {vr(V_NMC + k // 8)}"
        E = lambda k: f"v_exp_f32 {T(k)}, {T(k)}"
        def A(k):
            q = k // 8
            if k % 8 == 0:
                if lupd == 'add': return [f"v_add_f32 {vr(V_L+q)}, {vr(V_L+q)}, {vr(V_BS+q)}"]
                if lupd == 'mov': return [f"v_mov_b32 {vr(V_L+q)}, {vr(V_BS+q)}"]
                return []
            if k % 8 == 1:
                return [f"v_add_f32 {vr(V_BS+q)}, {T(k-1)}, {T(k)}"]
            return [f"v_add_f32 {vr(V_BS+q)}, {vr(V_BS+q)}, {T(k)}"]
        C = lambda k: f"v_cvt_pk_bf16_f32 {vr(P+k//2)}, {T(k-1)}, {T(k)}"
        gaps = [[] for _ in range(32)]
        for k in range(16):
            gaps[2 * k].append(E(k))
            if k + 1 < 16: gaps[2 * k + 1].append(F(k + 1))
            gaps[2 * k + 1] += A(k)
            if k % 2 == 1: gaps[2 * k + 1].append(C(k))
        return [F(0)], gaps
    def sm_linear(b):
        pre, gaps = sm_parts(b, None)
        r = list(pre)
        for i, gp in enumerate(gaps):
            if i == 31: r.append("s_nop 0")
            r += gp
        return r
    def xreduce(dst, op, tmp):
        return [f"v_mov_b32 {vr(tmp)}, {vr(dst)}", "s_nop 1",
                f"v_permlane32_swap_b32 {vr(dst)}, {vr(tmp)}",
                f"{op} {vr(dst)}, {vr(dst)}, {vr(tmp)}",
                f"v_mov_b32 {vr(tmp)}, {vr(dst)}", "s_nop 1",
                f"v_permlane16_swap_b32 {vr(dst)}, {vr(tmp)}",
                f"{op} {vr(dst)}, {vr(dst)}, {vr(tmp)}"]
    def rowmax(b, q, dst, tmp):
        S = V_S + 16 * (b % 2) + 8 * q
        r = [f"v_max3_f32 {vr(dst)}, {vr(S)}, {vr(S+1)}, {vr(S+2)}",
             f"v_max3_f32 {vr(dst)}, {vr(dst)}, {vr(S+3)}, {vr(S+4)}",
             f"v_max3_f32 {vr(dst)}, {vr(dst)}, {vr(S+5)}, {vr(S+6)}",
             f"v_max_f32 {vr(dst)}, {vr(dst)}, {vr(S+7)}"]
        return r + xreduce(dst, "v_max_f32", tmp)
    def zipl(a, b):
        r = []
        for x, y in zip(a, b):
            if x.startswith("s_nop"):
                r.append("s_nop 0")
            else:
                r += [x, y]
        return r
    def minit():
        a = rowmax(0, 0, V_X0, V_X1) + [f"v_mul_f32 {vr(V_NMC)}, {sr(S_C)}, {vr(V_X0)}", f"v_sub_f32 {vr(V_NMC)}, 0, {vr(V_NMC)}"]
        b = rowmax(0, 1, V_X2, V_X3) + [f"v_mul_f32 {vr(V_NMC+1)}, {sr(S_C)}, {vr(V_X2)}", f"v_sub_f32 {vr(V_NMC+1)}, 0, {vr(V_NMC+1)}"]
        return zipl(a, b)
    def linv():
        a = [f"v_add_f32 {vr(V_L)}, {vr(V_L)}, {vr(V_BS)}"] + xreduce(V_L, "v_add_f32", V_X0) + [f"v_rcp_f32 {vr(V_INV)}, {vr(V_L)}"]
        b = [f"v_add_f32 {vr(V_L+1)}, {vr(V_L+1)}, {vr(V_BS+1)}"] + xreduce(V_L + 1, "v_add_f32", V_X2) + [f"v_rcp_f32 {vr(V_INV+1)}, {vr(V_L+1)}"]
        return zipl(a, b)
    def opack():
        r = []
        n = 0
        for db in range(8):
            x = (db & 3) << 5
            va = V_OW
            if x:
                va = V_X2
                r.append(f"v_xor_b32 {vr(V_X2)}, {x}, {vr(V_OW)}")
            for qb in range(2):
                pk = V_PK + 2 * (n % 2); n += 1
                base = V_O + 4 * (2 * db + qb)
                for i in range(4):
                    r.append(f"v_mul_f32 {vr(base+i)}, {vr(base+i)}, {vr(V_INV+qb)}")
                for i in range(2):
                    r.append(f"v_cvt_pk_bf16_f32 {vr(pk+i)}, {vr(base+2*i)}, {vr(base+2*i+1)}")
                r.append(f"ds_write_b64 {vr(va)}, {vr(pk,2)} offset:{128*(db>>2)+4096*qb}")
        return r

    def spread(gaps, groups, a, b, front=False, step=1):
        idx = list(range(a, b, step))
        for i, gr in enumerate(groups):
            gi = idx[i * len(idx) // max(len(groups), 1)]
            if front: gaps[gi] = list(gr) + gaps[gi]
            else: gaps[gi] += list(gr)
    single = lambda l: [[x] for x in l]

    comp = o.compute
    nafter = npro
    e(f"s_waitcnt vmcnt({nafter})")
    e("s_barrier")
    if comp:
        for gr in qreads():
            for x in gr: e(x)
        for x in kreads(0): e(x)
        e("s_waitcnt lgkmcnt(0)")
        m0 = qk(0)
        for i, x in enumerate(m0):
            e(x)
            if i % 3 == 0 and pro_rest:
                k, xx = pro_rest.pop(0)
                for y in dma_kv(k, xx): e(y)
        for x in kreads(1): e(x)
        e("s_nop 3")
    for k, xx in pro_rest:
        for y in dma_kv(k, xx): e(y)
    stamp_dump()
    if o.dbg:
        e("s_memrealtime s[56:57]")
        e(f"v_mov_b32 v252, 0")
    g.lines.append(".p2align 6")
    g.lab("L_head")
    fallbacks = []
    def prio_young(p):
        lab = f"L_pr{len(g.lines)}"
        return [f"s_cmp_eq_u32 {sr(S_YOUNG)}, 0", f"s_cbranch_scc1 {lab}", f"s_setprio {p}", f"{lab}:"]
    def emit(x):
        if x.endswith(":"): g.lab(x[:-1])
        else: e(x)
    for b in range(16):
        g.c(f"==== iter {b} phase A")
        if b == 0: stamp()
        pre, gaps = sm_parts(b, None if b == 0 else ('mov' if b == 1 else 'add'))
        if o.novalu and b >= 2:
            pre, gaps = [], [[] for _ in range(32)]
        if b == 0:
            lin = pre + [x for gp in gaps for x in gp]
            pre = []
            gaps = [[] for _ in range(32)]
            ini = linv() + minit()
            spread(gaps, single(ini), 0, 10)
            lin.insert(len(lin) - 2, "s_nop 0")
            spread(gaps, single(lin), 10, 32)
        nr = o.rdgaps
        vrd = vreads(b - 1); krd = kreads(b + 2)
        if o.nord and b > 1:
            vrd = []; krd = []
        if o.halfrd:
            vrd = vrd[:8] if b % 2 else vrd[8:]
            krd = krd[:4] if b % 2 else krd[4:]
        if o.rdmode == 0:
            spread(gaps, single(vrd), 0, nr)
        elif o.rdmode == 1:
            spread(gaps, [vrd[i:i+2] for i in range(0, len(vrd), 2)], 0, nr, step=2)
        elif o.rdmode == 2:
            spread(gaps, single(vrd), 0, nr, front=True)
        elif o.rdmode == 3:
            spread(gaps, [vrd[i:i+4] for i in range(0, len(vrd), 4)], 0, nr, step=2)
        for j in range(8):
            if o.store and st_iter[j] == b:
                spread(gaps, [o_read(j)], nr, nr + 1)
        if b == 1:
            spread(gaps, single(opack()), 2, 16)
        if o.rdmode == 1:
            spread(gaps, single(krd), 16, 16 + nr, step=2)
        elif o.rdmode == 2:
            spread(gaps, single(krd), 16, 16 + nr, front=True)
        elif o.rdmode == 3:
            spread(gaps, [krd[i:i+2] for i in range(0, len(krd), 2)], 16, 16 + nr, step=2)
        else:
            spread(gaps, single(krd), 16, 16 + nr)
        if b == 14 and not o.nodma:
            spread(gaps, qreads(), 16, 16 + nr)
        dm = []
        for k, x in ops[b]:
            cap = [f"s_waitcnt vmcnt({o.win-1})"] if o.win else []
            if k in ('K', 'V'): dm.append(cap + dma_kv(k, x))
            elif k == 'ST': dm.append(cap + o_store(x))
            elif k == 'Q': dm.append(cap + dma_q(x))
        if o.nodma: dm = []
        spread(gaps, dm, 16 + o.dm0, 16 + o.dm1)
        if o.prio == 2:
            gaps[o.pr_lo] = gaps[o.pr_lo] + prio_young(0)
        if o.stagger:
            e(f"s_cmp_eq_u32 {sr(S_YOUNG)}, {0 if o.stagger == 1 else 1}")
            e(f"s_cbranch_scc1 L_sa{b}")
            e(f"s_waitcnt vmcnt({vm_wait(b)}) lgkmcnt(0)")
            e("s_barrier")
            g.lab(f"L_sa{b}")
        e("s_waitcnt lgkmcnt(0)")
        if o.tst and b > 0:
            e(f"v_writelane_b32 v252, s56, {b-1}")
            e(f"v_writelane_b32 v252, s58, {32+b-1}")
        if comp:
            for x in pre: e(x)
            mf = qk(b + 1)
            for i in range(16):
                e(mf[i])
                for x in gaps[i]: emit(x)
        g.c(f"==== iter {b} phase B")
        if b % o.stampmod == 0: stamp()
        if o.prio == 2:
            for x in prio_young(1): emit(x)
        if o.stagger:
            e(f"s_cmp_lg_u32 {sr(S_YOUNG)}, {0 if o.stagger == 1 else 1}")
            e(f"s_cbranch_scc1 L_sb{b}")
        e(f"s_waitcnt vmcnt({vm_wait(b)}) lgkmcnt(0)")
        if not o.nobar: e("s_barrier")
        if o.stagger:
            g.lab(f"L_sb{b}")
            e("s_waitcnt lgkmcnt(0)")
        if o.pace:
            if o.pace0:
                e(f"s_cmp_ge_u32 {sr(S_HEAD)}, {o.pace0}")
                e(f"s_cbranch_scc1 L_np{b}")
            e(f"s_sleep {o.pace}")
            if o.pace0: g.lab(f"L_np{b}")
        if o.tst:
            e("s_memtime s[56:57]")
            e("s_memrealtime s[58:59]")
        if b % o.stampmod == 0: stamp()
        if comp:
            mf = pv(b - 1)
            for i in range(16):
                e(mf[i])
                for x in gaps[16 + i]: emit(x)
            if b >= 1 and not o.nochk:
                e(f"v_add_f32 {vr(V_X0)}, {vr(V_BS)}, {vr(V_BS+1)}")
                e(f"v_cmp_nge_f32 vcc, {sr(S_THR)}, {vr(V_X0)}")
                e(f"s_cbranch_vccnz L_fb{b}")
                g.lab(f"L_ret{b}")
                fallbacks.append(b)
        else:
            for gr in dm:
                for x in gr: e(x)
    stamp()
    stamp_dump()
    if o.stamps:
        e(f"s_add_u32 {sr(S_STAMPOFF)}, {sr(S_STAMPOFF)}, 256")
    if o.dbg:
        e("s_memrealtime s[58:59]")
        e("s_waitcnt lgkmcnt(0)")
        e("s_sub_u32 s58, s58, s52")
        e(f"s_add_u32 m0, {sr(S_HEAD)}, 4")
        e("s_nop 3")
        e(f"v_writelane_b32 v252, s58, m0")
    e(f"s_add_u32 {sr(S_HEAD)}, {sr(S_HEAD)}, 1")
    e(f"s_cmp_lt_u32 {sr(S_HEAD)}, 4")
    e("s_cbranch_scc1 L_head")
    g.c("==== tail")
    if comp:
        for x in vreads(15): e(x)
        for x in linv(): e(x)
        e("s_waitcnt lgkmcnt(0)")
        for x in pv(15): e(x)
        for x in opack(): e(x)
    if o.store:
        e(f"v_xor_b32 {vr(V_X4)}, 64, {vr(V_DQ)}")
        for j in range(8):
            pk = V_KF + 4 * j
            e(f"ds_read_b128 {vr(pk,4)}, {vr(V_OR)} offset:{j*1024}")
        for j in range(8):
            pk = V_KF + 4 * j
            e(f"s_waitcnt lgkmcnt({7-j})")
            if j == 4:
                e(f"s_add_u32 {sr(S_OOFF)}, {sr(S_OOFF)}, 4096")
            e(f"buffer_store_dwordx4 {vr(pk,4)}, {vr(V_X4 if j & 1 else V_DQ)}, {sr(S_OSRD,4)}, {sr(S_OOFF)} offen offset:{1024*(j%4)}{stflags}")
    if o.stamps:
        e("s_waitcnt vmcnt(0)")
        stampn[0] = 0
        stamp()
        stamp_dump()
    if o.spin:
        e("s_waitcnt vmcnt(0)")
        e("s_memrealtime s[58:59]")
        e("s_waitcnt lgkmcnt(0)")
        if o.spin == 1:
            e("s_mov_b32 s64, 20000")
        elif o.spin == 2:
            e("s_sub_u32 s64, s58, s52")
            e("s_mul_i32 s64, s64, 3")
        elif o.spin == 3:
            e("s_sub_u32 s64, s56, s52")
            e("s_mul_i32 s64, s64, 30")
        elif o.spin >= 4:
            e(f"v_readlane_b32 s64, v252, {o.spin}")
            e("s_nop 3")
            e("s_mul_i32 s64, s64, 10")
        g.lab("L_spin")
        e("s_sleep 2")
        e("s_memrealtime s[58:59]")
        e("s_waitcnt lgkmcnt(0)")
        e("s_sub_u32 s65, s58, s52")
        e("s_cmp_lt_u32 s65, s64")
        e("s_cbranch_scc1 L_spin")
        e("s_endpgm")
    if o.dbg:
        e(f"s_cmp_lg_u32 {sr(S_TMP)}, 7")
        e("s_cbranch_scc1 L_end")
        e("s_waitcnt vmcnt(0)")
        e("s_memrealtime s[58:59]")
        e("s_memtime s[60:61]")
        e("s_waitcnt lgkmcnt(0)")
        e("s_mov_b32 s32, s48")
        e("s_and_b32 s33, s49, 0xffff")
        e("s_mov_b32 s34, 64")
        e("s_mov_b32 s35, 0x20000")
        e("s_not_b32 s62, s52")
        e("v_writelane_b32 v252, s62, 0")
        e("v_writelane_b32 v252, s58, 1")
        e("s_not_b32 s62, s58")
        e("v_writelane_b32 v252, s62, 2")
        e("s_sub_u32 s62, s56, s52")
        e("v_writelane_b32 v252, s62, 3")
        e("s_sub_u32 s62, s58, s52")
        e("s_lshl_b32 s62, s62, 16")
        e("s_sub_u32 s63, s60, s50")
        e("s_lshr_b32 s63, s63, 3")
        e("s_or_b32 s62, s62, s63")
        e("s_getreg_b32 s63, hwreg(HW_REG_XCC_ID)")
        e("s_and_b32 s63, s63, 7")
        e("s_add_u32 m0, s63, 8")
        e("s_nop 3")
        e("v_writelane_b32 v252, s62, m0")
        e(f"v_mbcnt_lo_u32_b32 {vr(V_X1)}, -1, 0")
        e(f"v_mbcnt_hi_u32_b32 {vr(V_X1)}, -1, {vr(V_X1)}")
        e(f"v_lshlrev_b32 {vr(V_X1)}, 2, {vr(V_X1)}")
        e(f"buffer_atomic_umax v252, {vr(V_X1)}, s[32:35], 0 offen")
    g.lab("L_end")
    e("s_endpgm")
    for b in fallbacks:
        g.lab(f"L_fb{b}")
        e("s_nop 15")
        for q in range(2):
            for x in rowmax(b, q, V_X0, V_X1): e(x)
            e(f"v_mul_f32 {vr(V_X0)}, {sr(S_C)}, {vr(V_X0)}")
            e(f"v_sub_f32 {vr(V_X0)}, 0, {vr(V_X0)}")
            e(f"v_min_f32 {vr(V_X0)}, {vr(V_X0)}, {vr(V_NMC+q)}")
            e(f"v_sub_f32 {vr(V_X1)}, {vr(V_X0)}, {vr(V_NMC+q)}")
            e(f"v_exp_f32 {vr(V_X1)}, {vr(V_X1)}")
            e(f"v_mov_b32 {vr(V_NMC+q)}, {vr(V_X0)}")
            e(f"v_mul_f32 {vr(V_L+q)}, {vr(V_L+q)}, {vr(V_X1)}")
            for db in range(8):
                for i in range(4):
                    r = V_O + 4 * (2 * db + q) + i
                    e(f"v_mul_f32 {vr(r)}, {vr(r)}, {vr(V_X1)}")
        for x in sm_linear(b): e(x)
        e("s_nop 1")
        e(f"s_branch L_ret{b}")

    nv = 256 if (o.stamps or o.dbg) else NVGPR
    out = HEADER
    out += f"; @launch grid=(256,1,1) block=(512,1,1) lds=163840\n"
    out += '.amdgcn_target "amdgcn-amd-amdhsa--gfx950"\n.text\n'
    out += f".globl {NAME}_kernel\n.p2align 8\n.type {NAME}_kernel,@function\n{NAME}_kernel:\n"
    out += "\n".join(g.lines) + "\n"
    out += f""".section .rodata,"a"
.p2align 6
.amdhsa_kernel {NAME}_kernel
  .amdhsa_next_free_vgpr {nv}
  .amdhsa_next_free_sgpr {102 if (o.stamps or o.dbg) else 48}
  .amdhsa_accum_offset {nv}
  .amdhsa_group_segment_fixed_size 0
  .amdhsa_kernarg_size 48
  .amdhsa_user_sgpr_count 2
  .amdhsa_user_sgpr_kernarg_segment_ptr 1
  .amdhsa_system_sgpr_workgroup_id_x 1
.end_amdhsa_kernel
"""
    return out

def main():
    ap = argparse.ArgumentParser()
    il = lambda s: [int(x) for x in s.split(",")]
    ap.add_argument("-o", default="out.s")
    ap.add_argument("--nocompute", dest="compute", action="store_false")
    ap.add_argument("--nostore", dest="store", action="store_false")
    ap.add_argument("--strided", action="store_true")
    ap.add_argument("--ldflags", default="nt")
    ap.add_argument("--qflags", default="")
    ap.add_argument("--stflags", default="")
    ap.add_argument("--thr", type=float, default=65536.0)
    ap.add_argument("--rdgaps", type=int, default=12)
    ap.add_argument("--kstep2", action="store_true")
    ap.add_argument("--dm0", type=int, default=0)
    ap.add_argument("--dm1", type=int, default=14)
    ap.add_argument("--st_iter", type=il, default=[2, 3, 4, 5, 6, 7, 8, 9])
    ap.add_argument("--q_iter", type=il, default=[3, 4, 5, 6, 7, 8, 9, 10])
    ap.add_argument("--prio", type=int, default=0)
    ap.add_argument("--pr_lo", type=int, default=4)
    ap.add_argument("--noprobar", dest="probar", action="store_false")
    ap.add_argument("--stamps", action="store_true")
    ap.add_argument("--stampmod", type=int, default=2)
    ap.add_argument("--l2only", type=int, default=0)
    ap.add_argument("--novalu", action="store_true")
    ap.add_argument("--dbg", action="store_true")
    ap.add_argument("--verbose", action="store_true")
    ap.add_argument("--pro1", type=int, default=8)
    ap.add_argument("--nkv", type=il, default=[2]*16)
    ap.add_argument("--pace", type=int, default=0)
    ap.add_argument("--pace0", type=int, default=0)
    ap.add_argument("--spin", type=int, default=0)
    ap.add_argument("--win", type=int, default=0)
    ap.add_argument("--xfirst", action="store_true")
    ap.add_argument("--stagger", type=int, default=0)
    ap.add_argument("--rdmode", type=int, default=0)
    ap.add_argument("--mf32", type=int, default=0)
    ap.add_argument("--nomfma", action="store_true")
    ap.add_argument("--qkord", type=int, default=0)
    ap.add_argument("--nodma", action="store_true")
    ap.add_argument("--nobar", action="store_true")
    ap.add_argument("--nord", action="store_true")
    ap.add_argument("--nochk", action="store_true")
    ap.add_argument("--tst", action="store_true")
    ap.add_argument("--halfrd", action="store_true")
    o = ap.parse_args()
    open(o.o, "w").write(build(o))

if __name__ == "__main__":
    main()
```

```python
import sys, struct, argparse

def f32bits(x):
    return struct.unpack('<I', struct.pack('<f', x))[0]

NAME = "standalone__mha_softmax__near_ridge"

HEADER = """; Kernarg layout for this problem (48 bytes, ptrs only, base s[0:1]):
"""

V_O, V_Q, V_S, V_P, V_KF, V_VF, V_KA, V_VA, V_T, V_PK = 0, 64, 96, 128, 144, 176, 208, 212, 220, 228
V_DK, V_DV, V_DQ = 232, 233, 234
V_L, V_BS, V_NMC, V_INV = 236, 238, 240, 242
V_X0, V_X1, V_X2, V_X3, V_OW, V_OR, V_X4 = 244, 245, 246, 247, 248, 249, 235
NVGPR = 252

S_QSRD, S_KSRD, S_VSRD, S_OSRD = 4, 8, 12, 16
S_QOFF, S_KOFF, S_VOFF, S_OOFF = 20, 21, 22, 23
S_HEAD, S_WLDS, S_C, S_THR = 24, 25, 26, 27
S_TMP, S_WQ, S_ONR, S_YOUNG = 28, 29, 30, 31
S_WSRD = 32
S_STAMPOFF = 38

BLK = 8192
KBASE, VBASE, QBASE = 0, 49152, 98304
SLOTS = [0, 1, 2, 3, 4, 5, 0, 1, 2, 3, 4, 0, 1, 2, 3, 4]
M16 = "v_mfma_f32_16x16x32_bf16"

def vr(b, n=1):
    return f"v{b}" if n == 1 else f"v[{b}:{b+n-1}]"
def sr(b, n=1):
    return f"s{b}" if n == 1 else f"s[{b}:{b+n-1}]"

class Gen:
    def __init__(self):
        self.lines = []
    def e(self, s):
        if s is None: return
        self.lines.append("    " + s)
    def lab(self, s):
        self.lines.append(s + ":")
    def c(self, s):
        self.lines.append("    ; " + s)

def build(o):
    g = Gen()
    e = g.e
    ldflags = (" " + o.ldflags) if o.ldflags else ""
    qflags = (" " + o.qflags) if o.qflags else ldflags
    stflags = (" " + o.stflags) if o.stflags else ""

    def dma_kv(kind, b):
        b %= 16
        srd = S_KSRD if kind == 'K' else S_VSRD
        soff = S_KOFF if kind == 'K' else S_VOFF
        v0 = V_DK if kind == 'K' else V_DV
        base = (KBASE if kind == 'K' else VBASE) + SLOTS[b] * BLK
        inc = BLK
        if o.strided and b == 15:
            inc += 255 * 131072
        return [f"s_add_u32 m0, {sr(S_WLDS)}, {base}",
                "s_nop 0",
                f"buffer_load_dwordx4 {vr(v0)}, {sr(srd,4)}, {sr(soff)} offen{ldflags} lds",
                f"s_add_u32 {sr(soff)}, {sr(soff)}, {inc}"]
    def dma_q(j):
        inc = 1024
        if j == 7:
            inc += 65536 - 8192
            if o.strided:
                inc += 255 * 65536
        r = [f"s_add_u32 m0, {sr(S_WQ)}, {j*1024}",
             f"v_xor_b32 {vr(V_X3)}, {(j&3)<<6}, {vr(V_DQ)}",
             f"buffer_load_dwordx4 {vr(V_X3)}, {sr(S_QSRD,4)}, {sr(S_QOFF)} offen{qflags} lds",
             f"s_add_u32 {sr(S_QOFF)}, {sr(S_QOFF)}, {inc}"]
        return r
    def o_read(j):
        return [f"ds_read_b128 {vr(V_PK,4)}, {vr(V_OR)} offset:{j*1024}"]
    def o_store(j):
        inc = 1024
        if j == 7:
            inc += 65536 - 8192
            if o.strided:
                inc += 255 * 65536
        r = []
        va = V_DQ
        if j & 1:
            r.append(f"v_xor_b32 {vr(V_X4)}, 64, {vr(V_DQ)}")
            va = V_X4
        r += [f"buffer_store_dwordx4 {vr(V_PK,4)}, {vr(va)}, {sr(S_OSRD,4)}, {sr(S_OOFF)} offen{stflags}",
              f"s_add_u32 {sr(S_OOFF)}, {sr(S_OOFF)}, {inc}"]
        if j == 7:
            r.append(f"s_mov_b32 {sr(S_OSRD+2)}, {sr(S_ONR)}")
        return r

    stampn = [0]
    def stamp():
        if not o.stamps or o.tst:
            return
        i = stampn[0]
        if 56 + 2 * i + 1 > 101:
            return
        e(f"s_memtime s[{56+2*i}:{57+2*i}]")
        stampn[0] += 1
    def stamp_dump():
        if not o.stamps:
            return
        e(f"s_memrealtime s[54:55]")
        e("s_waitcnt lgkmcnt(0)")
        if o.tst:
            e(f"v_writelane_b32 v252, s56, 15")
            e(f"v_writelane_b32 v252, s58, 47")
        for i in range(stampn[0]):
            e(f"v_writelane_b32 v252, s{56+2*i}, {i}")
        e(f"v_writelane_b32 v252, s54, 31")
        e(f"v_writelane_b32 v252, s50, 30")
        e(f"v_writelane_b32 v252, s52, 29")
        e(f"s_getreg_b32 s55, hwreg(HW_REG_XCC_ID)")
        e(f"v_writelane_b32 v252, s55, 28")
        e(f"v_mbcnt_lo_u32_b32 v253, -1, 0")
        e(f"v_mbcnt_hi_u32_b32 v253, -1, v253")
        e(f"v_lshlrev_b32 v253, 2, v253")
        e(f"buffer_store_dword v252, v253, {sr(S_WSRD,4)}, {sr(S_STAMPOFF)} offen")

    st_iter = o.st_iter
    q_iter = o.q_iter
    VLA = 3 if o.stagger else 4
    nkv = o.nkv
    assert sum(nkv) == 32
    lag0 = 0
    while True:
        c = -lag0; ok = True
        for b in range(16):
            c += nkv[b]
            if c > 2 * (b + 1): ok = False
        if ok: break
        lag0 += 1
    item = lambda i: ('K', i // 2 + 6) if i % 2 == 0 else ('V', i // 2 + VLA)
    kvops = {}
    c = -lag0
    for b in range(16):
        kvops[b] = [item(i) for i in range(c, c + nkv[b])]
        c += nkv[b]
    ext = {b: [] for b in range(16)}
    for j in range(8):
        if o.store:
            ext[st_iter[j]].append(('ST', j))
    for j in range(8):
        assert q_iter[j] >= st_iter[j]
        ext[q_iter[j]].append(('Q', j))
    ops = {b: (ext[b] + kvops[b] if o.xfirst else kvops[b] + ext[b]) for b in range(16)}
    if o.stamps:
        ops[15].append(('STAMP', 0))
    def seq_before(b):
        seq = []
        for it in range(b - 16, b):
            for k, x in ops[it % 16]:
                if it < 0 and k in ('K', 'V'): x -= 16
                seq.append((it, k, x))
        return seq
    def vm_wait(b):
        seq = seq_before(b)
        need = [i for i, (it, k, x) in enumerate(seq) if (k, x) in (('K', b + 2), ('V', b))]
        assert len(need) == 2, (b, need)
        if b == 14:
            need += [i for i, (it, k, x) in enumerate(seq) if k == 'Q' and it >= 0]
        for i, (it, k, x) in enumerate(seq):
            if it < 0 and k in ('ST', 'Q'): assert i < max(need)
        return len(seq) - 1 - max(need)
    pro_items = [(k, x) for (it, k, x) in seq_before(0) if (k == 'K' and x >= 2) or (k == 'V' and x >= 0)]
    if o.verbose:
        for b in range(16):
            fl = [b - it for (it, k, x) in seq_before(b) if (k, x) in (('K', b + 2), ('V', b))]
            print(b, ops[b], "wait", vm_wait(b), "flight", fl, file=sys.stderr)
        print("prologue", pro_items, file=sys.stderr)

    e(f"s_cmp_ge_u32 s2, 256")
    e("s_cbranch_scc1 L_end")
    e("s_load_dwordx4 s[40:43], s[0:1], 0")
    e("s_load_dwordx4 s[44:47], s[0:1], 16")
    if o.dbg:
        e("s_load_dwordx2 s[48:49], s[0:1], 32")
        e("s_memtime s[50:51]")
        e("s_memrealtime s[52:53]")
    if o.stamps:
        e("s_load_dwordx2 s[48:49], s[0:1], 40")
        e("s_memtime s[50:51]")
        e("s_memrealtime s[52:53]")
    e(f"v_lshrrev_b32 v1, 6, v0")
    e(f"v_and_b32 v2, 63, v0")
    e(f"v_readfirstlane_b32 {sr(S_TMP)}, v1")
    e(f"v_lshrrev_b32 v3, 4, v2")
    e(f"v_and_b32 v4, 15, v2")
    e(f"v_lshl_add_u32 v5, v1, 2, v3")
    e(f"v_and_b32 v6, 15, v5")
    e(f"v_xor_b32 v6, v6, v4")
    e(f"v_lshlrev_b32 v6, 4, v6")
    e(f"v_lshl_add_u32 {vr(V_DK)}, v5, 8, v6")
    e(f"v_and_b32 v6, 7, v5")
    e(f"v_lshlrev_b32 v6, 1, v6")
    e(f"v_xor_b32 v6, v6, v4")
    e(f"v_lshlrev_b32 v6, 4, v6")
    e(f"v_lshl_add_u32 {vr(V_DV)}, v5, 8, v6")
    e(f"v_lshl_add_u32 v5, v1, 5, v3")
    e(f"v_lshlrev_b32 v5, 8, v5")
    e(f"v_xor_b32 v6, v3, v4")
    e(f"v_lshl_add_u32 {vr(V_DQ)}, v6, 4, v5")
    e(f"s_lshl_b32 {sr(S_WLDS)}, {sr(S_TMP)}, 10")
    e(f"s_lshl_b32 {sr(S_WQ)}, {sr(S_TMP)}, 13")
    e(f"s_add_u32 {sr(S_WQ)}, {sr(S_WQ)}, {QBASE}")
    e(f"s_lshr_b32 {sr(S_YOUNG)}, {sr(S_TMP)}, 2")
    if o.strided:
        e(f"s_lshl_b32 {sr(S_QOFF)}, s2, 16")
        e(f"s_lshl_b32 {sr(S_KOFF)}, s2, 17")
        e(f"s_mov_b32 {sr(S_QSRD+2)}, {1<<26}")
        e(f"s_mov_b32 {sr(S_KSRD+2)}, {1<<27}")
        e(f"s_mov_b32 {sr(S_VSRD+2)}, {1<<27}")
        e(f"s_mov_b32 {sr(S_ONR)}, {1<<26}")
        e(f"s_sub_u32 {sr(S_OOFF)}, {sr(S_QOFF)}, {65536*256}")
    else:
        e(f"s_lshl_b32 {sr(S_QOFF)}, s2, 18")
        e(f"s_lshl_b32 {sr(S_KOFF)}, s2, 19")
        e(f"s_add_u32 {sr(S_QSRD+2)}, {sr(S_QOFF)}, {1<<18}")
        e(f"s_add_u32 {sr(S_KSRD+2)}, {sr(S_KOFF)}, {1<<19}")
        e(f"s_mov_b32 {sr(S_VSRD+2)}, {sr(S_KSRD+2)}")
        e(f"s_mov_b32 {sr(S_ONR)}, {sr(S_QSRD+2)}")
        e(f"s_sub_u32 {sr(S_OOFF)}, {sr(S_QOFF)}, 65536")
    e(f"s_mov_b32 {sr(S_OSRD+2)}, 0")
    if o.l2only:
        e(f"s_and_b32 {sr(S_QOFF)}, s2, {o.l2only-1}")
        e(f"s_lshl_b32 {sr(S_KOFF)}, {sr(S_QOFF)}, 19")
        e(f"s_lshl_b32 {sr(S_QOFF)}, {sr(S_QOFF)}, 18")
        e(f"s_add_u32 {sr(S_QSRD+2)}, {sr(S_QOFF)}, {1<<18}")
        e(f"s_add_u32 {sr(S_KSRD+2)}, {sr(S_KOFF)}, {1<<19}")
        e(f"s_mov_b32 {sr(S_VSRD+2)}, {sr(S_KSRD+2)}")
    e(f"s_mov_b32 {sr(S_VOFF)}, {sr(S_KOFF)}")
    for srd in (S_QSRD, S_KSRD, S_VSRD, S_OSRD):
        e(f"s_mov_b32 {sr(srd+3)}, 0x20000")
    e("s_waitcnt lgkmcnt(0)")
    for srd, p in ((S_KSRD, 42), (S_QSRD, 40), (S_VSRD, 44), (S_OSRD, 46)):
        e(f"s_mov_b32 {sr(srd)}, s{p}")
        e(f"s_and_b32 {sr(srd+1)}, s{p+1}, 0xffff")
    for x in dma_kv('K', 0): e(x)
    for j in range(4):
        for x in dma_q(j): e(x)
    if o.probar: e("s_barrier")
    for j in range(4, 8):
        for x in dma_q(j): e(x)
    for x in dma_kv('K', 1): e(x)
    if o.probar: e("s_barrier")
    e(f"v_xor_b32 v9, v3, v4")
    e(f"v_lshlrev_b32 v9, 4, v9")
    e(f"v_lshl_add_u32 {vr(V_KA)}, v4, 8, v9")
    for s in range(1, 4):
        e(f"v_xor_b32 {vr(V_KA+s)}, {s*64}, {vr(V_KA)}")
    e(f"v_lshrrev_b32 v9, 2, v2")
    e(f"v_and_b32 v10, 7, v9")
    e(f"v_lshlrev_b32 v10, 1, v10")
    e(f"v_bfe_u32 v11, v2, 1, 1")
    e(f"v_xor_b32 v10, v10, v11")
    e(f"v_lshlrev_b32 v10, 4, v10")
    e(f"v_lshl_add_u32 v10, v9, 8, v10")
    e(f"v_and_b32 v11, 1, v2")
    e(f"v_lshl_add_u32 v10, v11, 3, v10")
    e(f"v_add_u32 {vr(V_VA)}, {VBASE}, v10")
    for t in range(1, 8):
        e(f"v_xor_b32 {vr(V_VA+t)}, {t*32}, {vr(V_VA)}")
    e(f"v_and_b32 v9, 7, v4")
    e(f"v_lshrrev_b32 v10, 1, v3")
    e(f"v_xor_b32 v9, v9, v10")
    e(f"v_lshlrev_b32 v9, 4, v9")
    e(f"v_lshl_add_u32 v9, v4, 8, v9")
    e(f"v_and_b32 v10, 1, v3")
    e(f"v_lshl_add_u32 v9, v10, 3, v9")
    e(f"v_add_u32 {vr(V_OW)}, {sr(S_WQ)}, v9")
    e(f"v_lshlrev_b32 v9, 4, v2")
    e(f"v_add_u32 {vr(V_OR)}, {sr(S_WQ)}, v9")
    e(f"s_mov_b32 {sr(S_C)}, {hex(f32bits(128**-0.5 * 1.4426950408889634))}")
    e(f"s_mov_b32 {sr(S_THR)}, {hex(f32bits(o.thr))}")
    e(f"s_mov_b32 {sr(S_HEAD)}, 0")
    for i in range(2):
        e(f"v_mov_b32 {vr(V_L+i)}, 1.0")
        e(f"v_mov_b32 {vr(V_BS+i)}, 0")
    npro = min(o.pro1, len(pro_items))
    for k, x in pro_items[:npro]:
        for y in dma_kv(k, x): e(y)
    pro_rest = pro_items[npro:]
    if o.nodma:
        for k, x in pro_rest:
            for y in dma_kv(k, x): e(y)
        pro_rest = []
        for bb in range(VLA, 6):
            for x in dma_kv('V', bb): e(x)
        e("s_waitcnt vmcnt(0)")
    if o.stamps:
        e(f"s_mov_b32 {sr(S_WSRD)}, s48")
        e(f"s_and_b32 {sr(S_WSRD+1)}, s49, 0xffff")
        e(f"s_mov_b32 {sr(S_WSRD+2)}, {1<<24}")
        e(f"s_mov_b32 {sr(S_WSRD+3)}, 0x20000")
        e(f"s_lshl_b32 {sr(S_STAMPOFF)}, s2, 3")
        e(f"s_add_u32 {sr(S_STAMPOFF)}, {sr(S_STAMPOFF)}, {sr(S_TMP)}")
        e(f"s_lshl_b32 {sr(S_STAMPOFF)}, {sr(S_STAMPOFF)}, 11")
    if o.prio == 1:
        e(f"s_cmp_ge_u32 {sr(S_TMP)}, 4")
        e("s_cbranch_scc0 L_prio_done")
        e("s_setprio 1")
        g.lab("L_prio_done")

    def kreads(b):
        off = KBASE + SLOTS[b % 16] * BLK
        return [f"ds_read_b128 {vr(V_KF+4*(4*kb+s),4)}, {vr(V_KA+s)} offset:{off+4096*kb}" for kb in range(2) for s in range(4)]
    def qreads():
        r = []
        for s in range(4):
            a = V_Q + 4 * (4 + s)
            r.append([f"v_add_u32 {vr(a)}, {sr(S_WQ)}, {vr(V_KA+s)}",
                      f"ds_read_b128 {vr(V_Q+4*s,4)}, {vr(a)}"])
            r.append([f"ds_read_b128 {vr(a,4)}, {vr(a)} offset:4096"])
        return r
    def vreads(b):
        r = []
        for db in range(8):
            for w in range(2):
                off = SLOTS[b % 16] * BLK + w * 4096
                r.append(f"ds_read_b64_tr_b16 {vr(V_VF+4*db+2*w,2)}, {vr(V_VA+db)} offset:{off}")
        return r
    def qk(b):
        S = V_S + 16 * (b % 2)
        if o.mf32 in (1, 2):
            r = []
            for s in range(8):
                r += [f"v_mfma_f32_32x32x16_bf16 {vr(S,16)}, {vr(V_KF+4*s,4)}, {vr(V_Q+4*s,4)}, " + ("0" if s == 0 else vr(S, 16)), None]
            return r
        if o.nomfma: return [None] * 16
        order = [(qb, kb, s) for qb in range(2) for kb in range(2) for s in range(4)]
        if o.qkord == 1:
            order = [(qb, kb, s) for s in range(4) for qb in range(2) for kb in range(2)]
        if o.qkord == 2:
            order = [(qb, kb, s) for kb in range(2) for s in range(4) for qb in range(2)]
        r = []
        for qb, kb, s in order:
            D = S + 8 * qb + 4 * kb
            r.append(f"{M16} {vr(D,4)}, {vr(V_KF+4*(4*kb+s),4)}, {vr(V_Q+4*(4*qb+s),4)}, " + ("0" if s == 0 else vr(D, 4)))
        return r
    def pv(b):
        b %= 16
        P = V_P + 8 * (b % 2)
        r = []
        if o.mf32 in (1, 3):
            for u in range(2):
                for t in range(4):
                    O = V_O + 16 * t
                    cc = "0" if (b == 0 and u == 0) else vr(O, 16)
                    r += [f"v_mfma_f32_32x32x16_bf16 {vr(O,16)}, {vr(V_VF+4*(4*u+t),4)}, {vr(P+4*u,4)}, {cc}", None]
            return r
        if o.nomfma: return [None] * 16
        for db in range(8):
            for qb in range(2):
                O = V_O + 4 * (2 * db + qb)
                cc = "0" if b == 0 else vr(O, 4)
                r.append(f"{M16} {vr(O,4)}, {vr(V_VF+4*db,4)}, {vr(P+4*qb,4)}, {cc}")
        return r
    T = lambda k: vr(V_T + k % 8)
    def sm_parts(b, lupd):
        S = V_S + 16 * (b % 2)
        P = V_P + 8 * (b % 2)
        F = lambda k: f"v_fma_f32 {T(k)}, {vr(S+k)}, {sr(S_C)}, {vr(V_NMC + k // 8)}"
        E = lambda k: f"v_exp_f32 {T(k)}, {T(k)}"
        def A(k):
            q = k // 8
            if k % 8 == 0:
                if lupd == 'add': return [f"v_add_f32 {vr(V_L+q)}, {vr(V_L+q)}, {vr(V_BS+q)}"]
                if lupd == 'mov': return [f"v_mov_b32 {vr(V_L+q)}, {vr(V_BS+q)}"]
                return []
            if k % 8 == 1:
                return [f"v_add_f32 {vr(V_BS+q)}, {T(k-1)}, {T(k)}"]
            return [f"v_add_f32 {vr(V_BS+q)}, {vr(V_BS+q)}, {T(k)}"]
        C = lambda k: f"v_cvt_pk_bf16_f32 {vr(P+k//2)}, {T(k-1)}, {T(k)}"
        gaps = [[] for _ in range(32)]
        for k in range(16):
            gaps[2 * k].append(E(k))
            if k + 1 < 16: gaps[2 * k + 1].append(F(k + 1))
            gaps[2 * k + 1] += A(k)
            if k % 2 == 1: gaps[2 * k + 1].append(C(k))
        return [F(0)], gaps
    def sm_linear(b):
        pre, gaps = sm_parts(b, None)
        r = list(pre)
        for i, gp in enumerate(gaps):
            if i == 31: r.append("s_nop 0")
            r += gp
        return r
    def xreduce(dst, op, tmp):
        return [f"v_mov_b32 {vr(tmp)}, {vr(dst)}", "s_nop 1",
                f"v_permlane32_swap_b32 {vr(dst)}, {vr(tmp)}",
                f"{op} {vr(dst)}, {vr(dst)}, {vr(tmp)}",
                f"v_mov_b32 {vr(tmp)}, {vr(dst)}", "s_nop 1",
                f"v_permlane16_swap_b32 {vr(dst)}, {vr(tmp)}",
                f"{op} {vr(dst)}, {vr(dst)}, {vr(tmp)}"]
    def rowmax(b, q, dst, tmp):
        S = V_S + 16 * (b % 2) + 8 * q
        r = [f"v_max3_f32 {vr(dst)}, {vr(S)}, {vr(S+1)}, {vr(S+2)}",
             f"v_max3_f32 {vr(dst)}, {vr(dst)}, {vr(S+3)}, {vr(S+4)}",
             f"v_max3_f32 {vr(dst)}, {vr(dst)}, {vr(S+5)}, {vr(S+6)}",
             f"v_max_f32 {vr(dst)}, {vr(dst)}, {vr(S+7)}"]
        return r + xreduce(dst, "v_max_f32", tmp)
    def zipl(a, b):
        r = []
        for x, y in zip(a, b):
            if x.startswith("s_nop"):
                r.append("s_nop 0")
            else:
                r += [x, y]
        return r
    def minit():
        a = rowmax(0, 0, V_X0, V_X1) + [f"v_mul_f32 {vr(V_NMC)}, {sr(S_C)}, {vr(V_X0)}", f"v_sub_f32 {vr(V_NMC)}, 0, {vr(V_NMC)}"]
        b = rowmax(0, 1, V_X2, V_X3) + [f"v_mul_f32 {vr(V_NMC+1)}, {sr(S_C)}, {vr(V_X2)}", f"v_sub_f32 {vr(V_NMC+1)}, 0, {vr(V_NMC+1)}"]
        return zipl(a, b)
    def linv():
        a = [f"v_add_f32 {vr(V_L)}, {vr(V_L)}, {vr(V_BS)}"] + xreduce(V_L, "v_add_f32", V_X0) + [f"v_rcp_f32 {vr(V_INV)}, {vr(V_L)}"]
        b = [f"v_add_f32 {vr(V_L+1)}, {vr(V_L+1)}, {vr(V_BS+1)}"] + xreduce(V_L + 1, "v_add_f32", V_X2) + [f"v_rcp_f32 {vr(V_INV+1)}, {vr(V_L+1)}"]
        return zipl(a, b)
    def opack():
        r = []
        n = 0
        for db in range(8):
            x = (db & 3) << 5
            va = V_OW
            if x:
                va = V_X2
                r.append(f"v_xor_b32 {vr(V_X2)}, {x}, {vr(V_OW)}")
            for qb in range(2):
                pk = V_PK + 2 * (n % 2); n += 1
                base = V_O + 4 * (2 * db + qb)
                for i in range(4):
                    r.append(f"v_mul_f32 {vr(base+i)}, {vr(base+i)}, {vr(V_INV+qb)}")
                for i in range(2):
                    r.append(f"v_cvt_pk_bf16_f32 {vr(pk+i)}, {vr(base+2*i)}, {vr(base+2*i+1)}")
                r.append(f"ds_write_b64 {vr(va)}, {vr(pk,2)} offset:{128*(db>>2)+4096*qb}")
        return r

    def spread(gaps, groups, a, b, front=False, step=1):
        idx = list(range(a, b, step))
        for i, gr in enumerate(groups):
            gi = idx[i * len(idx) // max(len(groups), 1)]
            if front: gaps[gi] = list(gr) + gaps[gi]
            else: gaps[gi] += list(gr)
    single = lambda l: [[x] for x in l]

    comp = o.compute
    nafter = npro
    e(f"s_waitcnt vmcnt({nafter})")
    e("s_barrier")
    if comp:
        for gr in qreads():
            for x in gr: e(x)
        for x in kreads(0): e(x)
        e("s_waitcnt lgkmcnt(0)")
        m0 = qk(0)
        for i, x in enumerate(m0):
            e(x)
            if i % 3 == 0 and pro_rest:
                k, xx = pro_rest.pop(0)
                for y in dma_kv(k, xx): e(y)
        for x in kreads(1): e(x)
        e("s_nop 3")
    for k, xx in pro_rest:
        for y in dma_kv(k, xx): e(y)
    stamp_dump()
    if o.dbg:
        e("s_memrealtime s[56:57]")
        e(f"v_mov_b32 v252, 0")
    if o.spin == 20:
        e(f"s_cmp_lg_u32 {sr(S_TMP)}, 0")
        e("s_cbranch_scc1 L_noat")
        e("s_mov_b32 s32, s48")
        e("s_and_b32 s33, s49, 0xffff")
        e("s_mov_b32 s34, 4")
        e("s_mov_b32 s35, 0x20000")
        e("s_not_b32 s62, s52")
        e("v_mov_b32 v254, s62")
        e(f"v_mbcnt_lo_u32_b32 v253, -1, 0")
        e(f"v_mbcnt_hi_u32_b32 v253, -1, v253")
        e(f"v_lshlrev_b32 v253, 2, v253")
        e("buffer_atomic_umax v254, v253, s[32:35], 0 offen sc1")
        e("s_waitcnt vmcnt(0)")
        g.lab("L_noat")
    g.lines.append(".p2align 6")
    g.lab("L_head")
    fallbacks = []
    def prio_young(p):
        lab = f"L_pr{len(g.lines)}"
        return [f"s_cmp_eq_u32 {sr(S_YOUNG)}, 0", f"s_cbranch_scc1 {lab}", f"s_setprio {p}", f"{lab}:"]
    def emit(x):
        if x.endswith(":"): g.lab(x[:-1])
        else: e(x)
    for b in range(16):
        g.c(f"==== iter {b} phase A")
        if b == 0: stamp()
        pre, gaps = sm_parts(b, None if b == 0 else ('mov' if b == 1 else 'add'))
        if o.novalu and b >= 2:
            pre, gaps = [], [[] for _ in range(32)]
        if b == 0:
            lin = pre + [x for gp in gaps for x in gp]
            pre = []
            gaps = [[] for _ in range(32)]
            ini = linv() + minit()
            spread(gaps, single(ini), 0, 10)
            lin.insert(len(lin) - 2, "s_nop 0")
            spread(gaps, single(lin), 10, 32)
        nr = o.rdgaps
        vrd = vreads(b - 1); krd = kreads(b + 2)
        if o.nord and b > 1:
            vrd = []; krd = []
        if o.halfrd:
            vrd = vrd[:8] if b % 2 else vrd[8:]
            krd = krd[:4] if b % 2 else krd[4:]
        if o.rdmode == 0:
            spread(gaps, single(vrd), 0, nr)
        elif o.rdmode == 1:
            spread(gaps, [vrd[i:i+2] for i in range(0, len(vrd), 2)], 0, nr, step=2)
        elif o.rdmode == 2:
            spread(gaps, single(vrd), 0, nr, front=True)
        elif o.rdmode == 3:
            spread(gaps, [vrd[i:i+4] for i in range(0, len(vrd), 4)], 0, nr, step=2)
        for j in range(8):
            if o.store and st_iter[j] == b:
                spread(gaps, [o_read(j)], nr, nr + 1)
        if b == 1:
            spread(gaps, single(opack()), 2, 16)
        if o.rdmode == 1:
            spread(gaps, single(krd), 16, 16 + nr, step=2)
        elif o.rdmode == 2:
            spread(gaps, single(krd), 16, 16 + nr, front=True)
        elif o.rdmode == 3:
            spread(gaps, [krd[i:i+2] for i in range(0, len(krd), 2)], 16, 16 + nr, step=2)
        else:
            spread(gaps, single(krd), 16, 16 + nr)
        if b == 14 and not o.nodma:
            spread(gaps, qreads(), 16, 16 + nr)
        dm = []
        for k, x in ops[b]:
            cap = [f"s_waitcnt vmcnt({o.win-1})"] if o.win else []
            if k in ('K', 'V'): dm.append(cap + dma_kv(k, x))
            elif k == 'ST': dm.append(cap + o_store(x))
            elif k == 'Q': dm.append(cap + dma_q(x))
        if o.nodma: dm = []
        spread(gaps, dm, 16 + o.dm0, 16 + o.dm1)
        if o.prio == 2:
            gaps[o.pr_lo] = gaps[o.pr_lo] + prio_young(0)
        if o.stagger:
            e(f"s_cmp_eq_u32 {sr(S_YOUNG)}, {0 if o.stagger == 1 else 1}")
            e(f"s_cbranch_scc1 L_sa{b}")
            e(f"s_waitcnt vmcnt({vm_wait(b)}) lgkmcnt(0)")
            e("s_barrier")
            g.lab(f"L_sa{b}")
        e("s_waitcnt lgkmcnt(0)")
        if o.tst and b > 0:
            e(f"v_writelane_b32 v252, s56, {b-1}")
            e(f"v_writelane_b32 v252, s58, {32+b-1}")
        if comp:
            for x in pre: e(x)
            mf = qk(b + 1)
            for i in range(16):
                e(mf[i])
                for x in gaps[i]: emit(x)
        g.c(f"==== iter {b} phase B")
        if b % o.stampmod == 0: stamp()
        if o.prio == 2:
            for x in prio_young(1): emit(x)
        if o.stagger:
            e(f"s_cmp_lg_u32 {sr(S_YOUNG)}, {0 if o.stagger == 1 else 1}")
            e(f"s_cbranch_scc1 L_sb{b}")
        e(f"s_waitcnt vmcnt({vm_wait(b)}) lgkmcnt(0)")
        if not o.nobar: e("s_barrier")
        if o.stagger:
            g.lab(f"L_sb{b}")
            e("s_waitcnt lgkmcnt(0)")
        if o.pace:
            if o.pace0:
                e(f"s_cmp_ge_u32 {sr(S_HEAD)}, {o.pace0}")
                e(f"s_cbranch_scc1 L_np{b}")
            e(f"s_sleep {o.pace}")
            if o.pace0: g.lab(f"L_np{b}")
        if o.tst:
            e("s_memtime s[56:57]")
            e("s_memrealtime s[58:59]")
        if b % o.stampmod == 0: stamp()
        if comp:
            mf = pv(b - 1)
            for i in range(16):
                e(mf[i])
                for x in gaps[16 + i]: emit(x)
            if b >= 1 and not o.nochk:
                e(f"v_add_f32 {vr(V_X0)}, {vr(V_BS)}, {vr(V_BS+1)}")
                e(f"v_cmp_nge_f32 vcc, {sr(S_THR)}, {vr(V_X0)}")
                e(f"s_cbranch_vccnz L_fb{b}")
                g.lab(f"L_ret{b}")
                fallbacks.append(b)
        else:
            for gr in dm:
                for x in gr: e(x)
    stamp()
    stamp_dump()
    if o.stamps:
        e(f"s_add_u32 {sr(S_STAMPOFF)}, {sr(S_STAMPOFF)}, 256")
    if o.dbg:
        e("s_memrealtime s[58:59]")
        e("s_waitcnt lgkmcnt(0)")
        e("s_sub_u32 s58, s58, s52")
        e(f"s_add_u32 m0, {sr(S_HEAD)}, 4")
        e("s_nop 3")
        e(f"v_writelane_b32 v252, s58, m0")
    e(f"s_add_u32 {sr(S_HEAD)}, {sr(S_HEAD)}, 1")
    e(f"s_cmp_lt_u32 {sr(S_HEAD)}, 4")
    e("s_cbranch_scc1 L_head")
    g.c("==== tail")
    if comp:
        for x in vreads(15): e(x)
        for x in linv(): e(x)
        e("s_waitcnt lgkmcnt(0)")
        for x in pv(15): e(x)
        for x in opack(): e(x)
    if o.store:
        e(f"v_xor_b32 {vr(V_X4)}, 64, {vr(V_DQ)}")
        for j in range(8):
            pk = V_KF + 4 * j
            e(f"ds_read_b128 {vr(pk,4)}, {vr(V_OR)} offset:{j*1024}")
        for j in range(8):
            pk = V_KF + 4 * j
            e(f"s_waitcnt lgkmcnt({7-j})")
            if j == 4:
                e(f"s_add_u32 {sr(S_OOFF)}, {sr(S_OOFF)}, 4096")
            e(f"buffer_store_dwordx4 {vr(pk,4)}, {vr(V_X4 if j & 1 else V_DQ)}, {sr(S_OSRD,4)}, {sr(S_OOFF)} offen offset:{1024*(j%4)}{stflags}")
    if o.stamps:
        e("s_waitcnt vmcnt(0)")
        stampn[0] = 0
        stamp()
        stamp_dump()
    if o.spin:
        e("s_waitcnt vmcnt(0)")
        e("s_memrealtime s[58:59]")
        e("s_waitcnt lgkmcnt(0)")
        if o.spin == 1:
            e(f"s_mov_b32 s64, {o.spinv}")
        elif o.spin == 20:
            e("s_mov_b32 s32, s48")
            e("s_and_b32 s33, s49, 0xffff")
            e(f"s_cmp_lg_u32 {sr(S_TMP)}, 0")
            e("s_cbranch_scc1 L_end")
            e("s_mov_b32 s34, 4")
            e("s_mov_b32 s35, 0x20000")
            e(f"v_mbcnt_lo_u32_b32 v253, -1, 0")
            e(f"v_mbcnt_hi_u32_b32 v253, -1, v253")
            e(f"v_lshlrev_b32 v253, 2, v253")
            e("v_mov_b32 v254, 0")
            e("buffer_atomic_umax v254, v253, s[32:35], 0 offen sc0 sc1")
            e("s_waitcnt vmcnt(0)")
            e("v_readfirstlane_b32 s52, v254")
            e("s_nop 3")
            e("s_not_b32 s52, s52")
            e(f"s_mov_b32 s64, {o.spinv}")
        elif o.spin == 2:
            e("s_sub_u32 s64, s58, s52")
            e("s_mul_i32 s64, s64, 3")
        elif o.spin == 3:
            e("s_sub_u32 s64, s56, s52")
            e("s_mul_i32 s64, s64, 30")
        elif 4 <= o.spin < 20:
            e(f"v_readlane_b32 s64, v252, {o.spin}")
            e("s_nop 3")
            e("s_mul_i32 s64, s64, 10")
        g.lab("L_spin")
        e("s_sleep 2")
        e("s_memrealtime s[58:59]")
        e("s_waitcnt lgkmcnt(0)")
        e("s_sub_u32 s65, s58, s52")
        e("s_cmp_lt_u32 s65, s64")
        e("s_cbranch_scc1 L_spin")
        e("s_endpgm")
    if o.dbg:
        e(f"s_cmp_lg_u32 {sr(S_TMP)}, 7")
        e("s_cbranch_scc1 L_end")
        e("s_waitcnt vmcnt(0)")
        e("s_memrealtime s[58:59]")
        e("s_memtime s[60:61]")
        e("s_waitcnt lgkmcnt(0)")
        e("s_mov_b32 s32, s48")
        e("s_and_b32 s33, s49, 0xffff")
        e("s_mov_b32 s34, 64")
        e("s_mov_b32 s35, 0x20000")
        e("s_not_b32 s62, s52")
        e("v_writelane_b32 v252, s62, 0")
        e("v_writelane_b32 v252, s58, 1")
        e("s_not_b32 s62, s58")
        e("v_writelane_b32 v252, s62, 2")
        e("s_sub_u32 s62, s56, s52")
        e("v_writelane_b32 v252, s62, 3")
        e("s_sub_u32 s62, s58, s52")
        e("s_lshl_b32 s62, s62, 16")
        e("s_sub_u32 s63, s60, s50")
        e("s_lshr_b32 s63, s63, 3")
        e("s_or_b32 s62, s62, s63")
        e("s_getreg_b32 s63, hwreg(HW_REG_XCC_ID)")
        e("s_and_b32 s63, s63, 7")
        e("s_add_u32 m0, s63, 8")
        e("s_nop 3")
        e("v_writelane_b32 v252, s62, m0")
        e(f"v_mbcnt_lo_u32_b32 {vr(V_X1)}, -1, 0")
        e(f"v_mbcnt_hi_u32_b32 {vr(V_X1)}, -1, {vr(V_X1)}")
        e(f"v_lshlrev_b32 {vr(V_X1)}, 2, {vr(V_X1)}")
        e(f"buffer_atomic_umax v252, {vr(V_X1)}, s[32:35], 0 offen")
    g.lab("L_end")
    e("s_endpgm")
    for b in fallbacks:
        g.lab(f"L_fb{b}")
        e("s_nop 15")
        for q in range(2):
            for x in rowmax(b, q, V_X0, V_X1): e(x)
            e(f"v_mul_f32 {vr(V_X0)}, {sr(S_C)}, {vr(V_X0)}")
            e(f"v_sub_f32 {vr(V_X0)}, 0, {vr(V_X0)}")
            e(f"v_min_f32 {vr(V_X0)}, {vr(V_X0)}, {vr(V_NMC+q)}")
            e(f"v_sub_f32 {vr(V_X1)}, {vr(V_X0)}, {vr(V_NMC+q)}")
            e(f"v_exp_f32 {vr(V_X1)}, {vr(V_X1)}")
            e(f"v_mov_b32 {vr(V_NMC+q)}, {vr(V_X0)}")
            e(f"v_mul_f32 {vr(V_L+q)}, {vr(V_L+q)}, {vr(V_X1)}")
            for db in range(8):
                for i in range(4):
                    r = V_O + 4 * (2 * db + q) + i
                    e(f"v_mul_f32 {vr(r)}, {vr(r)}, {vr(V_X1)}")
        for x in sm_linear(b): e(x)
        e("s_nop 1")
        e(f"s_branch L_ret{b}")

    nv = 256 if (o.stamps or o.dbg) else NVGPR
    out = HEADER
    out += f"; @launch grid=(256,1,1) block=(512,1,1) lds=163840\n"
    out += '.amdgcn_target "amdgcn-amd-amdhsa--gfx950"\n.text\n'
    out += f".globl {NAME}_kernel\n.p2align 8\n.type {NAME}_kernel,@function\n{NAME}_kernel:\n"
    out += "\n".join(g.lines) + "\n"
    out += f""".section .rodata,"a"
.p2align 6
.amdhsa_kernel {NAME}_kernel
  .amdhsa_next_free_vgpr {nv}
  .amdhsa_next_free_sgpr {102 if (o.stamps or o.dbg) else 48}
  .amdhsa_accum_offset {nv}
  .amdhsa_group_segment_fixed_size 0
  .amdhsa_kernarg_size 48
  .amdhsa_user_sgpr_count 2
  .amdhsa_user_sgpr_kernarg_segment_ptr 1
  .amdhsa_system_sgpr_workgroup_id_x 1
.end_amdhsa_kernel
"""
    return out

def main():
    ap = argparse.ArgumentParser()
    il = lambda s: [int(x) for x in s.split(",")]
    ap.add_argument("-o", default="out.s")
    ap.add_argument("--nocompute", dest="compute", action="store_false")
    ap.add_argument("--nostore", dest="store", action="store_false")
    ap.add_argument("--strided", action="store_true")
    ap.add_argument("--ldflags", default="nt")
    ap.add_argument("--qflags", default="")
    ap.add_argument("--stflags", default="")
    ap.add_argument("--thr", type=float, default=65536.0)
    ap.add_argument("--rdgaps", type=int, default=12)
    ap.add_argument("--kstep2", action="store_true")
    ap.add_argument("--dm0", type=int, default=0)
    ap.add_argument("--dm1", type=int, default=14)
    ap.add_argument("--st_iter", type=il, default=[2, 3, 4, 5, 6, 7, 8, 9])
    ap.add_argument("--q_iter", type=il, default=[3, 4, 5, 6, 7, 8, 9, 10])
    ap.add_argument("--prio", type=int, default=0)
    ap.add_argument("--pr_lo", type=int, default=4)
    ap.add_argument("--noprobar", dest="probar", action="store_false")
    ap.add_argument("--stamps", action="store_true")
    ap.add_argument("--stampmod", type=int, default=2)
    ap.add_argument("--l2only", type=int, default=0)
    ap.add_argument("--novalu", action="store_true")
    ap.add_argument("--dbg", action="store_true")
    ap.add_argument("--verbose", action="store_true")
    ap.add_argument("--pro1", type=int, default=8)
    ap.add_argument("--nkv", type=il, default=[2]*16)
    ap.add_argument("--pace", type=int, default=0)
    ap.add_argument("--pace0", type=int, default=0)
    ap.add_argument("--spin", type=int, default=0)
    ap.add_argument("--spinv", type=int, default=20000)
    ap.add_argument("--win", type=int, default=0)
    ap.add_argument("--xfirst", action="store_true")
    ap.add_argument("--stagger", type=int, default=0)
    ap.add_argument("--rdmode", type=int, default=0)
    ap.add_argument("--mf32", type=int, default=0)
    ap.add_argument("--nomfma", action="store_true")
    ap.add_argument("--qkord", type=int, default=0)
    ap.add_argument("--nodma", action="store_true")
    ap.add_argument("--nobar", action="store_true")
    ap.add_argument("--nord", action="store_true")
    ap.add_argument("--nochk", action="store_true")
    ap.add_argument("--tst", action="store_true")
    ap.add_argument("--halfrd", action="store_true")
    o = ap.parse_args()
    open(o.o, "w").write(build(o))

if __name__ == "__main__":
    main()
```

```python
import sys, struct, argparse

def f32bits(x):
    return struct.unpack('<I', struct.pack('<f', x))[0]

NAME = "standalone__mha_softmax__near_ridge"

HEADER = """; Kernarg layout for this problem (48 bytes, ptrs only, base s[0:1]):
"""

V_O, V_Q, V_S, V_P, V_KF, V_VF, V_KA, V_VA, V_T, V_PK = 0, 64, 96, 128, 144, 176, 208, 212, 220, 228
V_DK, V_DV, V_DQ = 232, 233, 234
V_L, V_BS, V_NMC, V_INV = 236, 238, 240, 242
V_X0, V_X1, V_X2, V_X3, V_OW, V_OR, V_X4 = 244, 245, 246, 247, 248, 249, 235
NVGPR = 252

S_QSRD, S_KSRD, S_VSRD, S_OSRD = 4, 8, 12, 16
S_QOFF, S_KOFF, S_VOFF, S_OOFF = 20, 21, 22, 23
S_HEAD, S_WLDS, S_C, S_THR = 24, 25, 26, 27
S_TMP, S_WQ, S_ONR, S_YOUNG = 28, 29, 30, 31
S_WSRD = 32
S_STAMPOFF = 38

BLK = 8192
KBASE, VBASE, QBASE = 0, 32768, 65536
SLOTS = [0, 1, 2, 3] * 4
WST = 12288
QOFFS = [8192, 0]
M16 = "v_mfma_f32_16x16x32_bf16"

def vr(b, n=1):
    return f"v{b}" if n == 1 else f"v[{b}:{b+n-1}]"
def sr(b, n=1):
    return f"s{b}" if n == 1 else f"s[{b}:{b+n-1}]"

class Gen:
    def __init__(self):
        self.lines = []
    def e(self, s):
        if s is None: return
        self.lines.append("    " + s)
    def lab(self, s):
        self.lines.append(s + ":")
    def c(self, s):
        self.lines.append("    ; " + s)

def build(o):
    g = Gen()
    e = g.e
    ldflags = (" " + o.ldflags) if o.ldflags else ""
    qflags = (" " + o.qflags) if o.qflags else ldflags
    stflags = (" " + o.stflags) if o.stflags else ""

    def dma_kv(kind, b):
        b %= 16
        srd = S_KSRD if kind == 'K' else S_VSRD
        soff = S_KOFF if kind == 'K' else S_VOFF
        v0 = V_DK if kind == 'K' else V_DV
        base = (KBASE if kind == 'K' else VBASE) + SLOTS[b] * BLK
        inc = BLK
        if b == 15:
            inc += (o.hs - 1) * 131072
        if o.rot:
            return [f"s_add_u32 m0, {sr(S_WLDS)}, {base}",
                    f"s_add_u32 s39, {sr(soff)}, s37",
                    f"s_xor_b32 s39, s39, {sr(soff)}",
                    f"s_and_b32 s39, s39, 0x1ffff",
                    f"s_xor_b32 s39, s39, {sr(soff)}",
                    f"buffer_load_dwordx4 {vr(v0)}, {sr(srd,4)}, s39 offen{ldflags} lds",
                    f"s_add_u32 {sr(soff)}, {sr(soff)}, {inc}"]
        return [f"s_add_u32 m0, {sr(S_WLDS)}, {base}",
                "s_nop 0",
                f"buffer_load_dwordx4 {vr(v0)}, {sr(srd,4)}, {sr(soff)} offen{ldflags} lds",
                f"s_add_u32 {sr(soff)}, {sr(soff)}, {inc}"]
    def dma_q(j):
        inc = 1024
        if j == 7:
            inc += 65536 - 8192
            inc += (o.hs - 1) * 65536
        r = [f"s_add_u32 m0, {sr(S_WQ)}, {QOFFS[j >> 2] + (j & 3) * 1024}",
             f"v_xor_b32 {vr(V_X3)}, {(j&3)<<6}, {vr(V_DQ)}",
             f"buffer_load_dwordx4 {vr(V_X3)}, {sr(S_QSRD,4)}, {sr(S_QOFF)} offen{qflags} lds",
             f"s_add_u32 {sr(S_QOFF)}, {sr(S_QOFF)}, {inc}"]
        return r
    def o_read(j):
        return [f"ds_read_b128 {vr(V_PK,4)}, {vr(V_OR)} offset:{j*1024}"]
    def o_store(j):
        inc = 1024
        if j == 7:
            inc += 65536 - 8192
            inc += (o.hs - 1) * 65536
        r = []
        va = V_DQ
        if j & 1:
            r.append(f"v_xor_b32 {vr(V_X4)}, 64, {vr(V_DQ)}")
            va = V_X4
        r += [f"buffer_store_dwordx4 {vr(V_PK,4)}, {vr(va)}, {sr(S_OSRD,4)}, {sr(S_OOFF)} offen{stflags}",
              f"s_add_u32 {sr(S_OOFF)}, {sr(S_OOFF)}, {inc}"]
        if j == 7:
            r.append(f"s_mov_b32 {sr(S_OSRD+2)}, {sr(S_ONR)}")
        return r

    stampn = [0]
    def stamp():
        if not o.stamps or o.tst:
            return
        i = stampn[0]
        if 56 + 2 * i + 1 > 101:
            return
        e(f"s_memtime s[{56+2*i}:{57+2*i}]")
        stampn[0] += 1
    def stamp_dump():
        if not o.stamps:
            return
        e(f"s_memrealtime s[54:55]")
        e("s_waitcnt lgkmcnt(0)")
        if o.tst:
            e(f"v_writelane_b32 v252, s56, 15")
            e(f"v_writelane_b32 v252, s58, 47")
        for i in range(stampn[0]):
            e(f"v_writelane_b32 v252, s{56+2*i}, {i}")
        e(f"v_writelane_b32 v252, s54, 31")
        e(f"v_writelane_b32 v252, s50, 30")
        e(f"v_writelane_b32 v252, s52, 29")
        e(f"s_getreg_b32 s55, hwreg(HW_REG_XCC_ID)")
        e(f"v_writelane_b32 v252, s55, 28")
        e(f"v_mbcnt_lo_u32_b32 v253, -1, 0")
        e(f"v_mbcnt_hi_u32_b32 v253, -1, v253")
        e(f"v_lshlrev_b32 v253, 2, v253")
        e(f"buffer_store_dword v252, v253, {sr(S_WSRD,4)}, {sr(S_STAMPOFF)} offen")

    st_iter = o.st_iter
    q_iter = o.q_iter
    F = o.flight
    assert F <= 3
    KLA, VLA = 2 + F, F
    ext = {b: [] for b in range(16)}
    for j in range(8):
        if o.store:
            assert 2 <= st_iter[j] <= 16
            ext[st_iter[j] % 16].append(('ST', j))
    for j in range(8):
        assert -1 <= q_iter[j] <= 12
        if j >= 4: assert q_iter[j] >= st_iter[j - 4]
        ext[q_iter[j] % 16].append(('Q', j))
    assert st_iter == sorted(st_iter) and q_iter == sorted(q_iter)
    for b in range(16):
        assert sum(1 for k, _ in ext[b] if k == 'ST') <= 1
    kvops = {b: [('K', b + KLA), ('V', b + VLA)] for b in range(16)}
    ops = {b: (ext[b] + kvops[b] if o.xfirst else kvops[b] + ext[b]) for b in range(16)}
    if o.stamps:
        ops[15].append(('STAMP', 0))
    def seq_before(b):
        seq = []
        for it in range(b - 16, b):
            for k, x in ops[it % 16]:
                if it < 0 and k in ('K', 'V'): x -= 16
                seq.append((it, k, x))
        return seq
    def vm_wait(b):
        seq = seq_before(b)
        need = [i for i, (it, k, x) in enumerate(seq) if (k, x) in (('K', b + 2), ('V', b))]
        assert len(need) == 2, (b, need)
        if b == 14:
            need += [i for i, (it, k, x) in enumerate(seq) if k == 'Q']
        return len(seq) - 1 - max(need)
    sb = seq_before(0)
    first = min(i for i, (it, k, x) in enumerate(sb) if (k == 'K' and x >= 2) or (k == 'V' and x >= 0))
    pro_items = [(k, x) for (it, k, x) in sb[first:] if k != 'STAMP']
    for i, (it, k, x) in enumerate(sb):
        if k == 'Q' and it == -1: assert i >= first
    def pro_op(k, x):
        if k in ('K', 'V'): return dma_kv(k, x)
        if k == 'Q': return dma_q(x)
        return [f"buffer_store_dword {vr(V_DQ)}, {vr(V_DQ)}, {sr(S_OSRD,4)}, 0 offen"]
    if o.verbose:
        for b in range(16):
            print(b, ops[b], "wait", vm_wait(b), file=sys.stderr)
        print("prologue", pro_items, file=sys.stderr)

    e(f"s_cmp_ge_u32 s2, 256")
    e("s_cbranch_scc1 L_end")
    if o.rot:
        e(f"s_lshr_b32 s37, s2, {o.rot-1}")
        e("s_and_b32 s37, s37, 15")
        e("s_lshl_b32 s37, s37, 13")
    if o.xmap:
        e("s_and_b32 s3, s2, 7")
        e("s_lshl_b32 s3, s3, 5")
        e("s_lshr_b32 s2, s2, 3")
        e("s_or_b32 s2, s2, s3")
    e("s_mov_b32 s66, s2") if o.stamps else None
    e("s_load_dwordx4 s[40:43], s[0:1], 0")
    e("s_load_dwordx4 s[44:47], s[0:1], 16")
    if o.dbg:
        e("s_load_dwordx2 s[48:49], s[0:1], 32")
        e("s_memtime s[50:51]")
        e("s_memrealtime s[52:53]")
    if o.stamps:
        e("s_load_dwordx2 s[48:49], s[0:1], 40")
        e("s_memtime s[50:51]")
        e("s_memrealtime s[52:53]")
    e(f"v_lshrrev_b32 v1, 6, v0")
    e(f"v_and_b32 v2, 63, v0")
    e(f"v_readfirstlane_b32 {sr(S_TMP)}, v1")
    e(f"v_lshrrev_b32 v3, 4, v2")
    e(f"v_and_b32 v4, 15, v2")
    e(f"v_lshl_add_u32 v5, v1, 2, v3")
    e(f"v_and_b32 v6, 15, v5")
    e(f"v_xor_b32 v6, v6, v4")
    e(f"v_lshlrev_b32 v6, 4, v6")
    e(f"v_lshl_add_u32 {vr(V_DK)}, v5, 8, v6")
    e(f"v_and_b32 v6, 7, v5")
    e(f"v_lshlrev_b32 v6, 1, v6")
    e(f"v_xor_b32 v6, v6, v4")
    e(f"v_lshlrev_b32 v6, 4, v6")
    e(f"v_lshl_add_u32 {vr(V_DV)}, v5, 8, v6")
    e(f"v_lshl_add_u32 v5, v1, 5, v3")
    e(f"v_lshlrev_b32 v5, 8, v5")
    e(f"v_xor_b32 v6, v3, v4")
    e(f"v_lshl_add_u32 {vr(V_DQ)}, v6, 4, v5")
    e(f"s_lshl_b32 {sr(S_WLDS)}, {sr(S_TMP)}, 10")
    e(f"s_mul_i32 {sr(S_WQ)}, {sr(S_TMP)}, {WST}")
    e(f"s_add_u32 {sr(S_WQ)}, {sr(S_WQ)}, {QBASE}")
    e(f"s_lshr_b32 {sr(S_YOUNG)}, {sr(S_TMP)}, 2")
    if o.xwin:
        e("s_getreg_b32 s36, hwreg(HW_REG_XCC_ID)")
        e("s_and_b32 s36, s36, 1")
    if o.hs == 1:
        e("s_lshl_b32 s2, s2, 2")
        e("s_add_u32 s3, s2, 4")
    elif o.hs == 256:
        e("s_mov_b32 s3, 1024")
    else:
        lg = o.hs.bit_length() - 1
        e(f"s_lshr_b32 s3, s2, {lg}")
        e(f"s_lshl_b32 s3, s3, {lg+2}")
        e(f"s_and_b32 s2, s2, {o.hs-1}")
        e(f"s_add_u32 s2, s2, s3")
        e(f"s_add_u32 s3, s3, {4*o.hs}")
    e(f"s_lshl_b32 {sr(S_QOFF)}, s2, 16")
    e(f"s_lshl_b32 {sr(S_KOFF)}, s2, 17")
    e(f"s_lshl_b32 {sr(S_QSRD+2)}, s3, 16")
    e(f"s_lshl_b32 {sr(S_KSRD+2)}, s3, 17")
    e(f"s_mov_b32 {sr(S_VSRD+2)}, {sr(S_KSRD+2)}")
    e(f"s_mov_b32 {sr(S_ONR)}, {sr(S_QSRD+2)}")
    e(f"s_sub_u32 {sr(S_OOFF)}, {sr(S_QOFF)}, {65536*o.hs}")
    e(f"s_mov_b32 {sr(S_OSRD+2)}, 0")
    if o.l2only:
        e(f"s_and_b32 {sr(S_QOFF)}, s2, {o.l2only-1}")
        e(f"s_lshl_b32 {sr(S_KOFF)}, {sr(S_QOFF)}, 19")
        e(f"s_lshl_b32 {sr(S_QOFF)}, {sr(S_QOFF)}, 18")
        e(f"s_add_u32 {sr(S_QSRD+2)}, {sr(S_QOFF)}, {1<<18}")
        e(f"s_add_u32 {sr(S_KSRD+2)}, {sr(S_KOFF)}, {1<<19}")
        e(f"s_mov_b32 {sr(S_VSRD+2)}, {sr(S_KSRD+2)}")
    e(f"s_mov_b32 {sr(S_VOFF)}, {sr(S_KOFF)}")
    for srd in (S_QSRD, S_KSRD, S_VSRD, S_OSRD):
        e(f"s_mov_b32 {sr(srd+3)}, 0x20000")
    e("s_waitcnt lgkmcnt(0)")
    for srd, p in ((S_KSRD, 42), (S_QSRD, 40), (S_VSRD, 44), (S_OSRD, 46)):
        e(f"s_mov_b32 {sr(srd)}, s{p}")
        e(f"s_and_b32 {sr(srd+1)}, s{p+1}, 0xffff")
    for x in dma_kv('K', 0): e(x)
    for j in range(4):
        for x in dma_q(j): e(x)
    if o.probar: e("s_barrier")
    for j in range(4, 8):
        for x in dma_q(j): e(x)
    for x in dma_kv('K', 1): e(x)
    if o.probar: e("s_barrier")
    e(f"v_xor_b32 v9, v3, v4")
    e(f"v_lshlrev_b32 v9, 4, v9")
    e(f"v_lshl_add_u32 {vr(V_KA)}, v4, 8, v9")
    for s in range(1, 4):
        e(f"v_xor_b32 {vr(V_KA+s)}, {s*64}, {vr(V_KA)}")
    e(f"v_lshrrev_b32 v9, 2, v2")
    e(f"v_and_b32 v10, 7, v9")
    e(f"v_lshlrev_b32 v10, 1, v10")
    e(f"v_bfe_u32 v11, v2, 1, 1")
    e(f"v_xor_b32 v10, v10, v11")
    e(f"v_lshlrev_b32 v10, 4, v10")
    e(f"v_lshl_add_u32 v10, v9, 8, v10")
    e(f"v_and_b32 v11, 1, v2")
    e(f"v_lshl_add_u32 v10, v11, 3, v10")
    e(f"v_add_u32 {vr(V_VA)}, {VBASE}, v10")
    for t in range(1, 8):
        e(f"v_xor_b32 {vr(V_VA+t)}, {t*32}, {vr(V_VA)}")
    e(f"v_and_b32 v9, 7, v4")
    e(f"v_lshrrev_b32 v10, 1, v3")
    e(f"v_xor_b32 v9, v9, v10")
    e(f"v_lshlrev_b32 v9, 4, v9")
    e(f"v_lshl_add_u32 v9, v4, 8, v9")
    e(f"v_and_b32 v10, 1, v3")
    e(f"v_lshl_add_u32 v9, v10, 3, v9")
    e(f"v_add_u32 {vr(V_OW)}, {sr(S_WQ)}, v9")
    e(f"v_lshlrev_b32 v9, 4, v2")
    e(f"v_add_u32 {vr(V_OR)}, {sr(S_WQ)}, v9")
    e(f"s_mov_b32 {sr(S_C)}, {hex(f32bits(128**-0.5 * 1.4426950408889634))}")
    e(f"s_mov_b32 {sr(S_THR)}, {hex(f32bits(o.thr))}")
    e(f"s_mov_b32 {sr(S_HEAD)}, 0")
    for i in range(2):
        e(f"v_mov_b32 {vr(V_L+i)}, 1.0")
        e(f"v_mov_b32 {vr(V_BS+i)}, 0")
    npro = min(o.pro1, len(pro_items))
    for k, x in pro_items[:npro]:
        assert k != 'Q'
        for y in pro_op(k, x): e(y)
    pro_rest = pro_items[npro:]
    if o.stamps:
        e(f"s_mov_b32 {sr(S_WSRD)}, s48")
        e(f"s_and_b32 {sr(S_WSRD+1)}, s49, 0xffff")
        e(f"s_mov_b32 {sr(S_WSRD+2)}, {1<<24}")
        e(f"s_mov_b32 {sr(S_WSRD+3)}, 0x20000")
        e(f"s_lshl_b32 {sr(S_STAMPOFF)}, s66, 3")
        e(f"s_add_u32 {sr(S_STAMPOFF)}, {sr(S_STAMPOFF)}, {sr(S_TMP)}")
        e(f"s_lshl_b32 {sr(S_STAMPOFF)}, {sr(S_STAMPOFF)}, 11")
    if o.prio == 1:
        e(f"s_cmp_ge_u32 {sr(S_TMP)}, 4")
        e("s_cbranch_scc0 L_prio_done")
        e("s_setprio 1")
        g.lab("L_prio_done")

    def kreads(b):
        off = KBASE + SLOTS[b % 16] * BLK
        return [f"ds_read_b128 {vr(V_KF+4*(4*kb+s),4)}, {vr(V_KA+s)} offset:{off+4096*kb}" for kb in range(2) for s in range(4)]
    def qreads():
        r = []
        for s in range(4):
            a = V_Q + 4 * (4 + s)
            r.append([f"v_add_u32 {vr(a)}, {sr(S_WQ)}, {vr(V_KA+s)}",
                      f"ds_read_b128 {vr(V_Q+4*s,4)}, {vr(a)} offset:{QOFFS[0]}"])
            r.append([f"ds_read_b128 {vr(a,4)}, {vr(a)} offset:{QOFFS[1]}"])
        return r
    def vreads(b):
        r = []
        for db in range(8):
            for w in range(2):
                off = SLOTS[b % 16] * BLK + w * 4096
                r.append(f"ds_read_b64_tr_b16 {vr(V_VF+4*db+2*w,2)}, {vr(V_VA+db)} offset:{off}")
        return r
    def qk(b):
        S = V_S + 16 * (b % 2)
        if o.mf32 in (1, 2):
            r = []
            for s in range(8):
                r += [f"v_mfma_f32_32x32x16_bf16 {vr(S,16)}, {vr(V_KF+4*s,4)}, {vr(V_Q+4*s,4)}, " + ("0" if s == 0 else vr(S, 16)), None]
            return r
        if o.nomfma: return [None] * 16
        order = [(qb, kb, s) for qb in range(2) for kb in range(2) for s in range(4)]
        if o.qkord == 1:
            order = [(qb, kb, s) for s in range(4) for qb in range(2) for kb in range(2)]
        if o.qkord == 2:
            order = [(qb, kb, s) for kb in range(2) for s in range(4) for qb in range(2)]
        r = []
        for qb, kb, s in order:
            D = S + 8 * qb + 4 * kb
            r.append(f"{M16} {vr(D,4)}, {vr(V_KF+4*(4*kb+s),4)}, {vr(V_Q+4*(4*qb+s),4)}, " + ("0" if s == 0 else vr(D, 4)))
        return r
    def pv(b):
        b %= 16
        P = V_P + 8 * (b % 2)
        r = []
        if o.mf32 in (1, 3):
            for u in range(2):
                for t in range(4):
                    O = V_O + 16 * t
                    cc = "0" if (b == 0 and u == 0) else vr(O, 16)
                    r += [f"v_mfma_f32_32x32x16_bf16 {vr(O,16)}, {vr(V_VF+4*(4*u+t),4)}, {vr(P+4*u,4)}, {cc}", None]
            return r
        if o.nomfma: return [None] * 16
        for db in range(8):
            for qb in range(2):
                O = V_O + 4 * (2 * db + qb)
                cc = "0" if b == 0 else vr(O, 4)
                r.append(f"{M16} {vr(O,4)}, {vr(V_VF+4*db,4)}, {vr(P+4*qb,4)}, {cc}")
        return r
    T = lambda k: vr(V_T + k % 8)
    def sm_parts(b, lupd):
        S = V_S + 16 * (b % 2)
        P = V_P + 8 * (b % 2)
        F = lambda k: f"v_fma_f32 {T(k)}, {vr(S+k)}, {sr(S_C)}, {vr(V_NMC + k // 8)}"
        E = lambda k: f"v_exp_f32 {T(k)}, {T(k)}"
        def A(k):
            q = k // 8
            if k % 8 == 0:
                if lupd == 'add': return [f"v_add_f32 {vr(V_L+q)}, {vr(V_L+q)}, {vr(V_BS+q)}"]
                if lupd == 'mov': return [f"v_mov_b32 {vr(V_L+q)}, {vr(V_BS+q)}"]
                return []
            if k % 8 == 1:
                return [f"v_add_f32 {vr(V_BS+q)}, {T(k-1)}, {T(k)}"]
            return [f"v_add_f32 {vr(V_BS+q)}, {vr(V_BS+q)}, {T(k)}"]
        C = lambda k: f"v_cvt_pk_bf16_f32 {vr(P+k//2)}, {T(k-1)}, {T(k)}"
        gaps = [[] for _ in range(32)]
        for k in range(16):
            gaps[2 * k].append(E(k))
            if k + 1 < 16: gaps[2 * k + 1].append(F(k + 1))
            gaps[2 * k + 1] += A(k)
            if k % 2 == 1: gaps[2 * k + 1].append(C(k))
        return [F(0)], gaps
    def sm_linear(b):
        pre, gaps = sm_parts(b, None)
        r = list(pre)
        for i, gp in enumerate(gaps):
            if i == 31: r.append("s_nop 0")
            r += gp
        return r
    def xreduce(dst, op, tmp):
        return [f"v_mov_b32 {vr(tmp)}, {vr(dst)}", "s_nop 1",
                f"v_permlane32_swap_b32 {vr(dst)}, {vr(tmp)}",
                f"{op} {vr(dst)}, {vr(dst)}, {vr(tmp)}",
                f"v_mov_b32 {vr(tmp)}, {vr(dst)}", "s_nop 1",
                f"v_permlane16_swap_b32 {vr(dst)}, {vr(tmp)}",
                f"{op} {vr(dst)}, {vr(dst)}, {vr(tmp)}"]
    def rowmax(b, q, dst, tmp):
        S = V_S + 16 * (b % 2) + 8 * q
        r = [f"v_max3_f32 {vr(dst)}, {vr(S)}, {vr(S+1)}, {vr(S+2)}",
             f"v_max3_f32 {vr(dst)}, {vr(dst)}, {vr(S+3)}, {vr(S+4)}",
             f"v_max3_f32 {vr(dst)}, {vr(dst)}, {vr(S+5)}, {vr(S+6)}",
             f"v_max_f32 {vr(dst)}, {vr(dst)}, {vr(S+7)}"]
        return r + xreduce(dst, "v_max_f32", tmp)
    def zipl(a, b):
        r = []
        for x, y in zip(a, b):
            if x.startswith("s_nop"):
                r.append("s_nop 0")
            else:
                r += [x, y]
        return r
    def minit():
        a = rowmax(0, 0, V_X0, V_X1) + [f"v_mul_f32 {vr(V_NMC)}, {sr(S_C)}, {vr(V_X0)}", f"v_sub_f32 {vr(V_NMC)}, 0, {vr(V_NMC)}"]
        b = rowmax(0, 1, V_X2, V_X3) + [f"v_mul_f32 {vr(V_NMC+1)}, {sr(S_C)}, {vr(V_X2)}", f"v_sub_f32 {vr(V_NMC+1)}, 0, {vr(V_NMC+1)}"]
        return zipl(a, b)
    def linv():
        a = [f"v_add_f32 {vr(V_L)}, {vr(V_L)}, {vr(V_BS)}"] + xreduce(V_L, "v_add_f32", V_X0) + [f"v_rcp_f32 {vr(V_INV)}, {vr(V_L)}"]
        b = [f"v_add_f32 {vr(V_L+1)}, {vr(V_L+1)}, {vr(V_BS+1)}"] + xreduce(V_L + 1, "v_add_f32", V_X2) + [f"v_rcp_f32 {vr(V_INV+1)}, {vr(V_L+1)}"]
        return zipl(a, b)
    def opack():
        r = []
        n = 0
        for db in range(8):
            x = (db & 3) << 5
            va = V_OW
            if x:
                va = V_X2
                r.append(f"v_xor_b32 {vr(V_X2)}, {x}, {vr(V_OW)}")
            for qb in range(2):
                pk = V_PK + 2 * (n % 2); n += 1
                base = V_O + 4 * (2 * db + qb)
                for i in range(4):
                    r.append(f"v_mul_f32 {vr(base+i)}, {vr(base+i)}, {vr(V_INV+qb)}")
                for i in range(2):
                    r.append(f"v_cvt_pk_bf16_f32 {vr(pk+i)}, {vr(base+2*i)}, {vr(base+2*i+1)}")
                r.append(f"ds_write_b64 {vr(va)}, {vr(pk,2)} offset:{128*(db>>2)+4096*qb}")
        return r

    def spread(gaps, groups, a, b, front=False, step=1):
        idx = list(range(a, b, step))
        for i, gr in enumerate(groups):
            gi = idx[i * len(idx) // max(len(groups), 1)]
            if front: gaps[gi] = list(gr) + gaps[gi]
            else: gaps[gi] += list(gr)
    single = lambda l: [[x] for x in l]

    comp = o.compute
    nafter = npro
    e(f"s_waitcnt vmcnt({nafter})")
    e("s_barrier")
    if comp:
        for gr in qreads():
            for x in gr: e(x)
        for x in kreads(0): e(x)
        e("s_waitcnt lgkmcnt(0)")
        m0 = qk(0)
        for i, x in enumerate(m0):
            e(x)
            if i % 2 == 0 and pro_rest and not (pro_rest[0][0] == 'K' and pro_rest[0][1] >= 4):
                k, xx = pro_rest.pop(0)
                for y in pro_op(k, xx): e(y)
        for x in kreads(1): e(x)
        e("s_nop 3")
    if any(k == 'K' and xx >= 4 for k, xx in pro_rest):
        e("s_barrier")
    for k, xx in pro_rest:
        for y in pro_op(k, xx): e(y)
    stamp_dump()
    if o.dbg:
        e("s_memrealtime s[56:57]")
        e(f"v_mov_b32 v252, 0")
    if o.spin == 20:
        e(f"s_cmp_lg_u32 {sr(S_TMP)}, 0")
        e("s_cbranch_scc1 L_noat")
        e("s_mov_b32 s32, s48")
        e("s_and_b32 s33, s49, 0xffff")
        e("s_mov_b32 s34, 4")
        e("s_mov_b32 s35, 0x20000")
        e("s_not_b32 s62, s52")
        e("v_mov_b32 v254, s62")
        e(f"v_mbcnt_lo_u32_b32 v253, -1, 0")
        e(f"v_mbcnt_hi_u32_b32 v253, -1, v253")
        e(f"v_lshlrev_b32 v253, 2, v253")
        e("buffer_atomic_umax v254, v253, s[32:35], 0 offen sc1")
        e("s_waitcnt vmcnt(0)")
        g.lab("L_noat")
    g.lines.append(".p2align 6")
    g.lab("L_head")
    fallbacks = []
    def prio_young(p):
        lab = f"L_pr{len(g.lines)}"
        return [f"s_cmp_eq_u32 {sr(S_YOUNG)}, 0", f"s_cbranch_scc1 {lab}", f"s_setprio {p}", f"{lab}:"]
    def emit(x):
        if x.endswith(":"): g.lab(x[:-1])
        else: e(x)
    for b in range(16):
        g.c(f"==== iter {b} phase A")
        if b == 0: stamp()
        pre, gaps = sm_parts(b, None if b == 0 else ('mov' if b == 1 else 'add'))
        if o.novalu and b >= 2:
            pre, gaps = [], [[] for _ in range(32)]
        if b == 0:
            lin = pre + [x for gp in gaps for x in gp]
            pre = []
            gaps = [[] for _ in range(32)]
            ini = linv() + minit()
            spread(gaps, single(ini), 0, 10)
            lin.insert(len(lin) - 2, "s_nop 0")
            spread(gaps, single(lin), 10, 32)
        nr = o.rdgaps
        vrd = vreads(b - 1); krd = kreads(b + 2)
        if o.nord and b > 1:
            vrd = []; krd = []
        if o.halfrd:
            vrd = vrd[:8] if b % 2 else vrd[8:]
            krd = krd[:4] if b % 2 else krd[4:]
        if o.rdmode == 0:
            spread(gaps, single(vrd), 0, nr)
        elif o.rdmode == 1:
            spread(gaps, [vrd[i:i+2] for i in range(0, len(vrd), 2)], 0, nr, step=2)
        elif o.rdmode == 2:
            spread(gaps, single(vrd), 0, nr, front=True)
        elif o.rdmode == 3:
            spread(gaps, [vrd[i:i+4] for i in range(0, len(vrd), 4)], 0, nr, step=2)
        for j in range(8):
            if o.store and st_iter[j] % 16 == b:
                spread(gaps, [o_read(j)], nr, nr + 1)
        if b == 1:
            spread(gaps, single(opack()), 2, 16)
        if o.rdmode == 1:
            spread(gaps, single(krd), 16, 16 + nr, step=2)
        elif o.rdmode == 2:
            spread(gaps, single(krd), 16, 16 + nr, front=True)
        elif o.rdmode == 3:
            spread(gaps, [krd[i:i+2] for i in range(0, len(krd), 2)], 16, 16 + nr, step=2)
        else:
            spread(gaps, single(krd), 16, 16 + nr)
        if b == 14 and not o.nodma:
            spread(gaps, qreads(), 16, 16 + nr)
        dm = []
        for k, x in ops[b]:
            cap = [f"s_waitcnt vmcnt({o.win-1})"] if o.win else []
            if o.xwin and k != 'STAMP':
                lab = f"L_xw{b}_{k}{x}"
                cap = cap + [f"s_cmp_lg_u32 s36, 0", f"s_cbranch_scc1 {lab}", f"s_waitcnt vmcnt({o.xwin-1})", f"{lab}:"]
            if k in ('K', 'V'): dm.append(cap + dma_kv(k, x))
            elif k == 'ST': dm.append(cap + o_store(x))
            elif k == 'Q': dm.append(cap + dma_q(x))
        if o.nodma: dm = []
        spread(gaps, dm, 16 + o.dm0, 16 + o.dm1)
        if o.prio == 2:
            gaps[o.pr_lo] = gaps[o.pr_lo] + prio_young(0)
        if o.stagger:
            e(f"s_cmp_eq_u32 {sr(S_YOUNG)}, {0 if o.stagger == 1 else 1}")
            e(f"s_cbranch_scc1 L_sa{b}")
            e(f"s_waitcnt vmcnt({vm_wait(b)}) lgkmcnt(0)")
            e("s_barrier")
            g.lab(f"L_sa{b}")
        e("s_waitcnt lgkmcnt(0)")
        if o.tst and b > 0:
            e(f"v_writelane_b32 v252, s56, {b-1}")
            e(f"v_writelane_b32 v252, s58, {32+b-1}")
        if comp:
            for x in pre: e(x)
            mf = qk(b + 1)
            for i in range(16):
                e(mf[i])
                for x in gaps[i]: emit(x)
        g.c(f"==== iter {b} phase B")
        if b % o.stampmod == 0: stamp()
        if o.prio == 2:
            for x in prio_young(1): emit(x)
        if o.stagger:
            e(f"s_cmp_lg_u32 {sr(S_YOUNG)}, {0 if o.stagger == 1 else 1}")
            e(f"s_cbranch_scc1 L_sb{b}")
        e(f"s_waitcnt vmcnt({vm_wait(b)}) lgkmcnt(0)")
        if not o.nobar: e("s_barrier")
        if o.stagger:
            g.lab(f"L_sb{b}")
            e("s_waitcnt lgkmcnt(0)")
        if o.pace:
            if o.pace0:
                e(f"s_cmp_ge_u32 {sr(S_HEAD)}, {o.pace0}")
                e(f"s_cbranch_scc1 L_np{b}")
            e(f"s_sleep {o.pace}")
            if o.pace0: g.lab(f"L_np{b}")
        if o.tst:
            e("s_memtime s[56:57]")
            e("s_memrealtime s[58:59]")
        if b % o.stampmod == 0: stamp()
        if comp:
            mf = pv(b - 1)
            for i in range(16):
                e(mf[i])
                for x in gaps[16 + i]: emit(x)
            if b >= 1 and not o.nochk:
                e(f"v_add_f32 {vr(V_X0)}, {vr(V_BS)}, {vr(V_BS+1)}")
                e(f"v_cmp_nge_f32 vcc, {sr(S_THR)}, {vr(V_X0)}")
                e(f"s_cbranch_vccnz L_fb{b}")
                g.lab(f"L_ret{b}")
                fallbacks.append(b)
        else:
            for gr in dm:
                for x in gr: emit(x)
    stamp()
    stamp_dump()
    if o.stamps:
        e(f"s_add_u32 {sr(S_STAMPOFF)}, {sr(S_STAMPOFF)}, 256")
    if o.dbg:
        e("s_memrealtime s[58:59]")
        e("s_waitcnt lgkmcnt(0)")
        e("s_sub_u32 s58, s58, s52")
        e(f"s_add_u32 m0, {sr(S_HEAD)}, 4")
        e("s_nop 3")
        e(f"v_writelane_b32 v252, s58, m0")
    e(f"s_add_u32 {sr(S_HEAD)}, {sr(S_HEAD)}, 1")
    e(f"s_cmp_lt_u32 {sr(S_HEAD)}, 4")
    e("s_cbranch_scc1 L_head")
    g.c("==== tail")
    if comp:
        for x in vreads(15): e(x)
        for x in linv(): e(x)
        e("s_waitcnt lgkmcnt(0)")
        for x in pv(15): e(x)
        for x in opack(): e(x)
    if o.store:
        e(f"v_xor_b32 {vr(V_X4)}, 64, {vr(V_DQ)}")
        for j in range(8):
            pk = V_KF + 4 * j
            e(f"ds_read_b128 {vr(pk,4)}, {vr(V_OR)} offset:{j*1024}")
        for j in range(8):
            pk = V_KF + 4 * j
            e(f"s_waitcnt lgkmcnt({7-j})")
            if j == 4:
                e(f"s_add_u32 {sr(S_OOFF)}, {sr(S_OOFF)}, 4096")
            e(f"buffer_store_dwordx4 {vr(pk,4)}, {vr(V_X4 if j & 1 else V_DQ)}, {sr(S_OSRD,4)}, {sr(S_OOFF)} offen offset:{1024*(j%4)}{stflags}")
    if o.stamps:
        e("s_waitcnt vmcnt(0)")
        stampn[0] = 0
        stamp()
        stamp_dump()
    if o.spin:
        e("s_waitcnt vmcnt(0)")
        e("s_memrealtime s[58:59]")
        e("s_waitcnt lgkmcnt(0)")
        if o.spin == 1:
            e(f"s_mov_b32 s64, {o.spinv}")
        elif o.spin == 20:
            e("s_mov_b32 s32, s48")
            e("s_and_b32 s33, s49, 0xffff")
            e(f"s_cmp_lg_u32 {sr(S_TMP)}, 0")
            e("s_cbranch_scc1 L_end")
            e("s_mov_b32 s34, 4")
            e("s_mov_b32 s35, 0x20000")
            e(f"v_mbcnt_lo_u32_b32 v253, -1, 0")
            e(f"v_mbcnt_hi_u32_b32 v253, -1, v253")
            e(f"v_lshlrev_b32 v253, 2, v253")
            e("v_mov_b32 v254, 0")
            e("buffer_atomic_umax v254, v253, s[32:35], 0 offen sc0 sc1")
            e("s_waitcnt vmcnt(0)")
            e("v_readfirstlane_b32 s52, v254")
            e("s_nop 3")
            e("s_not_b32 s52, s52")
            e(f"s_mov_b32 s64, {o.spinv}")
        elif o.spin == 2:
            e("s_sub_u32 s64, s58, s52")
            e("s_mul_i32 s64, s64, 3")
        elif o.spin == 3:
            e("s_sub_u32 s64, s56, s52")
            e("s_mul_i32 s64, s64, 30")
        elif 4 <= o.spin < 20:
            e(f"v_readlane_b32 s64, v252, {o.spin}")
            e("s_nop 3")
            e("s_mul_i32 s64, s64, 10")
        g.lab("L_spin")
        e("s_sleep 2")
        e("s_memrealtime s[58:59]")
        e("s_waitcnt lgkmcnt(0)")
        e("s_sub_u32 s65, s58, s52")
        e("s_cmp_lt_u32 s65, s64")
        e("s_cbranch_scc1 L_spin")
        e("s_endpgm")
    if o.dbg:
        e(f"s_cmp_lg_u32 {sr(S_TMP)}, 7")
        e("s_cbranch_scc1 L_end")
        e("s_waitcnt vmcnt(0)")
        e("s_memrealtime s[58:59]")
        e("s_memtime s[60:61]")
        e("s_waitcnt lgkmcnt(0)")
        e("s_mov_b32 s32, s48")
        e("s_and_b32 s33, s49, 0xffff")
        e("s_mov_b32 s34, 64")
        e("s_mov_b32 s35, 0x20000")
        e("s_not_b32 s62, s52")
        e("v_writelane_b32 v252, s62, 0")
        e("v_writelane_b32 v252, s58, 1")
        e("s_not_b32 s62, s58")
        e("v_writelane_b32 v252, s62, 2")
        e("s_sub_u32 s62, s56, s52")
        e("v_writelane_b32 v252, s62, 3")
        e("s_sub_u32 s62, s58, s52")
        e("s_lshl_b32 s62, s62, 16")
        e("s_sub_u32 s63, s60, s50")
        e("s_lshr_b32 s63, s63, 3")
        e("s_or_b32 s62, s62, s63")
        e("s_getreg_b32 s63, hwreg(HW_REG_XCC_ID)")
        e("s_and_b32 s63, s63, 7")
        e("s_add_u32 m0, s63, 8")
        e("s_nop 3")
        e("v_writelane_b32 v252, s62, m0")
        e(f"v_mbcnt_lo_u32_b32 {vr(V_X1)}, -1, 0")
        e(f"v_mbcnt_hi_u32_b32 {vr(V_X1)}, -1, {vr(V_X1)}")
        e(f"v_lshlrev_b32 {vr(V_X1)}, 2, {vr(V_X1)}")
        e(f"buffer_atomic_umax v252, {vr(V_X1)}, s[32:35], 0 offen")
    g.lab("L_end")
    e("s_endpgm")
    for b in fallbacks:
        g.lab(f"L_fb{b}")
        e("s_nop 15")
        for q in range(2):
            for x in rowmax(b, q, V_X0, V_X1): e(x)
            e(f"v_mul_f32 {vr(V_X0)}, {sr(S_C)}, {vr(V_X0)}")
            e(f"v_sub_f32 {vr(V_X0)}, 0, {vr(V_X0)}")
            e(f"v_min_f32 {vr(V_X0)}, {vr(V_X0)}, {vr(V_NMC+q)}")
            e(f"v_sub_f32 {vr(V_X1)}, {vr(V_X0)}, {vr(V_NMC+q)}")
            e(f"v_exp_f32 {vr(V_X1)}, {vr(V_X1)}")
            e(f"v_mov_b32 {vr(V_NMC+q)}, {vr(V_X0)}")
            e(f"v_mul_f32 {vr(V_L+q)}, {vr(V_L+q)}, {vr(V_X1)}")
            for db in range(8):
                for i in range(4):
                    r = V_O + 4 * (2 * db + q) + i
                    e(f"v_mul_f32 {vr(r)}, {vr(r)}, {vr(V_X1)}")
        for x in sm_linear(b): e(x)
        e("s_nop 1")
        e(f"s_branch L_ret{b}")

    nv = 256 if (o.stamps or o.dbg) else NVGPR
    out = HEADER
    out += f"; @launch grid=(256,1,1) block=(512,1,1) lds=163840\n"
    out += '.amdgcn_target "amdgcn-amd-amdhsa--gfx950"\n.text\n'
    out += f".globl {NAME}_kernel\n.p2align 8\n.type {NAME}_kernel,@function\n{NAME}_kernel:\n"
    out += "\n".join(g.lines) + "\n"
    out += f""".section .rodata,"a"
.p2align 6
.amdhsa_kernel {NAME}_kernel
  .amdhsa_next_free_vgpr {nv}
  .amdhsa_next_free_sgpr {102 if (o.stamps or o.dbg) else 48}
  .amdhsa_accum_offset {nv}
  .amdhsa_group_segment_fixed_size 0
  .amdhsa_kernarg_size 48
  .amdhsa_user_sgpr_count 2
  .amdhsa_user_sgpr_kernarg_segment_ptr 1
  .amdhsa_system_sgpr_workgroup_id_x 1
.end_amdhsa_kernel
"""
    return out

def main():
    ap = argparse.ArgumentParser()
    il = lambda s: [int(x) for x in s.split(",")]
    ap.add_argument("-o", default="out.s")
    ap.add_argument("--nocompute", dest="compute", action="store_false")
    ap.add_argument("--nostore", dest="store", action="store_false")
    ap.add_argument("--hs", type=int, default=1)
    ap.add_argument("--ldflags", default="nt")
    ap.add_argument("--qflags", default="")
    ap.add_argument("--stflags", default="")
    ap.add_argument("--thr", type=float, default=65536.0)
    ap.add_argument("--rdgaps", type=int, default=12)
    ap.add_argument("--kstep2", action="store_true")
    ap.add_argument("--dm0", type=int, default=0)
    ap.add_argument("--dm1", type=int, default=14)
    ap.add_argument("--st_iter", type=il, default=[2, 4, 6, 8, 10, 12, 13, 14])
    ap.add_argument("--q_iter", type=il, default=[-1, 0, 1, 3, 5, 7, 9, 11])
    ap.add_argument("--prio", type=int, default=0)
    ap.add_argument("--pr_lo", type=int, default=4)
    ap.add_argument("--noprobar", dest="probar", action="store_false")
    ap.add_argument("--stamps", action="store_true")
    ap.add_argument("--stampmod", type=int, default=2)
    ap.add_argument("--l2only", type=int, default=0)
    ap.add_argument("--novalu", action="store_true")
    ap.add_argument("--dbg", action="store_true")
    ap.add_argument("--flight", type=int, default=3)
    ap.add_argument("--rot", type=int, default=0)
    ap.add_argument("--xmap", action="store_true")
    ap.add_argument("--xwin", type=int, default=0)
    ap.add_argument("--verbose", action="store_true")
    ap.add_argument("--pro1", type=int, default=8)
    ap.add_argument("--nkv", type=il, default=[2]*16)
    ap.add_argument("--pace", type=int, default=0)
    ap.add_argument("--pace0", type=int, default=0)
    ap.add_argument("--spin", type=int, default=0)
    ap.add_argument("--spinv", type=int, default=20000)
    ap.add_argument("--win", type=int, default=0)
    ap.add_argument("--xfirst", action="store_true")
    ap.add_argument("--stagger", type=int, default=0)
    ap.add_argument("--rdmode", type=int, default=0)
    ap.add_argument("--mf32", type=int, default=0)
    ap.add_argument("--nomfma", action="store_true")
    ap.add_argument("--qkord", type=int, default=0)
    ap.add_argument("--nodma", action="store_true")
    ap.add_argument("--nobar", action="store_true")
    ap.add_argument("--nord", action="store_true")
    ap.add_argument("--nochk", action="store_true")
    ap.add_argument("--tst", action="store_true")
    ap.add_argument("--halfrd", action="store_true")
    o = ap.parse_args()
    open(o.o, "w").write(build(o))

if __name__ == "__main__":
    main()
```

```python
import sys, struct, argparse

def f32bits(x):
    return struct.unpack('<I', struct.pack('<f', x))[0]

NAME = "standalone__mha_softmax__near_ridge"
HEADER = """; Kernarg layout for this problem (48 bytes, ptrs only, base s[0:1]):
"""
NOV = 6
V_OV = 0
V_S = 96
V_P = 160
V_PK = 192
V_X = 200
V_T = 208
NT = 6
V_CK = 214
V_OR = 215
V_KA, V_QA, V_VA = 216, 220, 224
V_DK, V_DV, V_DQ, V_OW = 232, 234, 236, 240
V_NMC, V_INV = 244, 248
V_DBG = 252
A_O, A_L, A_ONE, A_Q, A_KF, A_VF = 0, 32, 48, 64, 128, 160
NACC = 192

S_QSRD, S_KSRD, S_VSRD, S_OSRD = 4, 8, 12, 16
S_QOFF, S_KOFF, S_VOFF, S_OOFF = 20, 21, 22, 23
S_HEAD, S_WLDS, S_C, S_THR = 24, 25, 26, 27
S_TMP, S_WQ, S_ONR, S_GRP = 28, 29, 30, 31
S_WSRD = 32
S_STAMPOFF = 38

BLK = 8192
KBASE, VBASE, QBASE = 0, 32768, 65536
WST = 24576
QOFFS = [16384, 0]
M16 = "v_mfma_f32_16x16x32_bf16"

def vr(b, n=1): return f"v{b}" if n == 1 else f"v[{b}:{b+n-1}]"
def ar(b, n=1): return f"a{b}" if n == 1 else f"a[{b}:{b+n-1}]"
def sr(b, n=1): return f"s{b}" if n == 1 else f"s[{b}:{b+n-1}]"
def oreg(db, qb):
    if db < NOV: return 'v', V_OV + 4 * (4 * db + qb)
    return 'a', A_O + 4 * (4 * (db - NOV) + qb)
def otxt(db, qb):
    k, b = oreg(db, qb)
    return vr(b, 4) if k == 'v' else ar(b, 4)

class Gen:
    def __init__(self): self.lines = []
    def e(self, s):
        if s is None: return
        if s.endswith(":"): self.lines.append(s)
        else: self.lines.append("    " + s)
    def lab(self, s): self.lines.append(s + ":")
    def c(self, s): self.lines.append("    ; " + s)

def build(o):
    g = Gen(); e = g.e
    ldflags = (" " + o.ldflags) if o.ldflags else ""
    stflags = (" " + o.stflags) if o.stflags else ""

    def dma_kv(kind, b):
        b %= 16
        srd = S_KSRD if kind == 'K' else S_VSRD
        soff = S_KOFF if kind == 'K' else S_VOFF
        v0 = V_DK if kind == 'K' else V_DV
        base = (KBASE if kind == 'K' else VBASE) + (b % 4) * BLK
        inc = BLK + ((o.hs - 1) * 131072 if b == 15 else 0)
        if o.rot:
            return [[f"s_add_u32 m0, {sr(S_WLDS)}, {base}", f"s_xor_b32 s39, {sr(soff)}, s36"],
                    [f"buffer_load_dwordx4 {vr(v0)}, {sr(srd,4)}, s39 offen{ldflags} lds"],
                    [f"buffer_load_dwordx4 {vr(v0+1)}, {sr(srd,4)}, s39 offen offset:1024{ldflags} lds"],
                    [f"s_add_u32 {sr(soff)}, {sr(soff)}, {inc}"]]
        return [[f"s_add_u32 m0, {sr(S_WLDS)}, {base}"],
                [f"buffer_load_dwordx4 {vr(v0)}, {sr(srd,4)}, {sr(soff)} offen{ldflags} lds"],
                [f"buffer_load_dwordx4 {vr(v0+1)}, {sr(srd,4)}, {sr(soff)} offen offset:1024{ldflags} lds"],
                [f"s_add_u32 {sr(soff)}, {sr(soff)}, {inc}"]]
    def dma_q(j):
        inc = 2048 + ((65536 - 16384 + (o.hs - 1) * 65536) if j == 7 else 0)
        x = 2 * (j & 1)
        return [[f"s_add_u32 m0, {sr(S_WQ)}, {QOFFS[j >> 2] + (j & 3) * 2048}"],
                [f"buffer_load_dwordx4 {vr(V_DQ+x)}, {sr(S_QSRD,4)}, {sr(S_QOFF)} offen{ldflags} lds"],
                [f"buffer_load_dwordx4 {vr(V_DQ+x+1)}, {sr(S_QSRD,4)}, {sr(S_QOFF)} offen offset:1024{ldflags} lds"],
                [f"s_add_u32 {sr(S_QOFF)}, {sr(S_QOFF)}, {inc}"]]
    def o_read(j):
        return [f"ds_read_b128 {vr(V_PK+4*p,4)}, {vr(V_OR)} offset:{j*2048+p*1024}" for p in range(2)]
    def o_store(j):
        inc = 2048 + ((65536 - 16384 + (o.hs - 1) * 65536) if j == 7 else 0)
        r = [[],
             [f"buffer_store_dwordx4 {vr(V_PK,4)}, {vr(V_DQ)}, {sr(S_OSRD,4)}, {sr(S_OOFF)} offen{stflags}"],
             [f"buffer_store_dwordx4 {vr(V_PK+4,4)}, {vr(V_DQ+1)}, {sr(S_OSRD,4)}, {sr(S_OOFF)} offen offset:1024{stflags}"],
             [f"s_add_u32 {sr(S_OOFF)}, {sr(S_OOFF)}, {inc}"]]
        if j == 7:
            r[3].append(f"s_mov_b32 {sr(S_OSRD+2)}, {sr(S_ONR)}")
        return r
    def flat(op):
        r = list(op[0])
        if r: r.append("s_nop 0")
        return r + op[1] + op[2] + op[3]

    def stamp_dump():
        if not o.stamps: return
        D = V_DBG
        e(f"s_memrealtime s[54:55]")
        e("s_waitcnt lgkmcnt(0)")
        e(f"v_writelane_b32 v{D}, s56, 15")
        e(f"v_writelane_b32 v{D}, s58, 47")
        e(f"v_writelane_b32 v{D}, s54, 31")
        e(f"v_writelane_b32 v{D}, s50, 30")
        e(f"v_writelane_b32 v{D}, s52, 29")
        e(f"s_getreg_b32 s55, hwreg(HW_REG_XCC_ID)")
        e(f"v_writelane_b32 v{D}, s55, 28")
        e(f"v_mbcnt_lo_u32_b32 v{D+1}, -1, 0")
        e(f"v_mbcnt_hi_u32_b32 v{D+1}, -1, v{D+1}")
        e(f"v_lshlrev_b32 v{D+1}, 2, v{D+1}")
        e(f"buffer_store_dword v{D}, v{D+1}, {sr(S_WSRD,4)}, {sr(S_STAMPOFF)} offen")

    st_iter, q_iter = o.st_iter, o.q_iter
    F = o.flight
    KLA, VLA = 2 + F, F
    ext = {b: [] for b in range(16)}
    for j in range(8):
        assert 2 <= st_iter[j] <= 15
        ext[st_iter[j]].append(('ST', j))
    for j in range(8):
        assert -1 <= q_iter[j] <= 12
        if j >= 4: assert q_iter[j] >= st_iter[j - 4]
        ext[q_iter[j] % 16].append(('Q', j))
    assert st_iter == sorted(st_iter) and q_iter == sorted(q_iter)
    for b in range(16):
        assert sum(1 for k, _ in ext[b] if k == 'ST') <= 1
    ops = {b: ext[b] + [('K', b + KLA), ('V', b + VLA)] for b in range(16)}
    if o.stamps: ops[15].append(('STAMP', 0))
    cnt = lambda k: 1 if k == 'STAMP' else 2
    def seq_before(b):
        seq = []
        for it in range(b - 16, b):
            for k, x in ops[it % 16]:
                if it < 0 and k in ('K', 'V'): x -= 16
                seq.append((it, k, x))
        return seq
    def vm_wait(b):
        seq = seq_before(b)
        need = [i for i, (it, k, x) in enumerate(seq) if (k, x) in (('K', b + 2), ('V', b))]
        assert len(need) == 2
        if b == 14:
            need += [i for i, (it, k, x) in enumerate(seq) if k == 'Q']
        return sum(cnt(k) for (it, k, x) in seq[max(need) + 1:])
    sb = seq_before(0)
    first = min(i for i, (it, k, x) in enumerate(sb) if (k == 'K' and x >= 2) or (k == 'V' and x >= 0))
    pro_items = [(k, x) for (it, k, x) in sb[first:] if k != 'STAMP']
    for i, (it, k, x) in enumerate(sb):
        if k == 'Q' and it == -1: assert i >= first
    def pro_op(k, x):
        if k in ('K', 'V'): return flat(dma_kv(k, x))
        if k == 'Q': return flat(dma_q(x))
        return [f"buffer_store_dword {vr(V_DQ)}, {vr(V_DQ)}, {sr(S_OSRD,4)}, 0 offen"] * 2

    e("s_cmp_ge_u32 s2, 256")
    e("s_cbranch_scc1 L_end")
    e("s_load_dwordx4 s[40:43], s[0:1], 0")
    e("s_load_dwordx4 s[44:47], s[0:1], 16")
    if o.dbg or o.stamps:
        e(f"s_load_dwordx2 s[48:49], s[0:1], {32 if o.dbg else 40}")
        e("s_memtime s[50:51]")
        e("s_memrealtime s[52:53]")
        e("s_mov_b32 s66, s2")
    e(f"s_lshr_b32 {sr(S_GRP)}, s2, 3")
    e(f"s_and_b32 {sr(S_GRP)}, {sr(S_GRP)}, {o.sgroups-1}")
    if o.sdelay:
        e(f"s_mov_b32 s67, {sr(S_GRP)}")
        g.lab("L_sd")
        e("s_cmp_eq_u32 s67, 0")
        e("s_cbranch_scc1 L_sd_done")
        e(f"s_sleep {o.sdelay}")
        e("s_sub_u32 s67, s67, 1")
        e("s_branch L_sd")
        g.lab("L_sd_done")
    if o.rot:
        e(f"s_lshr_b32 s36, s2, {o.rot-1}")
        e("s_and_b32 s36, s36, 15")
        e("s_lshl_b32 s36, s36, 13")
    if not o.noxmap:
        e("s_and_b32 s3, s2, 7")
        e("s_lshl_b32 s3, s3, 5")
        e("s_lshr_b32 s2, s2, 3")
        e("s_or_b32 s2, s2, s3")
    e(f"v_lshrrev_b32 v1, 6, v0")
    e(f"v_and_b32 v2, 63, v0")
    e(f"v_readfirstlane_b32 {sr(S_TMP)}, v1")
    e(f"v_lshrrev_b32 v3, 4, v2")
    e(f"v_and_b32 v4, 15, v2")
    e(f"v_lshl_add_u32 v5, v1, 3, v3")
    e(f"v_and_b32 v6, 15, v5")
    e(f"v_xor_b32 v6, v6, v4")
    e(f"v_lshlrev_b32 v6, 4, v6")
    e(f"v_lshl_add_u32 {vr(V_DK)}, v5, 8, v6")
    e(f"v_xor_b32 {vr(V_DK+1)}, 64, {vr(V_DK)}")
    e(f"v_lshlrev_b32 v6, 1, v3")
    e(f"v_xor_b32 v6, v6, v4")
    e(f"v_lshlrev_b32 v6, 4, v6")
    e(f"v_lshl_add_u32 {vr(V_DV)}, v5, 8, v6")
    e(f"v_xor_b32 {vr(V_DV+1)}, 128, {vr(V_DV)}")
    e(f"v_lshl_add_u32 v5, v1, 6, v3")
    e(f"v_lshlrev_b32 v5, 8, v5")
    e(f"v_xor_b32 v6, v3, v4")
    e(f"v_lshl_add_u32 {vr(V_DQ)}, v6, 4, v5")
    for x in range(1, 4):
        e(f"v_xor_b32 {vr(V_DQ+x)}, {x*64}, {vr(V_DQ)}")
    if o.warm:
        e("s_getpc_b64 s[34:35]")
        g.lab("L_pc")
        e(f"v_lshl_add_u32 v12, {sr(S_GRP)}, 2, v1")
        e("v_min_u32 v12, (L_codeend - L_pc) / 1024 - 1, v12")
        e("v_lshlrev_b32 v12, 10, v12")
        e("v_lshl_add_u32 v12, v2, 4, v12")
        e("v_mov_b32 v13, s35")
        e("v_add_co_u32 v12, vcc, s34, v12")
        e("s_nop 1")
        e("v_addc_co_u32 v13, vcc, 0, v13, vcc")
        e("global_load_dwordx4 v[16:19], v[12:13], off")
    e(f"s_lshl_b32 {sr(S_WLDS)}, {sr(S_TMP)}, 11")
    e(f"s_mul_i32 {sr(S_WQ)}, {sr(S_TMP)}, {WST}")
    e(f"s_add_u32 {sr(S_WQ)}, {sr(S_WQ)}, {QBASE}")
    if o.hs == 1:
        e("s_lshl_b32 s2, s2, 2")
        e("s_add_u32 s3, s2, 4")
    else:
        lg = o.hs.bit_length() - 1
        e(f"s_lshr_b32 s3, s2, {lg}")
        e(f"s_lshl_b32 s3, s3, {lg+2}")
        e(f"s_and_b32 s2, s2, {o.hs-1}")
        e(f"s_add_u32 s2, s2, s3")
        e(f"s_add_u32 s3, s3, {4*o.hs}")
    e(f"s_lshl_b32 {sr(S_QOFF)}, s2, 16")
    e(f"s_lshl_b32 {sr(S_KOFF)}, s2, 17")
    e(f"s_lshl_b32 {sr(S_QSRD+2)}, s3, 16")
    e(f"s_lshl_b32 {sr(S_KSRD+2)}, s3, 17")
    e(f"s_mov_b32 {sr(S_VSRD+2)}, {sr(S_KSRD+2)}")
    e(f"s_mov_b32 {sr(S_ONR)}, {sr(S_QSRD+2)}")
    e(f"s_sub_u32 {sr(S_OOFF)}, {sr(S_QOFF)}, {65536*o.hs}")
    e(f"s_mov_b32 {sr(S_OSRD+2)}, 0")
    e(f"s_mov_b32 {sr(S_VOFF)}, {sr(S_KOFF)}")
    for srd in (S_QSRD, S_KSRD, S_VSRD, S_OSRD):
        e(f"s_mov_b32 {sr(srd+3)}, 0x20000")
    e("s_waitcnt lgkmcnt(0)")
    for srd, p in ((S_KSRD, 42), (S_QSRD, 40), (S_VSRD, 44), (S_OSRD, 46)):
        e(f"s_mov_b32 {sr(srd)}, s{p}")
        e(f"s_and_b32 {sr(srd+1)}, s{p+1}, 0xffff")
    init_ops = [dma_kv('K', 0)] + [dma_q(j) for j in range(8)] + [dma_kv('K', 1)]
    for n, op in enumerate(init_ops):
        for x in flat(op): e(x)
        if n < o.serial:
            e(f"s_cmp_le_u32 {sr(S_GRP)}, {n * o.sgroups // (o.serial + 1) + o.sgroups // (o.serial + 1) - 1}")
            e(f"s_cbranch_scc1 L_ser{n}")
            e("s_waitcnt vmcnt(0)")
            g.lab(f"L_ser{n}")
    e(f"v_xor_b32 v9, v3, v4")
    e(f"v_lshlrev_b32 v9, 4, v9")
    e(f"v_lshl_add_u32 {vr(V_KA)}, v4, 8, v9")
    for s in range(1, 4):
        e(f"v_xor_b32 {vr(V_KA+s)}, {s*64}, {vr(V_KA)}")
    for s in range(4):
        e(f"v_add_u32 {vr(V_QA+s)}, {sr(S_WQ)}, {vr(V_KA+s)}")
    e(f"v_lshrrev_b32 v9, 2, v2")
    e(f"v_and_b32 v10, 7, v9")
    e(f"v_lshlrev_b32 v10, 1, v10")
    e(f"v_bfe_u32 v11, v2, 1, 1")
    e(f"v_xor_b32 v10, v10, v11")
    e(f"v_lshlrev_b32 v10, 4, v10")
    e(f"v_lshl_add_u32 v10, v9, 8, v10")
    e(f"v_and_b32 v11, 1, v2")
    e(f"v_lshl_add_u32 v10, v11, 3, v10")
    e(f"v_add_u32 {vr(V_VA)}, {VBASE}, v10")
    for t in range(1, 8):
        e(f"v_xor_b32 {vr(V_VA+t)}, {t*32}, {vr(V_VA)}")
    e(f"v_and_b32 v9, 7, v4")
    e(f"v_lshrrev_b32 v10, 1, v3")
    e(f"v_xor_b32 v9, v9, v10")
    e(f"v_lshlrev_b32 v9, 4, v9")
    e(f"v_lshl_add_u32 v9, v4, 8, v9")
    e(f"v_and_b32 v10, 1, v3")
    e(f"v_lshl_add_u32 v9, v10, 3, v9")
    e(f"v_add_u32 {vr(V_OW)}, {sr(S_WQ)}, v9")
    for x in range(1, 4):
        e(f"v_xor_b32 {vr(V_OW+x)}, {x*32}, {vr(V_OW)}")
    e(f"v_lshlrev_b32 v9, 4, v2")
    e(f"v_add_u32 {vr(V_OR)}, {sr(S_WQ)}, v9")
    e(f"s_mov_b32 {sr(S_C)}, {hex(f32bits(128**-0.5 * 1.4426950408889634))}")
    e(f"s_mov_b32 {sr(S_THR)}, {hex(f32bits(-o.bias))}")
    e(f"s_mov_b32 {sr(S_HEAD)}, 0")
    e(f"v_mov_b32 v9, 0x3f803f80")
    for i in range(4):
        e(f"v_accvgpr_write_b32 {ar(A_ONE+i)}, v9")
    npro = min(o.pro1, len(pro_items))
    for k, x in pro_items[:npro]:
        assert k != 'Q'
        for y in pro_op(k, x): e(y)
    pro_rest = pro_items[npro:]
    if o.stamps:
        e(f"s_mov_b32 {sr(S_WSRD)}, s48")
        e(f"s_and_b32 {sr(S_WSRD+1)}, s49, 0xffff")
        e(f"s_mov_b32 {sr(S_WSRD+2)}, {1<<24}")
        e(f"s_mov_b32 {sr(S_WSRD+3)}, 0x20000")
        e(f"s_lshl_b32 {sr(S_STAMPOFF)}, s66, 3")
        e(f"s_add_u32 {sr(S_STAMPOFF)}, {sr(S_STAMPOFF)}, {sr(S_TMP)}")
        e(f"s_lshl_b32 {sr(S_STAMPOFF)}, {sr(S_STAMPOFF)}, 11")

    def kreads(b):
        off = KBASE + (b % 4) * BLK
        return [f"ds_read_b128 {ar(A_KF+4*(4*kb+s),4)}, {vr(V_KA+s)} offset:{off+4096*kb}" for kb in range(2) for s in range(4)]
    def qreads():
        return [f"ds_read_b128 {ar(A_Q+4*(4*qb+s),4)}, {vr(V_QA+s)} offset:{QOFFS[qb>>1]+4096*(qb&1)}" for qb in range(4) for s in range(4)]
    def vreads(b):
        return [f"ds_read_b64_tr_b16 {ar(A_VF+4*db+2*w,2)}, {vr(V_VA+db)} offset:{(b % 4)*BLK + w*4096}" for db in range(8) for w in range(2)]
    def qk(b):
        S = V_S + 32 * (b % 2)
        if o.qkord == 0:
            order = [(qb, kb, s) for qb in range(4) for kb in range(2) for s in range(4)]
        elif o.qkord == 2:
            order = [(qb, kb, s) for kb in range(2) for s in range(4) for qb in range(4)]
        elif o.qkord == 3:
            order = [(2 * h + q, kb, s) for h in range(2) for kb in range(2) for s in range(4) for q in range(2)]
        r = []
        for qb, kb, s in order:
            D = S + 8 * qb + 4 * kb
            r.append(f"{M16} {vr(D,4)}, {ar(A_KF+4*(4*kb+s),4)}, {ar(A_Q+4*(4*qb+s),4)}, " + ("0" if s == 0 else vr(D, 4)))
        return r
    def pv_order(tail=False):
        if tail:
            return [(db, qb) for qb in range(4) for db in (8, 0, 1, 2, 3, 4, 5, 6, 7)]
        return [(8, qb) for qb in range(4)] + [(db, qb) for db in range(8) for qb in range(4)]
    def pv(b, tail=False):
        b %= 16
        P = V_P + 16 * (b % 2)
        r = []
        for db, qb in pv_order(tail):
            if db == 8:
                D, A = ar(A_L + 4 * qb, 4), ar(A_ONE, 4)
            else:
                D, A = otxt(db, qb), ar(A_VF + 4 * db, 4)
            r.append(f"{M16} {D}, {A}, {vr(P+4*qb,4)}, " + ("0" if b == 0 else D))
        return r
    T = lambda k: vr(V_T + k % NT)
    HA, HB = 32, 36
    NG = HA + HB
    def sm_parts(b):
        S = V_S + 32 * (b % 2)
        P = V_P + 16 * (b % 2)
        Fm = lambda k: f"v_fma_f32 {T(k)}, {vr(S+k)}, {sr(S_C)}, {vr(V_NMC + k // 8)}"
        E = lambda k: f"v_exp_f32 {T(k)}, {T(k)}"
        C = lambda k: f"v_cvt_pk_bf16_f32 {vr(P+k//2)}, {T(k-1)}, {T(k)}"
        gaps = [[] for _ in range(NG)]
        for k in range(32):
            gaps[2 * k].append(E(k))
            if k + 1 < 32: gaps[2 * k + 1].append(Fm(k + 1))
            if k % 2 == 1: gaps[2 * k + 1].append(C(k))
            if k % 4 == 0 and k >= 4:
                p = P + k // 2 - 2
                if k == 4: gaps[2 * k + 1].append(f"v_or_b32 {vr(V_CK)}, {vr(p)}, {vr(p+1)}")
                else: gaps[2 * k + 1].append(f"v_or3_b32 {vr(V_CK)}, {vr(V_CK)}, {vr(p)}, {vr(p+1)}")
        gaps[64].append(f"v_or3_b32 {vr(V_CK)}, {vr(V_CK)}, {vr(P+14)}, {vr(P+15)}")
        gaps[65].append(f"v_and_b32 {vr(V_CK)}, 0x40004000, {vr(V_CK)}")
        gaps[66].append(f"v_cmp_ne_u32 vcc, 0, {vr(V_CK)}")
        return [Fm(0)], gaps
    def sm_linear(b):
        pre, gaps = sm_parts(b)
        r = list(pre)
        for i, gp in enumerate(gaps[:64]):
            if i == 63: r.append("s_nop 0")
            r += [x for x in gp if 'v_or' not in x]
        return r
    def xreduce(dst, op, tmp):
        return [f"v_mov_b32 {vr(tmp)}, {vr(dst)}", "s_nop 1",
                f"v_permlane32_swap_b32 {vr(dst)}, {vr(tmp)}",
                f"{op} {vr(dst)}, {vr(dst)}, {vr(tmp)}",
                f"v_mov_b32 {vr(tmp)}, {vr(dst)}", "s_nop 1",
                f"v_permlane16_swap_b32 {vr(dst)}, {vr(tmp)}",
                f"{op} {vr(dst)}, {vr(dst)}, {vr(tmp)}"]
    def rowmax(b, q, dst, tmp):
        S = V_S + 32 * (b % 2) + 8 * q
        return [f"v_max3_f32 {vr(dst)}, {vr(S)}, {vr(S+1)}, {vr(S+2)}",
                f"v_max3_f32 {vr(dst)}, {vr(dst)}, {vr(S+3)}, {vr(S+4)}",
                f"v_max3_f32 {vr(dst)}, {vr(dst)}, {vr(S+5)}, {vr(S+6)}",
                f"v_max_f32 {vr(dst)}, {vr(dst)}, {vr(S+7)}"] + xreduce(dst, "v_max_f32", tmp)
    def zip4(ls):
        r = []
        for t in zip(*ls):
            if t[0].startswith("s_nop"): continue
            r += list(t)
        return r
    def minit():
        return zip4([rowmax(0, q, V_X + 2 * q, V_X + 2 * q + 1) +
                     [f"v_mul_f32 {vr(V_NMC+q)}, {sr(S_C)}, {vr(V_X+2*q)}", f"v_sub_f32 {vr(V_NMC+q)}, {sr(S_THR)}, {vr(V_NMC+q)}"] for q in range(4)])
    def linv(qs=range(4)):
        return [f"v_accvgpr_read_b32 {vr(V_INV+q)}, {ar(A_L+4*q)}" for q in qs] + \
               [f"v_rcp_f32 {vr(V_INV+q)}, {vr(V_INV+q)}" for q in qs] + ["s_nop 0"]
    def opack_unit(db, qb, n):
        k, base = oreg(db, qb)
        pk = V_PK + 2 * (n % 4)
        r = []
        if k == 'a':
            t = V_X + 4 * (n % 2)
            for i in range(4): r.append(f"v_accvgpr_read_b32 {vr(t+i)}, {ar(base+i)}")
            base = t
        for i in range(4): r.append(f"v_mul_f32 {vr(base+i)}, {vr(base+i)}, {vr(V_INV+qb)}")
        for i in range(2): r.append(f"v_cvt_pk_bf16_f32 {vr(pk+i)}, {vr(base+2*i)}, {vr(base+2*i+1)}")
        r.append(f"ds_write_b64 {vr(V_OW + (db & 3))}, {vr(pk,2)} offset:{128*(db>>2)+4096*qb}")
        return r
    def opack():
        return [opack_unit(db, qb, n) for n, (db, qb) in enumerate(pv_order()[4:])]

    def spread(gaps, groups, a, b, front=False, step=1):
        idx = list(range(a, b, step))
        for i, gr in enumerate(groups):
            gi = idx[i * len(idx) // max(len(groups), 1)]
            if front: gaps[gi] = list(gr) + gaps[gi]
            else: gaps[gi] += list(gr)
    single = lambda l: [[x] for x in l]

    e(f"s_waitcnt vmcnt({2*npro})")
    e("s_barrier")
    kr0 = kreads(0); qr = qreads()
    for x in kr0[:4] + qr[:4] + kr0[4:] + qr[4:]: e(x)
    e("s_waitcnt lgkmcnt(0)")
    for i, x in enumerate(qk(0)):
        e(x)
        if i % 4 == 0 and pro_rest and not (pro_rest[0][0] == 'K' and pro_rest[0][1] >= 4):
            k, xx = pro_rest.pop(0)
            for y in pro_op(k, xx): e(y)
    for x in kreads(1): e(x)
    e("s_nop 3")
    if any(k == 'K' and xx >= 4 for k, xx in pro_rest):
        e("s_barrier")
    for k, xx in pro_rest:
        for y in pro_op(k, xx): e(y)
    stamp_dump()
    if o.dbg:
        e("s_memrealtime s[56:57]")
        e(f"v_mov_b32 v{V_DBG}, 0")
    fallbacks = []
    def make_gaps(first):
        allgaps = []
        for b in range(16):
            pre, gaps = sm_parts(b)
            if b == 0:
                lin = sm_linear(0)
                pre = []
                gaps = [[] for _ in range(NG)]
                spread(gaps, single(minit()), 0, o.inig)
                spread(gaps, single(lin), o.inig, NG)
            allgaps.append((pre, gaps))
        if not first:
            def put(G, x):
                if G < HB: allgaps[0][1][HA + G].append(x)
                else: allgaps[1][1][G - HB].append(x)
            for n, x in enumerate(linv()):
                put(8 + n // 3, x)
            ins = [(u, x) for u, un in enumerate(opack()) for x in un]
            for n, (u, x) in enumerate(ins):
                G = o.op0 + n * (o.op1 - o.op0) // len(ins)
                assert max(u + 8, 11) <= G <= 71 + u, (u, G)
                put(G, x)
        return allgaps
    def emit_iter(b, pre, gaps, first=False):
        tag = "f" if first else ""
        g.c(f"==== iter {b} phase A {tag}")
        nr = o.rdgaps
        if not (first and b == 0):
            spread(gaps, single(vreads(b - 1)), o.rd0, o.rd0 + nr, front=True)
        for j in range(8):
            if st_iter[j] == b:
                spread(gaps, single(o_read(j)), o.rd0 + nr, o.rd0 + nr + 2, front=True)
        krd = kreads(b + 2)
        if b == 14:
            spread(gaps, single(krd[:4] + qreads()[:4] + krd[4:] + qreads()[4:]), HA, HA + 28, front=True)
        else:
            spread(gaps, single(krd), HA + o.rd0, HA + o.rd0 + nr, front=True)
        dm = []
        for k, x in ops[b]:
            if k in ('K', 'V'): dm += dma_kv(k, x)
            elif k == 'ST': dm += o_store(x)
            elif k == 'Q': dm += dma_q(x)
        if o.nodma: dm = []
        assert len(dm) <= o.dm1 - o.dm0
        spread(gaps, dm, HA + o.dm0, HA + o.dm1, front=True)
        e("s_waitcnt lgkmcnt(0)")
        if o.stamps and b > 0:
            e(f"v_writelane_b32 v{V_DBG}, s56, {b-1}")
            e(f"v_writelane_b32 v{V_DBG}, s58, {32+b-1}")
        for x in pre: e(x)
        mf = qk(b + 1)
        for i in range(HA):
            e(mf[i])
            for x in gaps[i]: e(x)
        g.c(f"==== iter {b} phase B {tag}")
        e(f"s_waitcnt vmcnt({vm_wait(b)}) lgkmcnt(0)")
        e("s_barrier")
        if o.stamps:
            e("s_memtime s[56:57]")
            e("s_memrealtime s[58:59]")
        mf = pv(b - 1)
        for i in range(HB):
            if first and b == 0:
                if gaps[HA + i] and gaps[HA + i][0].startswith("buffer_load"): e("s_nop 0")
            else:
                e(mf[i])
            for x in gaps[HA + i]: e(x)
        if b >= 1:
            e(f"s_cbranch_vccnz L_fb{b}")
            if not first:
                g.lab(f"L_ret{b}")
                fallbacks.append(b)
    if o.peel:
        ag = make_gaps(True)
        emit_iter(0, *ag[0], first=True)
        emit_iter(1, *ag[1], first=True)
        e("s_branch L_ret1")
    g.lines.append(".p2align 6")
    g.lab("L_head")
    ag = make_gaps(False)
    for b in range(16):
        emit_iter(b, *ag[b])
    stamp_dump()
    if o.stamps:
        e(f"s_add_u32 {sr(S_STAMPOFF)}, {sr(S_STAMPOFF)}, 256")
    if o.dbg:
        e("s_memrealtime s[58:59]")
        e("s_waitcnt lgkmcnt(0)")
        e("s_sub_u32 s58, s58, s52")
        e(f"s_add_u32 m0, {sr(S_HEAD)}, 4")
        e("s_nop 3")
        e(f"v_writelane_b32 v{V_DBG}, s58, m0")
    e(f"s_add_u32 {sr(S_HEAD)}, {sr(S_HEAD)}, 1")
    e(f"s_cmp_lt_u32 {sr(S_HEAD)}, 4")
    e("s_cbranch_scc1 L_head")
    g.c("==== tail")
    for x in vreads(15): e(x)
    e("s_waitcnt lgkmcnt(0)")
    mf = pv(15, tail=True)
    for x in mf[:18]: e(x)
    def tail_store(qb):
        for j in range(4 * qb, 4 * qb + 4):
            e(f"s_waitcnt lgkmcnt({TW[j]})")
            e(f"buffer_store_dwordx4 {vr(V_S+4*j,4)}, {vr(V_DQ + (j & 1))}, {sr(S_OSRD,4)}, {sr(S_OOFF)} offen offset:{1024*(j%4)}{stflags}")
        e(f"s_add_u32 {sr(S_OOFF)}, {sr(S_OOFF)}, 4096")
    TW = {}
    n = 0
    for qb in range(4):
        for x in linv([qb]): e(x)
        for db in range(8):
            if qb < 2: e(mf[18 + 9 * qb + db])
            for x in opack_unit(db, qb, n): e(x)
            n += 1
            if db == 3 and qb > 0:
                for j in range(4 * qb - 4, 4 * qb): TW[j] = 4 + (4 * qb - 1 - j)
                tail_store(qb - 1)
        if qb < 2: e(mf[18 + 9 * qb + 8])
        for j in range(4 * qb, 4 * qb + 4):
            e(f"ds_read_b128 {vr(V_S+4*j,4)}, {vr(V_OR)} offset:{j*1024}")
    for j in range(12, 16): TW[j] = 15 - j
    tail_store(3)
    if o.stamps:
        e("s_waitcnt vmcnt(0)")
        stamp_dump()
    if o.dbg:
        D = V_DBG
        e(f"s_cmp_lg_u32 {sr(S_TMP)}, 3")
        e("s_cbranch_scc1 L_end")
        e("s_waitcnt vmcnt(0)")
        e("s_memrealtime s[58:59]")
        e("s_memtime s[60:61]")
        e("s_waitcnt lgkmcnt(0)")
        e("s_mov_b32 s32, s48")
        e("s_and_b32 s33, s49, 0xffff")
        e("s_mov_b32 s34, 64")
        e("s_mov_b32 s35, 0x20000")
        e("s_not_b32 s62, s52")
        e(f"v_writelane_b32 v{D}, s62, 0")
        e(f"v_writelane_b32 v{D}, s58, 1")
        e("s_not_b32 s62, s58")
        e(f"v_writelane_b32 v{D}, s62, 2")
        e("s_sub_u32 s62, s56, s52")
        e(f"v_writelane_b32 v{D}, s62, 3")
        e("s_sub_u32 s62, s58, s52")
        e("s_lshl_b32 s62, s62, 16")
        e("s_sub_u32 s63, s60, s50")
        e("s_lshr_b32 s63, s63, 3")
        e("s_or_b32 s62, s62, s63")
        e("s_getreg_b32 s63, hwreg(HW_REG_XCC_ID)")
        e("s_and_b32 s63, s63, 7")
        e("s_add_u32 m0, s63, 8")
        e("s_nop 3")
        e(f"v_writelane_b32 v{D}, s62, m0")
        e(f"v_mbcnt_lo_u32_b32 v{D+1}, -1, 0")
        e(f"v_mbcnt_hi_u32_b32 v{D+1}, -1, v{D+1}")
        e(f"v_lshlrev_b32 v{D+1}, 2, v{D+1}")
        e(f"buffer_atomic_umax v{D}, v{D+1}, s[32:35], 0 offen")
    g.lab("L_end")
    e("s_endpgm")
    for b in fallbacks:
        g.lab(f"L_fb{b}")
        e(f"s_mov_b32 s37, {b}")
        e(f"s_branch L_fbp{b % 2}")
    for par in range(2):
        g.lab(f"L_fbp{par}")
        e("s_nop 15")
        for q in range(4):
            X0, X1 = V_X, V_X + 1
            for x in rowmax(par, q, X0, X1): e(x)
            e(f"v_mul_f32 {vr(X0)}, {sr(S_C)}, {vr(X0)}")
            e(f"v_sub_f32 {vr(X0)}, {sr(S_THR)}, {vr(X0)}")
            e(f"v_min_f32 {vr(X0)}, {vr(X0)}, {vr(V_NMC+q)}")
            e(f"v_sub_f32 {vr(X1)}, {vr(X0)}, {vr(V_NMC+q)}")
            e(f"v_exp_f32 {vr(X1)}, {vr(X1)}")
            e(f"v_mov_b32 {vr(V_NMC+q)}, {vr(X0)}")
            for db in range(9):
                k, base = oreg(db, q) if db < 8 else ('a', A_L + 4 * q)
                for i in range(4):
                    if k == 'v':
                        e(f"v_mul_f32 {vr(base+i)}, {vr(base+i)}, {vr(X1)}")
                    else:
                        e(f"v_accvgpr_read_b32 {vr(V_X+2)}, {ar(base+i)}")
                        e(f"v_mul_f32 {vr(V_X+2)}, {vr(V_X+2)}, {vr(X1)}")
                        e(f"v_accvgpr_write_b32 {ar(base+i)}, {vr(V_X+2)}")
        for x in sm_linear(par): e(x)
        e("s_nop 1")
        bs = [b for b in fallbacks if b % 2 == par]
        for b in bs[:-1]:
            e(f"s_cmp_eq_u32 s37, {b}")
            e(f"s_cbranch_scc1 L_ret{b}")
        e(f"s_branch L_ret{bs[-1]}")

    g.lab("L_codeend")
    out = HEADER
    out += f"; @launch grid=(256,1,1) block=(256,1,1) lds=163840\n"
    out += '.amdgcn_target "amdgcn-amd-amdhsa--gfx950"\n.text\n'
    out += f".globl {NAME}_kernel\n.p2align 8\n.type {NAME}_kernel,@function\n{NAME}_kernel:\n"
    out += "\n".join(g.lines) + "\n"
    out += f""".section .rodata,"a"
.p2align 6
.amdhsa_kernel {NAME}_kernel
  .amdhsa_next_free_vgpr {256 + NACC}
  .amdhsa_next_free_sgpr {102 if (o.stamps or o.dbg or o.sdelay) else 48}
  .amdhsa_accum_offset 256
  .amdhsa_group_segment_fixed_size 0
  .amdhsa_kernarg_size 48
  .amdhsa_user_sgpr_count 2
  .amdhsa_user_sgpr_kernarg_segment_ptr 1
  .amdhsa_system_sgpr_workgroup_id_x 1
.end_amdhsa_kernel
"""
    return out

def main():
    ap = argparse.ArgumentParser()
    il = lambda s: [int(x) for x in s.split(",")]
    ap.add_argument("-o", default="out.s")
    ap.add_argument("--hs", type=int, default=1)
    ap.add_argument("--ldflags", default="nt")
    ap.add_argument("--stflags", default="sc1")
    ap.add_argument("--bias", type=float, default=14.0)
    ap.add_argument("--peel", action="store_true")
    ap.add_argument("--rdgaps", type=int, default=22)
    ap.add_argument("--rd0", type=int, default=0)
    ap.add_argument("--dm0", type=int, default=0)
    ap.add_argument("--dm1", type=int, default=30)
    ap.add_argument("--dmfront", action="store_true")
    ap.add_argument("--st_iter", type=il, default=[2, 4, 6, 8, 10, 12, 13, 14])
    ap.add_argument("--q_iter", type=il, default=[-1, 0, 1, 3, 5, 7, 9, 11])
    ap.add_argument("--flight", type=int, default=2)
    ap.add_argument("--pro1", type=int, default=2)
    ap.add_argument("--inig", type=int, default=16)
    ap.add_argument("--op0", type=int, default=12)
    ap.add_argument("--op1", type=int, default=96)
    ap.add_argument("--qkord", type=int, default=0)
    ap.add_argument("--pvord", type=int, default=0)
    ap.add_argument("--stamps", action="store_true")
    ap.add_argument("--dbg", action="store_true")
    ap.add_argument("--rot", type=int, default=0)
    ap.add_argument("--noxmap", action="store_true")
    ap.add_argument("--warm", action="store_true")
    ap.add_argument("--nodma", action="store_true")
    ap.add_argument("--sdelay", type=int, default=0)
    ap.add_argument("--sgroups", type=int, default=8)
    ap.add_argument("--serial", type=int, default=0)
    o = ap.parse_args()
    open(o.o, "w").write(build(o))

if __name__ == "__main__":
    main()
```

```python
import sys, struct, argparse

def f32bits(x):
    return struct.unpack('<I', struct.pack('<f', x))[0]

NAME = "standalone__mha_softmax__near_ridge"
HEADER = """; Kernarg layout for this problem (48 bytes, ptrs only, base s[0:1]):
"""
V_OV = 0
V_S = 64
V_P = 128
V_KF = 160
V_PK = 192
V_X = 200
V_T = 208
NT = 6
V_CK = 214
V_OR = 215
V_KA, V_MX, V_VA = 216, 220, 224
V_DK, V_DV, V_DQ, V_OW = 232, 234, 236, 240
V_NMC, V_INV = 244, 248
V_DBG = 252
A_O, A_SP, A_Q, A_VF, A_L, A_ONE = 0, 64, 128, 192, 224, 240
NACC = 244

S_QSRD, S_KSRD, S_VSRD, S_OSRD = 4, 8, 12, 16
S_QOFF, S_KOFF, S_VOFF, S_OOFF = 20, 21, 22, 23
S_HEAD, S_WLDS, S_C, S_THR = 24, 25, 26, 27
S_TMP, S_WQ, S_ONR, S_GRP = 28, 29, 30, 31
S_WSRD = 88
S_STAMPOFF = 92

BLK = 8192
KBASE, VBASE, QBASE = 0, 32768, 65536
WST = 24576
QOFFS = [16384, 0]
M16 = "v_mfma_f32_16x16x32_bf16"

def vr(b, n=1): return f"v{b}" if n == 1 else f"v[{b}:{b+n-1}]"
def ar(b, n=1): return f"a{b}" if n == 1 else f"a[{b}:{b+n-1}]"
def sr(b, n=1): return f"s{b}" if n == 1 else f"s[{b}:{b+n-1}]"
def oreg(db, qb, spare=False):
    if qb < 2: return 'v', V_OV + 4 * (2 * db + qb)
    return 'a', (A_SP if spare else A_O) + 4 * (2 * db + qb - 2)
def otxt(db, qb, spare=False):
    k, b = oreg(db, qb, spare)
    return vr(b, 4) if k == 'v' else ar(b, 4)

class Gen:
    def __init__(self): self.lines = []
    def e(self, s):
        if s is None: return
        if s.endswith(":"): self.lines.append(s)
        else: self.lines.append("    " + s)
    def lab(self, s): self.lines.append(s + ":")
    def c(self, s): self.lines.append("    ; " + s)

def build(o):
    g = Gen(); e = g.e
    ldflags = (" " + o.ldflags) if o.ldflags else ""
    stflags = (" " + o.stflags) if o.stflags else ""

    def dma_kv(kind, b):
        b %= 16
        srd = S_KSRD if kind == 'K' else S_VSRD
        soff = S_KOFF if kind == 'K' else S_VOFF
        v0 = V_DK if kind == 'K' else V_DV
        base = (KBASE if kind == 'K' else VBASE) + (b % 4) * BLK
        inc = BLK + ((o.hs - 1) * 131072 if b == 15 else 0)
        if o.rot or o.hx:
            return [[f"s_add_u32 m0, {sr(S_WLDS)}, {base}", f"s_xor_b32 s39, {sr(soff)}, s36"],
                    [f"buffer_load_dwordx4 {vr(v0)}, {sr(srd,4)}, s39 offen{ldflags} lds"],
                    [f"buffer_load_dwordx4 {vr(v0+1)}, {sr(srd,4)}, s39 offen offset:1024{ldflags} lds"],
                    [f"s_add_u32 {sr(soff)}, {sr(soff)}, {inc}"]]
        return [[f"s_add_u32 m0, {sr(S_WLDS)}, {base}"],
                [f"buffer_load_dwordx4 {vr(v0)}, {sr(srd,4)}, {sr(soff)} offen{ldflags} lds"],
                [f"buffer_load_dwordx4 {vr(v0+1)}, {sr(srd,4)}, {sr(soff)} offen offset:1024{ldflags} lds"],
                [f"s_add_u32 {sr(soff)}, {sr(soff)}, {inc}"]]
    def dma_q(j):
        inc = 2048 + ((65536 - 16384 + (o.hs - 1) * 65536) if j == 7 else 0)
        x = 2 * (j & 1)
        so = "s39" if o.hx else sr(S_QOFF)
        return [[f"s_add_u32 m0, {sr(S_WQ)}, {QOFFS[j >> 2] + (j & 3) * 2048}"] + ([f"s_xor_b32 s39, {sr(S_QOFF)}, s47"] if o.hx else []),
                [f"buffer_load_dwordx4 {vr(V_DQ+x)}, {sr(S_QSRD,4)}, {so} offen{ldflags} lds"],
                [f"buffer_load_dwordx4 {vr(V_DQ+x+1)}, {sr(S_QSRD,4)}, {so} offen offset:1024{ldflags} lds"],
                [f"s_add_u32 {sr(S_QOFF)}, {sr(S_QOFF)}, {inc}"]]
    def o_read(j):
        return [f"ds_read_b128 {vr(V_PK+4*p,4)}, {vr(V_OR)} offset:{j*2048+p*1024}" for p in range(2)]
    def o_store(j):
        inc = 2048 + ((65536 - 16384 + (o.hs - 1) * 65536) if j == 7 else 0)
        so = "s39" if o.hx else sr(S_OOFF)
        r = [[f"s_xor_b32 s39, {sr(S_OOFF)}, s47"] if o.hx else [],
             [f"buffer_store_dwordx4 {vr(V_PK,4)}, {vr(V_DQ)}, {sr(S_OSRD,4)}, {so} offen{stflags}"],
             [f"buffer_store_dwordx4 {vr(V_PK+4,4)}, {vr(V_DQ+1)}, {sr(S_OSRD,4)}, {so} offen offset:1024{stflags}"],
             [f"s_add_u32 {sr(S_OOFF)}, {sr(S_OOFF)}, {inc}"]]
        if j == 7:
            r[3].append(f"s_mov_b32 {sr(S_OSRD+2)}, {sr(S_ONR)}")
        return r
    def flat(op):
        r = list(op[0])
        if r: r.append("s_nop 0")
        return r + op[1] + op[2] + op[3]

    def stamp_dump():
        if not o.stamps: return
        D = V_DBG
        e(f"s_memrealtime s[54:55]")
        e("s_waitcnt lgkmcnt(0)")
        e(f"v_writelane_b32 v{D}, s56, 15")
        e(f"v_writelane_b32 v{D}, s58, 47")
        e(f"v_writelane_b32 v{D}, s54, 31")
        e(f"v_writelane_b32 v{D}, s50, 30")
        e(f"v_writelane_b32 v{D}, s52, 29")
        e(f"s_getreg_b32 s55, hwreg(HW_REG_XCC_ID)")
        e(f"v_writelane_b32 v{D}, s55, 28")
        e(f"v_mbcnt_lo_u32_b32 v{D+1}, -1, 0")
        e(f"v_mbcnt_hi_u32_b32 v{D+1}, -1, v{D+1}")
        e(f"v_lshlrev_b32 v{D+1}, 2, v{D+1}")
        e(f"buffer_store_dword v{D}, v{D+1}, {sr(S_WSRD,4)}, {sr(S_STAMPOFF)} offen")

    st_iter, q_iter = o.st_iter, o.q_iter
    F = o.flight
    KLA, VLA = 2 + F, F
    ext = {b: [] for b in range(16)}
    for j in range(8):
        assert 2 <= st_iter[j] <= 15
        ext[st_iter[j]].append(('ST', j))
    for j in range(8):
        assert -1 <= q_iter[j] <= 12
        if j >= 4: assert q_iter[j] >= st_iter[j - 4]
        ext[q_iter[j] % 16].append(('Q', j))
    assert st_iter == sorted(st_iter) and q_iter == sorted(q_iter)
    for b in range(16):
        assert sum(1 for k, _ in ext[b] if k == 'ST') <= 1
    ops = {b: ext[b] + [('K', b + KLA), ('V', b + VLA)] for b in range(16)}
    if o.stamps: ops[15].append(('STAMP', 0))
    cnt = lambda k: 1 if k == 'STAMP' else 2
    def seq_before(b):
        seq = []
        for it in range(b - 16, b):
            for k, x in ops[it % 16]:
                if it < 0 and k in ('K', 'V'): x -= 16
                seq.append((it, k, x))
        return seq
    def vm_wait(b):
        seq = seq_before(b)
        need = [i for i, (it, k, x) in enumerate(seq) if (k, x) in (('K', b + 2), ('V', b))]
        assert len(need) == 2
        if b == 14:
            need += [i for i, (it, k, x) in enumerate(seq) if k == 'Q']
        return sum(cnt(k) for (it, k, x) in seq[max(need) + 1:])
    sb = seq_before(0)
    first = min(i for i, (it, k, x) in enumerate(sb) if (k == 'K' and x >= 2) or (k == 'V' and x >= 0))
    pro_items = [(k, x) for (it, k, x) in sb[first:] if k != 'STAMP']
    for i, (it, k, x) in enumerate(sb):
        if k == 'Q' and it == -1: assert i >= first
    def pro_op(k, x):
        if k in ('K', 'V'): return flat(dma_kv(k, x))
        if k == 'Q': return flat(dma_q(x))
        return [f"buffer_store_dword {vr(V_DQ)}, {vr(V_DQ)}, {sr(S_OSRD,4)}, 0 offen"] * 2

    e("s_cmp_ge_u32 s2, 256")
    e("s_cbranch_scc1 L_end")
    e("s_load_dwordx4 s[40:43], s[0:1], 0")
    e("s_load_dwordx4 s[44:47], s[0:1], 16")
    if o.dbg or o.stamps:
        e(f"s_load_dwordx2 s[48:49], s[0:1], {32 if o.dbg else 40}")
        e("s_memtime s[50:51]")
        e("s_memrealtime s[52:53]")
        e("s_mov_b32 s66, s2")
    e(f"s_lshr_b32 {sr(S_GRP)}, s2, 3")
    e(f"s_and_b32 {sr(S_GRP)}, {sr(S_GRP)}, {o.sgroups-1}")
    e(f"s_mov_b32 s38, {sr(S_GRP)}")
    if o.xgrp:
        e("s_getreg_b32 s38, hwreg(HW_REG_XCC_ID)")
        e("s_and_b32 s38, s38, 1")
        e("s_xor_b32 s38, s38, 1")
        e(f"s_mul_i32 s38, s38, {o.xgrp}")
        e(f"s_and_b32 s39, {sr(S_GRP)}, {o.xmask}")
        e("s_add_u32 s33, s38, s39")
    if o.sdelay:
        e(f"s_mov_b32 s67, {sr(S_GRP)}")
        g.lab("L_sd")
        e("s_cmp_eq_u32 s67, 0")
        e("s_cbranch_scc1 L_sd_done")
        e(f"s_sleep {o.sdelay}")
        e("s_sub_u32 s67, s67, 1")
        e("s_branch L_sd")
        g.lab("L_sd_done")
    e("s_mov_b32 s36, 0")
    if o.rot:
        e(f"s_mul_i32 s36, s2, {o.rot}")
        e("s_lshr_b32 s36, s36, 3")
        e("s_and_b32 s36, s36, 15")
        e("s_lshl_b32 s36, s36, 13")
    if o.hx:
        e(f"s_mul_i32 s37, s2, {o.hx}")
        e("s_lshr_b32 s37, s37, 3")
        e("s_and_b32 s37, s37, 3")
        lgh = o.hs.bit_length() - 1
        e(f"s_lshl_b32 s38, s37, {17 + lgh}")
        e("s_or_b32 s36, s36, s38")
        e(f"s_lshl_b32 s37, s37, {16 + lgh}")
    if not o.noxmap:
        e("s_and_b32 s3, s2, 7")
        e("s_lshl_b32 s3, s3, 5")
        e("s_lshr_b32 s2, s2, 3")
        e("s_or_b32 s2, s2, s3")
    e(f"v_lshrrev_b32 v1, 6, v0")
    e(f"v_and_b32 v2, 63, v0")
    e(f"v_readfirstlane_b32 {sr(S_TMP)}, v1")
    e(f"v_lshrrev_b32 v3, 4, v2")
    e(f"v_and_b32 v4, 15, v2")
    e(f"v_lshl_add_u32 v5, v1, 3, v3")
    e(f"v_and_b32 v6, 15, v5")
    e(f"v_xor_b32 v6, v6, v4")
    e(f"v_lshlrev_b32 v6, 4, v6")
    e(f"v_lshl_add_u32 {vr(V_DK)}, v5, 8, v6")
    e(f"v_xor_b32 {vr(V_DK+1)}, 64, {vr(V_DK)}")
    e(f"v_lshlrev_b32 v6, 1, v3")
    e(f"v_xor_b32 v6, v6, v4")
    e(f"v_lshlrev_b32 v6, 4, v6")
    e(f"v_lshl_add_u32 {vr(V_DV)}, v5, 8, v6")
    e(f"v_xor_b32 {vr(V_DV+1)}, 128, {vr(V_DV)}")
    e(f"v_lshl_add_u32 v5, v1, 6, v3")
    e(f"v_lshlrev_b32 v5, 8, v5")
    e(f"v_xor_b32 v6, v3, v4")
    e(f"v_lshl_add_u32 {vr(V_DQ)}, v6, 4, v5")
    for x in range(1, 4):
        e(f"v_xor_b32 {vr(V_DQ+x)}, {x*64}, {vr(V_DQ)}")
    if o.warm:
        e("s_getpc_b64 s[34:35]")
        g.lab("L_pc")
        e(f"v_lshl_add_u32 v12, {sr(S_GRP)}, 2, v1")
        e("v_min_u32 v12, (L_codeend - L_pc) / 1024 - 1, v12")
        e("v_lshlrev_b32 v12, 10, v12")
        e("v_lshl_add_u32 v12, v2, 4, v12")
        e("v_mov_b32 v13, s35")
        e("v_add_co_u32 v12, vcc, s34, v12")
        e("s_nop 1")
        e("v_addc_co_u32 v13, vcc, 0, v13, vcc")
        e("global_load_dwordx4 v[16:19], v[12:13], off")
    e(f"s_lshl_b32 {sr(S_WLDS)}, {sr(S_TMP)}, 11")
    e(f"s_mul_i32 {sr(S_WQ)}, {sr(S_TMP)}, {WST}")
    e(f"s_add_u32 {sr(S_WQ)}, {sr(S_WQ)}, {QBASE}")
    if o.hs == 1:
        e("s_lshl_b32 s2, s2, 2")
        e("s_add_u32 s3, s2, 4")
    else:
        lg = o.hs.bit_length() - 1
        e(f"s_lshr_b32 s3, s2, {lg}")
        e(f"s_lshl_b32 s3, s3, {lg+2}")
        e(f"s_and_b32 s2, s2, {o.hs-1}")
        e(f"s_add_u32 s2, s2, s3")
        e(f"s_add_u32 s3, s3, {4*o.hs}")
    e(f"s_lshl_b32 {sr(S_QOFF)}, s2, 16")
    e(f"s_lshl_b32 {sr(S_KOFF)}, s2, 17")
    e(f"s_lshl_b32 {sr(S_QSRD+2)}, s3, 16")
    e(f"s_lshl_b32 {sr(S_KSRD+2)}, s3, 17")
    e(f"s_mov_b32 {sr(S_VSRD+2)}, {sr(S_KSRD+2)}")
    e(f"s_mov_b32 {sr(S_ONR)}, {sr(S_QSRD+2)}")
    e(f"s_sub_u32 {sr(S_OOFF)}, {sr(S_QOFF)}, {65536*o.hs}")
    e(f"s_mov_b32 {sr(S_OSRD+2)}, 0")
    e(f"s_mov_b32 {sr(S_VOFF)}, {sr(S_KOFF)}")
    for srd in (S_QSRD, S_KSRD, S_VSRD, S_OSRD):
        e(f"s_mov_b32 {sr(srd+3)}, 0x20000")
    e("s_waitcnt lgkmcnt(0)")
    if o.pst: e("s_memrealtime s[70:71]")
    for srd, p in ((S_KSRD, 42), (S_QSRD, 40), (S_VSRD, 44), (S_OSRD, 46)):
        e(f"s_mov_b32 {sr(srd)}, s{p}")
        e(f"s_and_b32 {sr(srd+1)}, s{p+1}, 0xffff")
    if o.hx: e("s_mov_b32 s47, s37")
    init_ops = [dma_kv('K', 0)] + [dma_q(j) for j in range(8)] + [dma_kv('K', 1)]
    for n, op in enumerate(init_ops):
        for x in flat(op): e(x)
        if o.xgrp and n < o.xgrp + o.xmask:
            e(f"s_cmp_le_u32 s33, {n}")
            e(f"s_cbranch_scc1 L_ser{n}")
            e("s_waitcnt vmcnt(0)")
            g.lab(f"L_ser{n}")
        elif n < o.serial:
            e(f"s_cmp_le_u32 {sr(S_GRP)}, {n * o.sgroups // (o.serial + 1) + o.sgroups // (o.serial + 1) - 1}")
            e(f"s_cbranch_scc1 L_ser{n}")
            e("s_waitcnt vmcnt(0)")
            g.lab(f"L_ser{n}")
    if o.pst: e("s_memrealtime s[72:73]")
    if o.qoff0:
        e(f"s_mov_b32 {sr(S_QSRD+2)}, 0")
    e(f"v_xor_b32 v9, v3, v4")
    e(f"v_lshlrev_b32 v9, 4, v9")
    e(f"v_lshl_add_u32 {vr(V_KA)}, v4, 8, v9")
    for s in range(1, 4):
        e(f"v_xor_b32 {vr(V_KA+s)}, {s*64}, {vr(V_KA)}")
    e(f"v_lshrrev_b32 v9, 2, v2")
    e(f"v_and_b32 v10, 7, v9")
    e(f"v_lshlrev_b32 v10, 1, v10")
    e(f"v_bfe_u32 v11, v2, 1, 1")
    e(f"v_xor_b32 v10, v10, v11")
    e(f"v_lshlrev_b32 v10, 4, v10")
    e(f"v_lshl_add_u32 v10, v9, 8, v10")
    e(f"v_and_b32 v11, 1, v2")
    e(f"v_lshl_add_u32 v10, v11, 3, v10")
    e(f"v_add_u32 {vr(V_VA)}, {VBASE}, v10")
    for t in range(1, 8):
        e(f"v_xor_b32 {vr(V_VA+t)}, {t*32}, {vr(V_VA)}")
    e(f"v_and_b32 v9, 7, v4")
    e(f"v_lshrrev_b32 v10, 1, v3")
    e(f"v_xor_b32 v9, v9, v10")
    e(f"v_lshlrev_b32 v9, 4, v9")
    e(f"v_lshl_add_u32 v9, v4, 8, v9")
    e(f"v_and_b32 v10, 1, v3")
    e(f"v_lshl_add_u32 v9, v10, 3, v9")
    e(f"v_add_u32 {vr(V_OW)}, {sr(S_WQ)}, v9")
    for x in range(1, 4):
        e(f"v_xor_b32 {vr(V_OW+x)}, {x*32}, {vr(V_OW)}")
    e(f"v_lshlrev_b32 v9, 4, v2")
    e(f"v_add_u32 {vr(V_OR)}, {sr(S_WQ)}, v9")
    e(f"s_mov_b32 {sr(S_C)}, {hex(f32bits(128**-0.5 * 1.4426950408889634))}")
    e(f"s_mov_b32 {sr(S_THR)}, {hex(f32bits(-o.bias))}")
    e(f"s_mov_b32 {sr(S_HEAD)}, 0")
    e(f"v_mov_b32 v9, 0x3f803f80")
    for i in range(4):
        e(f"v_accvgpr_write_b32 {ar(A_ONE+i)}, v9")
    npro = min(o.pro1, len(pro_items))
    for k, x in pro_items[:npro]:
        assert k != 'Q'
        for y in pro_op(k, x): e(y)
    pro_rest = pro_items[npro:]
    if o.stamps:
        e(f"s_mov_b32 {sr(S_WSRD)}, s48")
        e(f"s_and_b32 {sr(S_WSRD+1)}, s49, 0xffff")
        e(f"s_mov_b32 {sr(S_WSRD+2)}, {1<<24}")
        e(f"s_mov_b32 {sr(S_WSRD+3)}, 0x20000")
        e(f"s_lshl_b32 {sr(S_STAMPOFF)}, s66, 3")
        e(f"s_add_u32 {sr(S_STAMPOFF)}, {sr(S_STAMPOFF)}, {sr(S_TMP)}")
        e(f"s_lshl_b32 {sr(S_STAMPOFF)}, {sr(S_STAMPOFF)}, 11")

    def kreads(b):
        off = KBASE + (b % 4) * BLK
        return [f"ds_read_b128 {vr(V_KF+4*(4*kb+s),4)}, {vr(V_KA+s)} offset:{off+4096*kb}" for kb in range(2) for s in range(4)]
    def qaddr():
        return [f"v_add_u32 {vr(V_X+s)}, {sr(S_WQ)}, {vr(V_KA+s)}" for s in range(4)]
    def qreads():
        return [f"ds_read_b128 {ar(A_Q+4*(4*qb+s),4)}, {vr(V_X+s)} offset:{QOFFS[qb>>1]+4096*(qb&1)}" for qb in range(4) for s in range(4)]
    def vreads(b):
        return [f"ds_read_b64_tr_b16 {ar(A_VF+4*db+2*w,2)}, {vr(V_VA+db)} offset:{(b % 4)*BLK + w*4096}" for db in range(8) for w in range(2)]
    def qk(b):
        S = V_S + 32 * (b % 2)
        if o.qkord == 0:
            order = [(qb, kb, s) for qb in range(4) for kb in range(2) for s in range(4)]
        elif o.qkord == 2:
            order = [(qb, kb, s) for kb in range(2) for s in range(4) for qb in range(4)]
        elif o.qkord == 3:
            order = [(2 * h + q, kb, s) for h in range(2) for kb in range(2) for s in range(4) for q in range(2)]
        r = []
        for qb, kb, s in order:
            D = S + 8 * qb + 4 * kb
            r.append(f"{M16} {vr(D,4)}, {vr(V_KF+4*(4*kb+s),4)}, {ar(A_Q+4*(4*qb+s),4)}, " + ("0" if s == 0 else vr(D, 4)))
        return r
    def pv_order(tail=False):
        if tail:
            return [(db, qb) for qb in range(4) for db in (8, 0, 1, 2, 3, 4, 5, 6, 7)]
        if o.pvord == 1:
            return [(8, qb) for qb in range(4)] + [(db, 2 * h + q) for h in range(2) for db in range(8) for q in range(2)]
        if o.pvord == 2:
            return [(8, qb) for qb in range(4)] + [(db, qb) for qb in range(4) for db in range(8)]
        return [(8, qb) for qb in range(4)] + [(db, qb) for db in range(8) for qb in range(4)]
    def pv(b, tail=False):
        b %= 16
        P = V_P + 16 * (b % 2)
        r = []
        for db, qb in pv_order(tail):
            if db == 8:
                D, A = ar(A_L + 4 * qb, 4), ar(A_ONE, 4)
            else:
                D, A = otxt(db, qb), ar(A_VF + 4 * db, 4)
            Cc = "0" if b == 0 else D
            if b == 15 and not tail and db < 8:
                D = otxt(db, qb, spare=True)
            if o.pvswap: r.append(f"{M16} {D}, {vr(P+4*qb,4)}, {A}, {Cc}")
            else: r.append(f"{M16} {D}, {A}, {vr(P+4*qb,4)}, {Cc}")
        return r
    T = lambda k: vr(V_T + k % NT)
    HA, HB = 32, 36
    NG = HA + HB
    def sm_parts(b):
        S = V_S + 32 * (b % 2)
        P = V_P + 16 * (b % 2)
        Fm = lambda k: f"v_fma_f32 {T(k)}, {vr(S+k)}, {sr(S_C)}, {vr(V_NMC + k // 8)}"
        E = lambda k: f"v_exp_f32 {T(k)}, {T(k)}"
        C = lambda k: f"v_cvt_pk_bf16_f32 {vr(P+k//2)}, {T(k-1)}, {T(k)}"
        gaps = [[] for _ in range(NG)]
        for k in range(32):
            gaps[2 * k].append(E(k))
            if k + 1 < 32: gaps[2 * k + 1].append(Fm(k + 1))
            if k % 2 == 1: gaps[2 * k + 1].append(C(k))
        return [Fm(0)], gaps
    def check_items(b):
        P = V_P + 16 * (b % 2)
        r = []
        for n in range(8):
            p = P + 2 * n
            ins = f"v_or_b32 {vr(V_CK)}, {vr(p)}, {vr(p+1)}" if n == 0 else f"v_or3_b32 {vr(V_CK)}, {vr(V_CK)}, {vr(p)}, {vr(p+1)}"
            r.append((ins, 2 * (4 * n + 3) + 2))
        r.append((f"v_and_b32 {vr(V_CK)}, 0x40004000, {vr(V_CK)}", 64))
        r.append((f"v_cmp_ne_u32 vcc, 0, {vr(V_CK)}", 64))
        return r
    def sm_linear(b):
        pre, gaps = sm_parts(b)
        r = list(pre)
        for i, gp in enumerate(gaps[:64]):
            if i == 63: r.append("s_nop 0")
            r += [x for x in gp if 'v_or' not in x]
        return r
    def xreduce(dst, op, tmp):
        return [f"v_mov_b32 {vr(tmp)}, {vr(dst)}", "s_nop 1",
                f"v_permlane32_swap_b32 {vr(dst)}, {vr(tmp)}",
                f"{op} {vr(dst)}, {vr(dst)}, {vr(tmp)}",
                f"v_mov_b32 {vr(tmp)}, {vr(dst)}", "s_nop 1",
                f"v_permlane16_swap_b32 {vr(dst)}, {vr(tmp)}",
                f"{op} {vr(dst)}, {vr(dst)}, {vr(tmp)}"]
    def rowmax(b, q, dst, tmp):
        S = V_S + 32 * (b % 2) + 8 * q
        return [f"v_max3_f32 {vr(dst)}, {vr(S)}, {vr(S+1)}, {vr(S+2)}",
                f"v_max3_f32 {vr(dst)}, {vr(dst)}, {vr(S+3)}, {vr(S+4)}",
                f"v_max3_f32 {vr(dst)}, {vr(dst)}, {vr(S+5)}, {vr(S+6)}",
                f"v_max_f32 {vr(dst)}, {vr(dst)}, {vr(S+7)}"] + xreduce(dst, "v_max_f32", tmp)
    def zip4(ls):
        r = []
        for t in zip(*ls):
            if t[0].startswith("s_nop"): continue
            r += list(t)
        return r
    def minit():
        return zip4([rowmax(0, q, V_MX + q, V_X + 4 + q) + [f"v_mul_f32 {vr(V_MX+q)}, {sr(S_C)}, {vr(V_MX+q)}"] for q in range(4)])
    def mset(q):
        return f"v_sub_f32 {vr(V_NMC+q)}, {sr(S_THR)}, {vr(V_MX+q)}"
    def linv(qs=range(4)):
        return [f"v_accvgpr_read_b32 {vr(V_INV+q)}, {ar(A_L+4*q)}" for q in qs] + \
               [f"v_rcp_f32 {vr(V_INV+q)}, {vr(V_INV+q)}" for q in qs] + ["s_nop 0"]
    def opack_unit(db, qb, n, spare=False):
        k, base = oreg(db, qb, spare)
        r = []
        if k == 'a':
            t = V_X + 4 * (n % 2)
            for i in range(4): r.append(f"v_accvgpr_read_b32 {vr(t+i)}, {ar(base+i)}")
            base = t
        for i in range(4): r.append(f"v_mul_f32 {vr(base+i)}, {vr(base+i)}, {vr(V_INV+qb)}")
        for i in range(2): r.append(f"v_cvt_pk_bf16_f32 {vr(base+i)}, {vr(base+2*i)}, {vr(base+2*i+1)}")
        r.append(f"ds_write_b64 {vr(V_OW + (db & 3))}, {vr(base,2)} offset:{128*(db>>2)+4096*qb}")
        return r

    class Gap:
        def __init__(self, valu=()):
            self.salu, self.mem, self.valu = [], [], list(valu)
        def cost(self):
            c = 8 + 4 * max(0, len(self.salu) - 1)
            for i, x in enumerate(self.mem):
                c += (16 if x.startswith("buffer") else 12 if x.startswith("ds_write") else 4) + (4 if i else 0)
            for x in self.valu: c += 8 if x.startswith(("v_exp", "v_rcp")) else 4
            return c
        def add(self, x):
            if x.startswith("s_") and not x.startswith("s_nop"): self.salu.append(x)
            elif x.startswith(("ds_", "buffer")): self.mem.append(x)
            else: self.valu.append(x)
        def ins(self): return self.salu + self.mem + self.valu
    def place(G, items, a, b, strict=True):
        n = len(items)
        prev = a - 1
        for i, it in enumerate(items):
            x, lo = it if isinstance(it, tuple) else (it, a)
            front = x.startswith(("ds_", "buffer")) or (x.startswith("s_") and not x.startswith("s_nop"))
            w0 = max(lo, a + i * (b - a) // n - o.slack, prev + 1 if (front or strict) else max(prev, a))
            w1 = max(a + (i + 1) * (b - a) // n + o.slack, w0 + 1)
            rest = n - 1 - i
            w1 = min(w1, b - (rest if strict else 0))
            if w1 <= w0: w1 = w0 + 1
            assert w0 < len(G), (x, w0)
            def inc(gi):
                gp = G[gi]; c0 = max(16, gp.cost())
                t = Gap(gp.valu); t.salu = list(gp.salu); t.mem = list(gp.mem); t.add(x)
                return (max(16, t.cost()) - c0, t.cost(), gi)
            gi = min(inc(k) for k in range(w0, min(w1, len(G))))[2]
            G[gi].add(x); prev = gi
        return prev

    def spread(gaps, groups, a, b, front=False, step=1):
        idx = list(range(a, b, step))
        for i, gr in enumerate(groups):
            gi = idx[i * len(idx) // max(len(groups), 1)]
            if front: gaps[gi] = list(gr) + gaps[gi]
            else: gaps[gi] += list(gr)
    single = lambda l: [[x] for x in l]

    if o.pst:
        e("s_memrealtime s[74:75]")
        e(f"s_waitcnt vmcnt({2*npro+18})")
        e("s_memrealtime s[76:77]")
        e(f"s_waitcnt vmcnt({2*npro+10})")
        e("s_memrealtime s[78:79]")
    e(f"s_waitcnt vmcnt({2*npro})")
    if o.pst: e("s_memrealtime s[80:81]")
    e("s_barrier")
    if o.pst: e("s_memrealtime s[82:83]")
    kr0 = kreads(0); qr = qreads()
    for x in qaddr(): e(x)
    for x in kr0[:4] + qr[:4] + kr0[4:] + qr[4:]: e(x)
    e("s_waitcnt lgkmcnt(0)")
    for i, x in enumerate(qk(0)):
        e(x)
        if i % 4 == 0 and pro_rest and not (pro_rest[0][0] == 'K' and pro_rest[0][1] >= 4):
            k, xx = pro_rest.pop(0)
            for y in pro_op(k, xx): e(y)
    for x in kreads(1): e(x)
    e("s_nop 3")
    for x in minit(): e(x)
    if any(k == 'K' and xx >= 4 for k, xx in pro_rest):
        e("s_barrier")
    for k, xx in pro_rest:
        for y in pro_op(k, xx): e(y)
    if o.pst:
        e("s_memrealtime s[84:85]")
        e("s_waitcnt lgkmcnt(0)")
        for i in range(8): e(f"v_writelane_b32 v{V_DBG}, s{70+2*i}, {16+i}")
    stamp_dump()
    if o.dbg:
        e("s_memrealtime s[56:57]")
        e(f"v_mov_b32 v{V_DBG}, 0")
    if o.asym:
        e(f"s_and_b32 s35, {sr(S_GRP)}, {o.xmask}")
        e(f"s_cmp_ge_u32 s35, {o.asym}")
        e("s_cselect_b32 s35, 1, 0")
        e(f"s_and_b32 s34, s35, {o.asymmask & 1}")
    fallbacks = []
    def make_gaps(first):
        AG = []
        pres = []
        for b in range(16):
            pre, gaps = sm_parts(b)
            G = [Gap(x) for x in gaps]
            if b == 0:
                pre = [mset(0)] + pre
                for q in range(1, 4): G[4 * q + 1].add(mset(q))
            AG.append(G); pres.append(pre)
        for b in range(16):
            G = AG[b]
            rd = [] if (first and b == 0) else vreads(b - 1)
            for j in range(8):
                if st_iter[j] == b: rd = rd + o_read(j)
            if rd: place(G, rd, o.rd0, o.rdA)
            dm = []
            for k, x in ops[b]:
                op = dma_kv(k, x) if k in ('K', 'V') else o_store(x) if k == 'ST' else dma_q(x) if k == 'Q' else []
                for grp in op: dm += grp
            if o.nodma: dm = []
            if dm: place(G, dm, HA + o.dm0, HA + o.dm1)
            krd = kreads(b + 2)
            if b == 14:
                place(G, qaddr(), HA - 8, HA, strict=False)
                place(G, krd[:4] + qreads()[:4] + krd[4:] + qreads()[4:], HA, HA + 30)
            else:
                place(G, krd, HA + o.rd0, HA + o.rdB)
            if b >= 1 and not o.nochk:
                ck = check_items(b)
                place(G, ck[:5], 24, 62, strict=False)
                G[64].add(ck[5][0]); G[64].add(ck[6][0]); G[65].add(ck[7][0]); G[65].add(ck[8][0]); G[66].add(ck[9][0])
        place(AG[15], minit(), HA + 2, NG - 1, strict=False)
        if not first:
            CG = AG[0][HA:] + AG[1]
            place(CG, linv(), 8, 12, strict=False)
            order = pv_order()
            items = []
            for n, (db, qb) in enumerate([(db, qb) for db, qb in order if db < 8 and qb < 2]):
                pos = order.index((db, qb))
                for x in opack_unit(db, qb, n): items.append((x, max(pos + 5, 13), pos))
            prevlen = [len(gp.ins()) for gp in CG]
            place(CG, [(x, lo) for x, lo, pos in items], o.op0, o.op1, strict=False)
            for x, lo, pos in items:
                gi = [k for k, gp in enumerate(CG) if x in gp.ins()]
                assert len(gi) == 1 and lo <= gi[0] < NG + pos, (x, gi, pos)
        units = [(db, qb) for qb in (2, 3) for db in range(8)]
        for b in range(2, 14):
            its = []
            for u, (db, qb) in enumerate(units):
                if o.lazy[u] == b:
                    assert b < st_iter[2 * qb]
                    its += opack_unit(db, qb, u, spare=True)
            if its and not o.nolazy: place(AG[b], its, 0, NG - 2, strict=False)
        if o.verbose:
            print([sum(max(16, gp.cost()) for gp in G) for G in AG], file=sys.stderr)
        return list(zip(pres, AG))
    def emit_iter(b, pre, G, first=False):
        tag = "f" if first else ""
        g.c(f"==== iter {b} phase A {tag}")
        e("s_waitcnt lgkmcnt(0)")
        if o.stamps and b > 0:
            e(f"v_writelane_b32 v{V_DBG}, s56, {b-1}")
            e(f"v_writelane_b32 v{V_DBG}, s58, {32+b-1}")
        if o.qoff0 and b == o.qoff0: e(f"s_mov_b32 {sr(S_QSRD+2)}, {sr(S_ONR)}")
        for x in pre: e(x)
        mf = qk(b + 1)
        for i in range(HA):
            e(mf[i])
            for x in G[i].ins(): e(x)
        g.c(f"==== iter {b} phase B {tag}")
        if o.asym and not first:
            lab = f"L_as{b}"
            e(f"s_cmp_lg_u32 s34, 0")
            e(f"s_cbranch_scc1 {lab}")
            e(f"s_waitcnt vmcnt({max(0, vm_wait(b) - 6)})")
            g.lab(lab)
        e(f"s_waitcnt vmcnt({vm_wait(b)}) lgkmcnt(0)")
        if not o.nobar: e("s_barrier")
        if o.stamps:
            e("s_memtime s[56:57]")
            e("s_memrealtime s[58:59]")
        mf = pv(b - 1)
        for i in range(HB):
            e("s_nop 0" if (first and b == 0) else mf[i])
            for x in G[HA + i].ins(): e(x)
        if b >= 1:
            if not o.nochk: e(f"s_cbranch_vccnz L_fb{b}")
            if not first:
                g.lab(f"L_ret{b}")
                fallbacks.append(b)
    if o.peel:
        ag = make_gaps(True)
        emit_iter(0, *ag[0], first=True)
        emit_iter(1, *ag[1], first=True)
        e("s_branch L_ret1")
    g.lines.append(".p2align 6")
    g.lab("L_head")
    ag = make_gaps(False)
    for b in range(16):
        emit_iter(b, *ag[b])
    stamp_dump()
    if o.stamps:
        e(f"s_add_u32 {sr(S_STAMPOFF)}, {sr(S_STAMPOFF)}, 256")
    if o.dbg:
        e("s_memrealtime s[58:59]")
        e("s_waitcnt lgkmcnt(0)")
        e("s_sub_u32 s58, s58, s52")
        e(f"s_add_u32 m0, {sr(S_HEAD)}, 4")
        e("s_nop 3")
        e(f"v_writelane_b32 v{V_DBG}, s58, m0")
    e(f"s_add_u32 {sr(S_HEAD)}, {sr(S_HEAD)}, 1")
    if o.asym:
        e(f"s_lshr_b32 s34, {o.asymmask}, {sr(S_HEAD)}")
        e("s_and_b32 s34, s34, s35")
    e(f"s_cmp_lt_u32 {sr(S_HEAD)}, 4")
    e("s_cbranch_scc1 L_head")
    g.c("==== tail")
    if o.hx: e(f"s_xor_b32 {sr(S_OOFF)}, {sr(S_OOFF)}, s47")
    for x in vreads(15): e(x)
    e("s_waitcnt lgkmcnt(0)")
    mf = pv(15, tail=True)
    for x in mf[:18]: e(x)
    def tail_store(qb):
        for j in range(4 * qb, 4 * qb + 4):
            e(f"s_waitcnt lgkmcnt({TW[j]})")
            e(f"buffer_store_dwordx4 {vr(V_S+4*j,4)}, {vr(V_DQ + (j & 1))}, {sr(S_OSRD,4)}, {sr(S_OOFF)} offen offset:{1024*(j%4)}{stflags}")
        e(f"s_add_u32 {sr(S_OOFF)}, {sr(S_OOFF)}, 4096")
    TW = {}
    n = 0
    for qb in range(4):
        for x in linv([qb]): e(x)
        for db in range(8):
            if qb < 2: e(mf[18 + 9 * qb + db])
            for x in opack_unit(db, qb, n): e(x)
            n += 1
            if db == 3 and qb > 0:
                for j in range(4 * qb - 4, 4 * qb): TW[j] = 4 + (4 * qb - 1 - j)
                tail_store(qb - 1)
        if qb < 2: e(mf[18 + 9 * qb + 8])
        for j in range(4 * qb, 4 * qb + 4):
            e(f"ds_read_b128 {vr(V_S+4*j,4)}, {vr(V_OR)} offset:{j*1024}")
    for j in range(12, 16): TW[j] = 15 - j
    tail_store(3)
    if o.stamps:
        e("s_waitcnt vmcnt(0)")
        stamp_dump()
    if o.dbg:
        D = V_DBG
        e(f"s_cmp_lg_u32 {sr(S_TMP)}, 3")
        e("s_cbranch_scc1 L_end")
        e("s_waitcnt vmcnt(0)")
        e("s_memrealtime s[58:59]")
        e("s_memtime s[60:61]")
        e("s_waitcnt lgkmcnt(0)")
        e("s_mov_b32 s32, s48")
        e("s_and_b32 s33, s49, 0xffff")
        e("s_mov_b32 s34, 64")
        e("s_mov_b32 s35, 0x20000")
        e("s_not_b32 s62, s52")
        e(f"v_writelane_b32 v{D}, s62, 0")
        e(f"v_writelane_b32 v{D}, s58, 1")
        e("s_not_b32 s62, s58")
        e(f"v_writelane_b32 v{D}, s62, 2")
        e("s_sub_u32 s62, s56, s52")
        e(f"v_writelane_b32 v{D}, s62, 3")
        e("s_sub_u32 s62, s58, s52")
        e("s_lshl_b32 s62, s62, 16")
        e("s_sub_u32 s63, s60, s50")
        e("s_lshr_b32 s63, s63, 3")
        e("s_or_b32 s62, s62, s63")
        e("s_getreg_b32 s63, hwreg(HW_REG_XCC_ID)")
        e("s_and_b32 s63, s63, 7")
        e("s_add_u32 m0, s63, 8")
        e("s_nop 3")
        e(f"v_writelane_b32 v{D}, s62, m0")
        e(f"v_mbcnt_lo_u32_b32 v{D+1}, -1, 0")
        e(f"v_mbcnt_hi_u32_b32 v{D+1}, -1, v{D+1}")
        e(f"v_lshlrev_b32 v{D+1}, 2, v{D+1}")
        e(f"buffer_atomic_umax v{D}, v{D+1}, s[32:35], 0 offen")
    g.lab("L_end")
    e("s_endpgm")
    for b in fallbacks:
        g.lab(f"L_fb{b}")
        e(f"s_mov_b32 s37, {b}")
        e(f"s_branch L_fbp{b % 2}")
    for par in range(2):
        g.lab(f"L_fbp{par}")
        e("s_nop 15")
        for q in range(4):
            X0, X1 = V_X, V_X + 1
            for x in rowmax(par, q, X0, X1): e(x)
            e(f"v_mul_f32 {vr(X0)}, {sr(S_C)}, {vr(X0)}")
            e(f"v_sub_f32 {vr(X0)}, {sr(S_THR)}, {vr(X0)}")
            e(f"v_min_f32 {vr(X0)}, {vr(X0)}, {vr(V_NMC+q)}")
            e(f"v_sub_f32 {vr(X1)}, {vr(X0)}, {vr(V_NMC+q)}")
            e(f"v_exp_f32 {vr(X1)}, {vr(X1)}")
            e(f"v_mov_b32 {vr(V_NMC+q)}, {vr(X0)}")
            for db in range(9):
                k, base = oreg(db, q) if db < 8 else ('a', A_L + 4 * q)
                for i in range(4):
                    if k == 'v':
                        e(f"v_mul_f32 {vr(base+i)}, {vr(base+i)}, {vr(X1)}")
                    else:
                        e(f"v_accvgpr_read_b32 {vr(V_X+2)}, {ar(base+i)}")
                        e(f"v_mul_f32 {vr(V_X+2)}, {vr(V_X+2)}, {vr(X1)}")
                        e(f"v_accvgpr_write_b32 {ar(base+i)}, {vr(V_X+2)}")
        for x in sm_linear(par): e(x)
        e("s_nop 1")
        bs = [b for b in fallbacks if b % 2 == par]
        for b in bs[:-1]:
            e(f"s_cmp_eq_u32 s37, {b}")
            e(f"s_cbranch_scc1 L_ret{b}")
        e(f"s_branch L_ret{bs[-1]}")

    g.lab("L_codeend")
    out = HEADER
    out += f"; @launch grid=(256,1,1) block=(256,1,1) lds=163840\n"
    out += '.amdgcn_target "amdgcn-amd-amdhsa--gfx950"\n.text\n'
    out += f".globl {NAME}_kernel\n.p2align 8\n.type {NAME}_kernel,@function\n{NAME}_kernel:\n"
    out += "\n".join(g.lines) + "\n"
    out += f""".section .rodata,"a"
.p2align 6
.amdhsa_kernel {NAME}_kernel
  .amdhsa_next_free_vgpr {256 + NACC}
  .amdhsa_next_free_sgpr {102 if (o.stamps or o.dbg or o.sdelay) else 48}
  .amdhsa_accum_offset 256
  .amdhsa_group_segment_fixed_size 0
  .amdhsa_kernarg_size 48
  .amdhsa_user_sgpr_count 2
  .amdhsa_user_sgpr_kernarg_segment_ptr 1
  .amdhsa_system_sgpr_workgroup_id_x 1
.end_amdhsa_kernel
"""
    return out

def main():
    ap = argparse.ArgumentParser()
    il = lambda s: [int(x) for x in s.split(",")]
    ap.add_argument("-o", default="out.s")
    ap.add_argument("--hs", type=int, default=1)
    ap.add_argument("--ldflags", default="nt")
    ap.add_argument("--stflags", default="sc1")
    ap.add_argument("--bias", type=float, default=14.0)
    ap.add_argument("--peel", action="store_true")
    ap.add_argument("--rdA", type=int, default=26)
    ap.add_argument("--rdB", type=int, default=28)
    ap.add_argument("--slack", type=int, default=1)
    ap.add_argument("--verbose", action="store_true")
    ap.add_argument("--lazy", type=il, default=[2, 2, 3, 4, 4, 5, 6, 6, 7, 8, 8, 9, 10, 10, 11, 12])
    ap.add_argument("--rd0", type=int, default=0)
    ap.add_argument("--dm0", type=int, default=0)
    ap.add_argument("--dm1", type=int, default=32)
    ap.add_argument("--dmfront", action="store_true")
    ap.add_argument("--st_iter", type=il, default=[2, 4, 6, 8, 10, 12, 13, 14])
    ap.add_argument("--q_iter", type=il, default=[-1, 0, 1, 3, 5, 7, 9, 11])
    ap.add_argument("--flight", type=int, default=2)
    ap.add_argument("--pro1", type=int, default=2)
    ap.add_argument("--inig", type=int, default=16)
    ap.add_argument("--op0", type=int, default=13)
    ap.add_argument("--op1", type=int, default=98)
    ap.add_argument("--qkord", type=int, default=0)
    ap.add_argument("--pvord", type=int, default=0)
    ap.add_argument("--stamps", action="store_true")
    ap.add_argument("--dbg", action="store_true")
    ap.add_argument("--rot", type=int, default=0)
    ap.add_argument("--hx", type=int, default=0)
    ap.add_argument("--noxmap", action="store_true")
    ap.add_argument("--warm", action="store_true")
    ap.add_argument("--nodma", action="store_true")
    ap.add_argument("--sdelay", type=int, default=0)
    ap.add_argument("--sgroups", type=int, default=8)
    ap.add_argument("--serial", type=int, default=0)
    ap.add_argument("--pvswap", action="store_true")
    ap.add_argument("--nochk", action="store_true")
    ap.add_argument("--qoff0", type=int, default=0)
    ap.add_argument("--asym", type=int, default=0)
    ap.add_argument("--asymmask", type=int, default=2)
    ap.add_argument("--pst", action="store_true")
    ap.add_argument("--nobar", action="store_true")
    ap.add_argument("--nolazy", action="store_true")
    ap.add_argument("--xgrp", type=int, default=0)
    ap.add_argument("--xmask", type=int, default=3)
    o = ap.parse_args()
    open(o.o, "w").write(build(o))

if __name__ == "__main__":
    main()
```

```python
import sys, struct, argparse

def f32bits(x):
    return struct.unpack('<I', struct.pack('<f', x))[0]

NAME = "standalone__mha_softmax__near_ridge"
HEADER = """; Kernarg layout for this problem (48 bytes, ptrs only, base s[0:1]):
"""
V_OV = 0
V_S = 64
V_P = 128
V_KF = 160
V_PK = 192
V_X = 200
V_T = 208
NT = 6
V_CK = 214
V_OR = 215
V_KA, V_MX, V_VA = 216, 220, 224
V_DK, V_DV, V_DQ, V_OW = 232, 234, 236, 240
V_NMC, V_INV = 244, 248
V_DBG = 252
A_O, A_SP, A_Q, A_VF, A_L, A_ONE = 0, 64, 128, 192, 224, 240
NACC = 244

S_QSRD, S_KSRD, S_VSRD, S_OSRD = 4, 8, 12, 16
S_QOFF, S_KOFF, S_VOFF, S_OOFF = 20, 21, 22, 23
S_HEAD, S_WLDS, S_C, S_THR = 24, 25, 26, 27
S_TMP, S_WQ, S_ONR, S_GRP = 28, 29, 30, 31
S_WSRD = 88
S_STAMPOFF = 92

BLK = 8192
KBASE, VBASE, QBASE = 0, 32768, 65536
WST = 24576
QOFFS = [16384, 0]
M16 = "v_mfma_f32_16x16x32_bf16"

def vr(b, n=1): return f"v{b}" if n == 1 else f"v[{b}:{b+n-1}]"
def ar(b, n=1): return f"a{b}" if n == 1 else f"a[{b}:{b+n-1}]"
def sr(b, n=1): return f"s{b}" if n == 1 else f"s[{b}:{b+n-1}]"
def oreg(db, qb, spare=False):
    if qb < 2: return 'v', V_OV + 4 * (2 * db + qb)
    return 'a', (A_SP if spare else A_O) + 4 * (2 * db + qb - 2)
def otxt(db, qb, spare=False):
    k, b = oreg(db, qb, spare)
    return vr(b, 4) if k == 'v' else ar(b, 4)

class Gen:
    def __init__(self): self.lines = []
    def e(self, s):
        if s is None: return
        if s.endswith(":"): self.lines.append(s)
        else: self.lines.append("    " + s)
    def lab(self, s): self.lines.append(s + ":")
    def c(self, s): self.lines.append("    ; " + s)

def build(o):
    g = Gen(); e = g.e
    ldflags = (" " + o.ldflags) if o.ldflags else ""
    stflags = (" " + o.stflags) if o.stflags else ""

    def dma_kv(kind, b):
        b %= 16
        srd = S_KSRD if kind == 'K' else S_VSRD
        soff = S_KOFF if kind == 'K' else S_VOFF
        v0 = V_DK if kind == 'K' else V_DV
        base = (KBASE if kind == 'K' else VBASE) + (b % 4) * BLK
        inc = BLK + ((o.hs - 1) * 131072 if b == 15 else 0)
        if o.rot or o.hx:
            return [[f"s_add_u32 m0, {sr(S_WLDS)}, {base}", f"s_xor_b32 s39, {sr(soff)}, s36"],
                    [f"buffer_load_dwordx4 {vr(v0)}, {sr(srd,4)}, s39 offen{ldflags} lds"],
                    [f"buffer_load_dwordx4 {vr(v0+1)}, {sr(srd,4)}, s39 offen offset:1024{ldflags} lds"],
                    [f"s_add_u32 {sr(soff)}, {sr(soff)}, {inc}"]]
        return [[f"s_add_u32 m0, {sr(S_WLDS)}, {base}"],
                [f"buffer_load_dwordx4 {vr(v0)}, {sr(srd,4)}, {sr(soff)} offen{ldflags} lds"],
                [f"buffer_load_dwordx4 {vr(v0+1)}, {sr(srd,4)}, {sr(soff)} offen offset:1024{ldflags} lds"],
                [f"s_add_u32 {sr(soff)}, {sr(soff)}, {inc}"]]
    def dma_q(j, mode=None):
        inc = 2048 + ((65536 - 16384 + (o.hs - 1) * 65536) if j == 7 else 0)
        x = 2 * (j & 1)
        so = "s39" if o.hx else sr(S_QOFF)
        m0 = f"s_add_u32 m0, {sr(S_WQ)}, {QOFFS[j >> 2] + (j & 3) * 2048}"
        if o.qe and j < 4:
            if mode == 'init': m0 = f"s_add_u32 m0, {sr(S_WQ)}, {8192 + j * 2048}"
            elif mode is None and j < o.qe: m0 = f"s_add_u32 m0, s34, {j * 2048}"
        return [[m0] + ([f"s_xor_b32 s39, {sr(S_QOFF)}, s47"] if o.hx else []),
                [f"buffer_load_dwordx4 {vr(V_DQ+x)}, {sr(S_QSRD,4)}, {so} offen{ldflags} lds"],
                [f"buffer_load_dwordx4 {vr(V_DQ+x+1)}, {sr(S_QSRD,4)}, {so} offen offset:1024{ldflags} lds"],
                [f"s_add_u32 {sr(S_QOFF)}, {sr(S_QOFF)}, {inc}"]]
    def o_read(j):
        return [f"ds_read_b128 {vr(V_PK+4*p,4)}, {vr(V_OR)} offset:{j*2048+p*1024}" for p in range(2)]
    def o_store(j):
        inc = 2048 + ((65536 - 16384 + (o.hs - 1) * 65536) if j == 7 else 0)
        so = "s39" if o.hx else sr(S_OOFF)
        r = [[f"s_xor_b32 s39, {sr(S_OOFF)}, s47"] if o.hx else [],
             [f"buffer_store_dwordx4 {vr(V_PK,4)}, {vr(V_DQ)}, {sr(S_OSRD,4)}, {so} offen{stflags}"],
             [f"buffer_store_dwordx4 {vr(V_PK+4,4)}, {vr(V_DQ+1)}, {sr(S_OSRD,4)}, {so} offen offset:1024{stflags}"],
             [f"s_add_u32 {sr(S_OOFF)}, {sr(S_OOFF)}, {inc}"]]
        if j == 7:
            r[3].append(f"s_mov_b32 {sr(S_OSRD+2)}, {sr(S_ONR)}")
        return r
    def flat(op):
        r = list(op[0])
        if r: r.append("s_nop 0")
        return r + op[1] + op[2] + op[3]

    def stamp_dump():
        if not o.stamps: return
        D = V_DBG
        e(f"s_memrealtime s[54:55]")
        e("s_waitcnt lgkmcnt(0)")
        e(f"v_writelane_b32 v{D}, s56, 15")
        e(f"v_writelane_b32 v{D}, s58, 47")
        e(f"v_writelane_b32 v{D}, s54, 31")
        e(f"v_writelane_b32 v{D}, s50, 30")
        e(f"v_writelane_b32 v{D}, s52, 29")
        e(f"s_getreg_b32 s55, hwreg(HW_REG_XCC_ID)")
        e(f"v_writelane_b32 v{D}, s55, 28")
        e(f"v_mbcnt_lo_u32_b32 v{D+1}, -1, 0")
        e(f"v_mbcnt_hi_u32_b32 v{D+1}, -1, v{D+1}")
        e(f"v_lshlrev_b32 v{D+1}, 2, v{D+1}")
        e(f"buffer_store_dword v{D}, v{D+1}, {sr(S_WSRD,4)}, {sr(S_STAMPOFF)} offen")

    st_iter, q_iter = o.st_iter, o.q_iter
    F = o.flight
    KLA, VLA = 2 + F, F
    ext = {b: [] for b in range(16)}
    for j in range(8):
        assert 2 <= st_iter[j] <= 15
        ext[st_iter[j]].append(('ST', j))
    for j in range(8):
        assert -1 <= q_iter[j] <= 12
        if j >= 4: assert q_iter[j] >= st_iter[j - 4]
        ext[q_iter[j] % 16].append(('Q', j))
    assert st_iter == sorted(st_iter) and q_iter == sorted(q_iter)
    for b in range(16):
        assert sum(1 for k, _ in ext[b] if k == 'ST') <= 1
    ops = {b: ext[b] + [('K', b + KLA), ('V', b + VLA)] for b in range(16)}
    if o.stamps: ops[15].append(('STAMP', 0))
    cnt = lambda k: 1 if k == 'STAMP' else 2
    def seq_before(b):
        seq = []
        for it in range(b - 16, b):
            for k, x in ops[it % 16]:
                if it < 0 and k in ('K', 'V'): x -= 16
                seq.append((it, k, x))
        return seq
    def vm_wait(b):
        seq = seq_before(b)
        need = [i for i, (it, k, x) in enumerate(seq) if (k, x) in (('K', b + 2), ('V', b))]
        assert len(need) == 2
        if b == 14:
            need += [i for i, (it, k, x) in enumerate(seq) if k == 'Q']
        return sum(cnt(k) for (it, k, x) in seq[max(need) + 1:])
    sb = seq_before(0)
    first = min(i for i, (it, k, x) in enumerate(sb) if (k == 'K' and x >= 2) or (k == 'V' and x >= 0))
    pro_items = [(k, x) for (it, k, x) in sb[first:] if k != 'STAMP']
    for i, (it, k, x) in enumerate(sb):
        if k == 'Q' and it == -1: assert i >= first
    def pro_op(k, x):
        if k in ('K', 'V'): return flat(dma_kv(k, x))
        if k == 'Q': return flat(dma_q(x))
        return [f"buffer_store_dword {vr(V_DQ)}, {vr(V_DQ)}, {sr(S_OSRD,4)}, 0 offen"] * 2

    e("s_cmp_ge_u32 s2, 256")
    e("s_cbranch_scc1 L_end")
    e("s_load_dwordx4 s[40:43], s[0:1], 0")
    e("s_load_dwordx4 s[44:47], s[0:1], 16")
    if o.dbg or o.stamps:
        e(f"s_load_dwordx2 s[48:49], s[0:1], {32 if o.dbg else 40}")
        e("s_memtime s[50:51]")
        e("s_memrealtime s[52:53]")
        e("s_mov_b32 s66, s2")
    e(f"s_lshr_b32 {sr(S_GRP)}, s2, 3")
    e(f"s_and_b32 {sr(S_GRP)}, {sr(S_GRP)}, {o.sgroups-1}")
    e(f"s_mov_b32 s38, {sr(S_GRP)}")
    if o.xgrp:
        e("s_getreg_b32 s38, hwreg(HW_REG_XCC_ID)")
        e("s_and_b32 s38, s38, 1")
        e("s_xor_b32 s38, s38, 1")
        e(f"s_mul_i32 s38, s38, {o.xgrp}")
        e(f"s_and_b32 s39, {sr(S_GRP)}, {o.xmask}")
        e("s_add_u32 s33, s38, s39")
    if o.sdelay:
        e(f"s_mov_b32 s67, {sr(S_GRP)}")
        g.lab("L_sd")
        e("s_cmp_eq_u32 s67, 0")
        e("s_cbranch_scc1 L_sd_done")
        e(f"s_sleep {o.sdelay}")
        e("s_sub_u32 s67, s67, 1")
        e("s_branch L_sd")
        g.lab("L_sd_done")
    e("s_mov_b32 s36, 0")
    if o.rot:
        e(f"s_mul_i32 s36, s2, {o.rot}")
        e("s_lshr_b32 s36, s36, 3")
        e("s_and_b32 s36, s36, 15")
        e("s_lshl_b32 s36, s36, 13")
    if o.hx:
        e(f"s_mul_i32 s37, s2, {o.hx}")
        e("s_lshr_b32 s37, s37, 3")
        e("s_and_b32 s37, s37, 3")
        lgh = o.hs.bit_length() - 1
        e(f"s_lshl_b32 s38, s37, {17 + lgh}")
        e("s_or_b32 s36, s36, s38")
        e(f"s_lshl_b32 s37, s37, {16 + lgh}")
    if not o.noxmap:
        e("s_and_b32 s3, s2, 7")
        e("s_lshl_b32 s3, s3, 5")
        e("s_lshr_b32 s2, s2, 3")
        e("s_or_b32 s2, s2, s3")
    e(f"v_lshrrev_b32 v1, 6, v0")
    e(f"v_and_b32 v2, 63, v0")
    e(f"v_readfirstlane_b32 {sr(S_TMP)}, v1")
    e(f"v_lshrrev_b32 v3, 4, v2")
    e(f"v_and_b32 v4, 15, v2")
    e(f"v_lshl_add_u32 v5, v1, 3, v3")
    e(f"v_and_b32 v6, 15, v5")
    e(f"v_xor_b32 v6, v6, v4")
    e(f"v_lshlrev_b32 v6, 4, v6")
    e(f"v_lshl_add_u32 {vr(V_DK)}, v5, 8, v6")
    e(f"v_xor_b32 {vr(V_DK+1)}, 64, {vr(V_DK)}")
    e(f"v_lshlrev_b32 v6, 1, v3")
    e(f"v_xor_b32 v6, v6, v4")
    e(f"v_lshlrev_b32 v6, 4, v6")
    e(f"v_lshl_add_u32 {vr(V_DV)}, v5, 8, v6")
    e(f"v_xor_b32 {vr(V_DV+1)}, 128, {vr(V_DV)}")
    e(f"v_lshl_add_u32 v5, v1, 6, v3")
    e(f"v_lshlrev_b32 v5, 8, v5")
    e(f"v_xor_b32 v6, v3, v4")
    e(f"v_lshl_add_u32 {vr(V_DQ)}, v6, 4, v5")
    for x in range(1, 4):
        e(f"v_xor_b32 {vr(V_DQ+x)}, {x*64}, {vr(V_DQ)}")
    if o.warm:
        e("s_getpc_b64 s[34:35]")
        g.lab("L_pc")
        e(f"v_lshl_add_u32 v12, {sr(S_GRP)}, 2, v1")
        e("v_min_u32 v12, (L_codeend - L_pc) / 1024 - 1, v12")
        e("v_lshlrev_b32 v12, 10, v12")
        e("v_lshl_add_u32 v12, v2, 4, v12")
        e("v_mov_b32 v13, s35")
        e("v_add_co_u32 v12, vcc, s34, v12")
        e("s_nop 1")
        e("v_addc_co_u32 v13, vcc, 0, v13, vcc")
        e("global_load_dwordx4 v[16:19], v[12:13], off")
    e(f"s_lshl_b32 {sr(S_WLDS)}, {sr(S_TMP)}, 11")
    e(f"s_mul_i32 {sr(S_WQ)}, {sr(S_TMP)}, {WST}")
    e(f"s_add_u32 {sr(S_WQ)}, {sr(S_WQ)}, {QBASE}")
    if o.hs == 1:
        e("s_lshl_b32 s2, s2, 2")
        e("s_add_u32 s3, s2, 4")
    else:
        lg = o.hs.bit_length() - 1
        e(f"s_lshr_b32 s3, s2, {lg}")
        e(f"s_lshl_b32 s3, s3, {lg+2}")
        e(f"s_and_b32 s2, s2, {o.hs-1}")
        e(f"s_add_u32 s2, s2, s3")
        e(f"s_add_u32 s3, s3, {4*o.hs}")
    e(f"s_lshl_b32 {sr(S_QOFF)}, s2, 16")
    e(f"s_lshl_b32 {sr(S_KOFF)}, s2, 17")
    e(f"s_lshl_b32 {sr(S_QSRD+2)}, s3, 16")
    e(f"s_lshl_b32 {sr(S_KSRD+2)}, s3, 17")
    e(f"s_mov_b32 {sr(S_VSRD+2)}, {sr(S_KSRD+2)}")
    e(f"s_mov_b32 {sr(S_ONR)}, {sr(S_QSRD+2)}")
    e(f"s_sub_u32 {sr(S_OOFF)}, {sr(S_QOFF)}, {65536*o.hs}")
    e(f"s_mov_b32 {sr(S_OSRD+2)}, 0")
    e(f"s_mov_b32 {sr(S_VOFF)}, {sr(S_KOFF)}")
    for srd in (S_QSRD, S_KSRD, S_VSRD, S_OSRD):
        e(f"s_mov_b32 {sr(srd+3)}, 0x20000")
    e("s_waitcnt lgkmcnt(0)")
    if o.pst: e("s_memrealtime s[70:71]")
    for srd, p in ((S_KSRD, 42), (S_QSRD, 40), (S_VSRD, 44), (S_OSRD, 46)):
        e(f"s_mov_b32 {sr(srd)}, s{p}")
        e(f"s_and_b32 {sr(srd+1)}, s{p+1}, 0xffff")
    if o.hx: e("s_mov_b32 s47, s37")
    if o.otlb:
        e(f"s_mov_b32 {sr(S_OSRD+2)}, {sr(S_ONR)}")
        e("v_mov_b32 v20, 0")
        e(f"buffer_load_dword v21, v20, {sr(S_OSRD,4)}, {sr(S_QOFF)} offen nt")
        e(f"s_mov_b32 {sr(S_OSRD+2)}, 0")
    init_ops = [dma_kv('K', 0)] + [dma_q(j, 'init') for j in range(8)] + [dma_kv('K', 1)]
    for n, op in enumerate(init_ops):
        for x in flat(op): e(x)
        if o.xgrp and n < o.xgrp + o.xmask:
            e(f"s_cmp_le_u32 s33, {n}")
            e(f"s_cbranch_scc1 L_ser{n}")
            e("s_waitcnt vmcnt(0)")
            g.lab(f"L_ser{n}")
        elif n < o.serial:
            e(f"s_cmp_le_u32 {sr(S_GRP)}, {n * o.sgroups // (o.serial + 1) + o.sgroups // (o.serial + 1) - 1}")
            e(f"s_cbranch_scc1 L_ser{n}")
            e("s_waitcnt vmcnt(0)")
            g.lab(f"L_ser{n}")
    if o.pst: e("s_memrealtime s[72:73]")
    if o.qoff0:
        e(f"s_mov_b32 {sr(S_QSRD+2)}, 0")
    e(f"v_xor_b32 v9, v3, v4")
    e(f"v_lshlrev_b32 v9, 4, v9")
    e(f"v_lshl_add_u32 {vr(V_KA)}, v4, 8, v9")
    for s in range(1, 4):
        e(f"v_xor_b32 {vr(V_KA+s)}, {s*64}, {vr(V_KA)}")
    e(f"v_lshrrev_b32 v9, 2, v2")
    e(f"v_and_b32 v10, 7, v9")
    e(f"v_lshlrev_b32 v10, 1, v10")
    e(f"v_bfe_u32 v11, v2, 1, 1")
    e(f"v_xor_b32 v10, v10, v11")
    e(f"v_lshlrev_b32 v10, 4, v10")
    e(f"v_lshl_add_u32 v10, v9, 8, v10")
    e(f"v_and_b32 v11, 1, v2")
    e(f"v_lshl_add_u32 v10, v11, 3, v10")
    e(f"v_add_u32 {vr(V_VA)}, {VBASE}, v10")
    for t in range(1, 8):
        e(f"v_xor_b32 {vr(V_VA+t)}, {t*32}, {vr(V_VA)}")
    e(f"v_and_b32 v9, 7, v4")
    e(f"v_lshrrev_b32 v10, 1, v3")
    e(f"v_xor_b32 v9, v9, v10")
    e(f"v_lshlrev_b32 v9, 4, v9")
    e(f"v_lshl_add_u32 v9, v4, 8, v9")
    e(f"v_and_b32 v10, 1, v3")
    e(f"v_lshl_add_u32 v9, v10, 3, v9")
    e(f"v_add_u32 {vr(V_OW)}, {sr(S_WQ)}, v9")
    for x in range(1, 4):
        e(f"v_xor_b32 {vr(V_OW+x)}, {x*32}, {vr(V_OW)}")
    e(f"v_lshlrev_b32 v9, 4, v2")
    e(f"v_add_u32 {vr(V_OR)}, {sr(S_WQ)}, v9")
    e(f"s_mov_b32 {sr(S_C)}, {hex(f32bits(128**-0.5 * 1.4426950408889634))}")
    e(f"s_mov_b32 {sr(S_THR)}, {hex(f32bits(-o.bias))}")
    e(f"s_mov_b32 {sr(S_HEAD)}, 0")
    e(f"v_mov_b32 v9, 0x3f803f80")
    for i in range(4):
        e(f"v_accvgpr_write_b32 {ar(A_ONE+i)}, v9")
    npro = min(o.pro1, len(pro_items))
    for k, x in pro_items[:npro]:
        assert k != 'Q'
        for y in pro_op(k, x): e(y)
    pro_rest = pro_items[npro:]
    if o.qe:
        for j in range(o.qe):
            for y in flat(dma_q(j, 'early')): e(y)
        e(f"s_sub_u32 {sr(S_QOFF)}, {sr(S_QOFF)}, {2048 * o.qe}")
        e(f"s_mov_b32 {sr(S_QSRD+2)}, 0")
        e(f"s_add_u32 s34, {sr(S_WQ)}, 8192")
        npro += o.qe
    if o.stamps:
        e(f"s_mov_b32 {sr(S_WSRD)}, s48")
        e(f"s_and_b32 {sr(S_WSRD+1)}, s49, 0xffff")
        e(f"s_mov_b32 {sr(S_WSRD+2)}, {1<<24}")
        e(f"s_mov_b32 {sr(S_WSRD+3)}, 0x20000")
        e(f"s_lshl_b32 {sr(S_STAMPOFF)}, s66, 3")
        e(f"s_add_u32 {sr(S_STAMPOFF)}, {sr(S_STAMPOFF)}, {sr(S_TMP)}")
        e(f"s_lshl_b32 {sr(S_STAMPOFF)}, {sr(S_STAMPOFF)}, 11")

    def kreads(b):
        off = KBASE + (b % 4) * BLK
        return [f"ds_read_b128 {vr(V_KF+4*(4*kb+s),4)}, {vr(V_KA+s)} offset:{off+4096*kb}" for kb in range(2) for s in range(4)]
    def qaddr():
        return [f"v_add_u32 {vr(V_X+s)}, {sr(S_WQ)}, {vr(V_KA+s)}" for s in range(4)]
    def qreads(init=False):
        QO = [8192, 0] if (init and o.qe) else QOFFS
        return [f"ds_read_b128 {ar(A_Q+4*(4*qb+s),4)}, {vr(V_X+s)} offset:{QO[qb>>1]+4096*(qb&1)}" for qb in range(4) for s in range(4)]
    def vreads(b, alt=False):
        return [f"ds_read_b64_tr_b16 {vr(V_KF+4*db+2*w,2) if alt else ar(A_VF+4*db+2*w,2)}, {vr(V_VA+db)} offset:{(b % 4)*BLK + w*4096}" for db in range(8) for w in range(2)]
    def qk(b, only=None):
        S = V_S + 32 * (b % 2)
        if o.qkord == 0:
            order = [(qb, kb, s) for qb in range(4) for kb in range(2) for s in range(4)]
        elif o.qkord == 2:
            order = [(qb, kb, s) for kb in range(2) for s in range(4) for qb in range(4)]
        elif o.qkord == 3:
            order = [(2 * h + q, kb, s) for h in range(2) for kb in range(2) for s in range(4) for q in range(2)]
        r = []
        for qb, kb, s in order:
            if only is not None and qb != only: continue
            D = S + 8 * qb + 4 * kb
            r.append(f"{M16} {vr(D,4)}, {vr(V_KF+4*(4*kb+s),4)}, {ar(A_Q+4*(4*qb+s),4)}, " + ("0" if s == 0 else vr(D, 4)))
        return r
    def pv_order(tail=False):
        if tail:
            return [(db, qb) for qb in range(4) for db in (8, 0, 1, 2, 3, 4, 5, 6, 7)]
        if o.pvord == 1:
            return [(8, qb) for qb in range(4)] + [(db, 2 * h + q) for h in range(2) for db in range(8) for q in range(2)]
        if o.pvord == 2:
            return [(8, qb) for qb in range(4)] + [(db, qb) for qb in range(4) for db in range(8)]
        return [(8, qb) for qb in range(4)] + [(db, qb) for db in range(8) for qb in range(4)]
    def pv(b, tail=False, alt=False):
        b %= 16
        P = V_P + 16 * (b % 2)
        r = []
        for db, qb in pv_order(tail):
            if db == 8:
                D, A = ar(A_L + 4 * qb, 4), ar(A_ONE, 4)
            else:
                D, A = otxt(db, qb), (vr(V_KF + 4 * db, 4) if alt else ar(A_VF + 4 * db, 4))
            Cc = "0" if b == 0 else D
            if b == 15 and not tail and db < 8:
                D = otxt(db, qb, spare=True)
            if o.pvswap: r.append(f"{M16} {D}, {vr(P+4*qb,4)}, {A}, {Cc}")
            else: r.append(f"{M16} {D}, {A}, {vr(P+4*qb,4)}, {Cc}")
        return r
    T = lambda k: vr(V_T + k % NT)
    HA, HB = 32, 36
    NG = HA + HB
    def sm_parts(b):
        S = V_S + 32 * (b % 2)
        P = V_P + 16 * (b % 2)
        Fm = lambda k: f"v_fma_f32 {T(k)}, {vr(S+k)}, {sr(S_C)}, {vr(V_NMC + k // 8)}"
        E = lambda k: f"v_exp_f32 {T(k)}, {T(k)}"
        C = lambda k: f"v_cvt_pk_bf16_f32 {vr(P+k//2)}, {T(k-1)}, {T(k)}"
        gaps = [[] for _ in range(NG)]
        for k in range(32):
            gaps[2 * k].append(E(k))
            if k + 1 < 32: gaps[2 * k + 1].append(Fm(k + 1))
            if k % 2 == 1: gaps[2 * k + 1].append(C(k))
        return [Fm(0)], gaps
    def check_items(b):
        P = V_P + 16 * (b % 2)
        r = []
        for n in range(8):
            p = P + 2 * n
            ins = f"v_or_b32 {vr(V_CK)}, {vr(p)}, {vr(p+1)}" if n == 0 else f"v_or3_b32 {vr(V_CK)}, {vr(V_CK)}, {vr(p)}, {vr(p+1)}"
            r.append((ins, 2 * (4 * n + 3) + 2))
        r.append((f"v_and_b32 {vr(V_CK)}, 0x40004000, {vr(V_CK)}", 64))
        r.append((f"v_cmp_ne_u32 vcc, 0, {vr(V_CK)}", 64))
        return r
    def sm_linear(b):
        pre, gaps = sm_parts(b)
        r = list(pre)
        for i, gp in enumerate(gaps[:64]):
            if i == 63: r.append("s_nop 0")
            r += [x for x in gp if 'v_or' not in x]
        return r
    def xreduce(dst, op, tmp):
        return [f"v_mov_b32 {vr(tmp)}, {vr(dst)}", "s_nop 1",
                f"v_permlane32_swap_b32 {vr(dst)}, {vr(tmp)}",
                f"{op} {vr(dst)}, {vr(dst)}, {vr(tmp)}",
                f"v_mov_b32 {vr(tmp)}, {vr(dst)}", "s_nop 1",
                f"v_permlane16_swap_b32 {vr(dst)}, {vr(tmp)}",
                f"{op} {vr(dst)}, {vr(dst)}, {vr(tmp)}"]
    def rowmax(b, q, dst, tmp):
        S = V_S + 32 * (b % 2) + 8 * q
        return [f"v_max3_f32 {vr(dst)}, {vr(S)}, {vr(S+1)}, {vr(S+2)}",
                f"v_max3_f32 {vr(dst)}, {vr(dst)}, {vr(S+3)}, {vr(S+4)}",
                f"v_max3_f32 {vr(dst)}, {vr(dst)}, {vr(S+5)}, {vr(S+6)}",
                f"v_max_f32 {vr(dst)}, {vr(dst)}, {vr(S+7)}"] + xreduce(dst, "v_max_f32", tmp)
    def zip4(ls):
        r = []
        for t in zip(*ls):
            if t[0].startswith("s_nop"): continue
            r += list(t)
        return r
    def minit():
        return zip4([rowmax(0, q, V_MX + q, V_X + 4 + q) + [f"v_mul_f32 {vr(V_MX+q)}, {sr(S_C)}, {vr(V_MX+q)}"] for q in range(4)])
    def mset(q):
        return f"v_sub_f32 {vr(V_NMC+q)}, {sr(S_THR)}, {vr(V_MX+q)}"
    def linv(qs=range(4)):
        return [f"v_accvgpr_read_b32 {vr(V_INV+q)}, {ar(A_L+4*q)}" for q in qs] + \
               [f"v_rcp_f32 {vr(V_INV+q)}, {vr(V_INV+q)}" for q in qs] + ["s_nop 0"]
    def opack_unit(db, qb, n, spare=False):
        k, base = oreg(db, qb, spare)
        r = []
        if k == 'a':
            t = V_X + 4 * (n % 2)
            for i in range(4): r.append(f"v_accvgpr_read_b32 {vr(t+i)}, {ar(base+i)}")
            base = t
        for i in range(4): r.append(f"v_mul_f32 {vr(base+i)}, {vr(base+i)}, {vr(V_INV+qb)}")
        for i in range(2): r.append(f"v_cvt_pk_bf16_f32 {vr(base+i)}, {vr(base+2*i)}, {vr(base+2*i+1)}")
        r.append(f"ds_write_b64 {vr(V_OW + (db & 3))}, {vr(base,2)} offset:{128*(db>>2)+4096*qb}")
        return r

    class Gap:
        def __init__(self, valu=()):
            self.salu, self.mem, self.valu = [], [], list(valu)
        def cost(self):
            c = 8 + 4 * max(0, len(self.salu) - 1)
            for i, x in enumerate(self.mem):
                c += (16 if x.startswith("buffer") else 12 if x.startswith("ds_write") else 4) + (4 if i else 0)
            for x in self.valu: c += 8 if x.startswith(("v_exp", "v_rcp")) else 4
            return c
        def add(self, x):
            if x.startswith("s_") and not x.startswith("s_nop"): self.salu.append(x)
            elif x.startswith(("ds_", "buffer")): self.mem.append(x)
            else: self.valu.append(x)
        def ins(self): return self.salu + self.mem + self.valu
    def place(G, items, a, b, strict=True):
        n = len(items)
        prev = a - 1
        for i, it in enumerate(items):
            x, lo = it if isinstance(it, tuple) else (it, a)
            front = x.startswith(("ds_", "buffer")) or (x.startswith("s_") and not x.startswith("s_nop"))
            w0 = max(lo, a + i * (b - a) // n - o.slack, prev + 1 if (front or strict) else max(prev, a))
            w1 = max(a + (i + 1) * (b - a) // n + o.slack, w0 + 1)
            rest = n - 1 - i
            w1 = min(w1, b - (rest if strict else 0))
            if w1 <= w0: w1 = w0 + 1
            assert w0 < len(G), (x, w0)
            def inc(gi):
                gp = G[gi]; c0 = max(16, gp.cost())
                t = Gap(gp.valu); t.salu = list(gp.salu); t.mem = list(gp.mem); t.add(x)
                return (max(16, t.cost()) - c0, t.cost(), gi)
            gi = min(inc(k) for k in range(w0, min(w1, len(G))))[2]
            G[gi].add(x); prev = gi
        return prev

    def spread(gaps, groups, a, b, front=False, step=1):
        idx = list(range(a, b, step))
        for i, gr in enumerate(groups):
            gi = idx[i * len(idx) // max(len(groups), 1)]
            if front: gaps[gi] = list(gr) + gaps[gi]
            else: gaps[gi] += list(gr)
    single = lambda l: [[x] for x in l]

    kr0 = kreads(0); qr = qreads(init=True)
    for x in qaddr(): e(x)
    if o.prog:
        e(f"s_waitcnt vmcnt({2*npro+18})")
        e("s_barrier")
        for x in kr0: e(x)
        for qb in range(4):
            e(f"s_waitcnt vmcnt({2*npro+2+4*(3-qb)})")
            for x in qr[4*qb:4*qb+4]: e(x)
            e("s_waitcnt lgkmcnt(0)")
            for x in qk(0, only=qb): e(x)
        e(f"s_waitcnt vmcnt({2*npro})")
        e("s_barrier")
        for x in kreads(1): e(x)
        mi = minit()
        while pro_rest and not (pro_rest[0][0] == 'K' and pro_rest[0][1] >= 4):
            k, xx = pro_rest.pop(0)
            for y in pro_op(k, xx): e(y)
        for x in mi: e(x)
    else:
        e(f"s_waitcnt vmcnt({2*npro})")
        e("s_barrier")
        for x in kr0[:4] + qr[:4] + kr0[4:] + qr[4:]: e(x)
        e("s_waitcnt lgkmcnt(0)")
        for i, x in enumerate(qk(0)):
            e(x)
            if i % 4 == 0 and pro_rest and not (pro_rest[0][0] == 'K' and pro_rest[0][1] >= 4):
                k, xx = pro_rest.pop(0)
                for y in pro_op(k, xx): e(y)
        for x in kreads(1): e(x)
        e("s_nop 3")
        for x in minit(): e(x)
    if any(k == 'K' and xx >= 4 for k, xx in pro_rest):
        e("s_barrier")
    for k, xx in pro_rest:
        for y in pro_op(k, xx): e(y)
    if o.pst:
        e("s_memrealtime s[84:85]")
        e("s_waitcnt lgkmcnt(0)")
        for i in range(8): e(f"v_writelane_b32 v{V_DBG}, s{70+2*i}, {16+i}")
    stamp_dump()
    if o.dbg:
        e("s_memrealtime s[56:57]")
        e(f"v_mov_b32 v{V_DBG}, 0")
    if o.asym:
        e(f"s_and_b32 s35, {sr(S_GRP)}, {o.xmask}")
        e(f"s_cmp_ge_u32 s35, {o.asym}")
        e("s_cselect_b32 s35, 1, 0")
        e(f"s_and_b32 s34, s35, {o.asymmask & 1}")
    fallbacks = []
    def make_gaps(first):
        AG = []
        pres = []
        for b in range(16):
            pre, gaps = sm_parts(b)
            G = [Gap(x) for x in gaps]
            if b == 0:
                pre = [mset(0)] + pre
                for q in range(1, 4): G[4 * q + 1].add(mset(q))
            AG.append(G); pres.append(pre)
        for b in range(16):
            G = AG[b]
            rd = [] if (first and b == 0) else vreads(b - 1)
            for j in range(8):
                if st_iter[j] == b: rd = rd + o_read(j)
            if rd: place(G, rd, o.rd0, o.rdA)
            dm = []
            for k, x in ops[b]:
                op = dma_kv(k, x) if k in ('K', 'V') else o_store(x) if k == 'ST' else dma_q(x) if k == 'Q' else []
                for grp in op: dm += grp
            if o.nodma: dm = []
            if dm: place(G, dm, HA + o.dm0, HA + o.dm1)
            krd = kreads(b + 2)
            if b == 14:
                place(G, qaddr(), HA - 8, HA, strict=False)
                place(G, krd[:4] + qreads()[:4] + krd[4:] + qreads()[4:], HA, HA + 30)
            else:
                place(G, krd, HA + o.rd0, HA + o.rdB)
            if b >= 1 and not o.nochk:
                ck = check_items(b)
                place(G, ck[:5], 24, 62, strict=False)
                G[64].add(ck[5][0]); G[64].add(ck[6][0]); G[65].add(ck[7][0]); G[65].add(ck[8][0]); G[66].add(ck[9][0])
        place(AG[15], minit(), HA + 2, NG - 1, strict=False)
        if not first:
            CG = AG[0][HA:] + AG[1]
            place(CG, linv(), 8, 12, strict=False)
            order = pv_order()
            items = []
            for n, (db, qb) in enumerate([(db, qb) for db, qb in order if db < 8 and qb < 2]):
                pos = order.index((db, qb))
                for x in opack_unit(db, qb, n): items.append((x, max(pos + 5, 13), pos))
            prevlen = [len(gp.ins()) for gp in CG]
            place(CG, [(x, lo) for x, lo, pos in items], o.op0, o.op1, strict=False)
            for x, lo, pos in items:
                gi = [k for k, gp in enumerate(CG) if x in gp.ins()]
                assert len(gi) == 1 and lo <= gi[0] < NG + pos, (x, gi, pos)
        units = [(db, qb) for qb in (2, 3) for db in range(8)]
        for b in range(2, 14):
            its = []
            for u, (db, qb) in enumerate(units):
                if o.lazy[u] == b:
                    assert b < st_iter[2 * qb]
                    its += opack_unit(db, qb, u, spare=True)
            if its and not o.nolazy: place(AG[b], its, 0, NG - 2, strict=False)
        if o.verbose:
            print([sum(max(16, gp.cost()) for gp in G) for G in AG], file=sys.stderr)
        return list(zip(pres, AG))
    def emit_iter(b, pre, G, first=False):
        tag = "f" if first else ""
        g.c(f"==== iter {b} phase A {tag}")
        e("s_waitcnt lgkmcnt(0)")
        if o.stamps and b > 0:
            e(f"v_writelane_b32 v{V_DBG}, s56, {b-1}")
            e(f"v_writelane_b32 v{V_DBG}, s58, {32+b-1}")
        if o.qe and b == q_iter[o.qe - 1] + 1:
            e(f"s_mov_b32 {sr(S_QSRD+2)}, {sr(S_ONR)}")
            e(f"s_add_u32 s34, {sr(S_WQ)}, {QOFFS[0]}")
        if o.qoff0 and b == o.qoff0: e(f"s_mov_b32 {sr(S_QSRD+2)}, {sr(S_ONR)}")
        for x in pre: e(x)
        mf = qk(b + 1)
        for i in range(HA):
            e(mf[i])
            if o.pend and b == 14 and i == HA - 1:
                assert not G[i].salu
                e(f"s_cmp_eq_u32 {sr(S_HEAD)}, 3")
            for x in G[i].ins(): e(x)
        g.c(f"==== iter {b} phase B {tag}")
        if o.pend and b == 14:
            e(f"s_cbranch_scc1 L_last")
        if o.asym and not first:
            lab = f"L_as{b}"
            e(f"s_cmp_lg_u32 s34, 0")
            e(f"s_cbranch_scc1 {lab}")
            e(f"s_waitcnt vmcnt({max(0, vm_wait(b) - 6)})")
            g.lab(lab)
        e(f"s_waitcnt vmcnt({vm_wait(b)}) lgkmcnt(0)")
        if not o.nobar: e("s_barrier")
        if o.stamps:
            e("s_memtime s[56:57]")
            e("s_memrealtime s[58:59]")
        mf = pv(b - 1)
        for i in range(HB):
            e("s_nop 0" if (first and b == 0) else mf[i])
            for x in G[HA + i].ins(): e(x)
        if b >= 1:
            if not o.nochk: e(f"s_cbranch_vccnz L_fb{b}")
            if not first:
                g.lab(f"L_ret{b}")
                fallbacks.append(b)
    if o.peel:
        ag = make_gaps(True)
        emit_iter(0, *ag[0], first=True)
        emit_iter(1, *ag[1], first=True)
        e("s_branch L_ret1")
    g.lines.append(".p2align 6")
    g.lab("L_head")
    ag = make_gaps(False)
    for b in range(16):
        emit_iter(b, *ag[b])
    stamp_dump()
    if o.stamps:
        e(f"s_add_u32 {sr(S_STAMPOFF)}, {sr(S_STAMPOFF)}, 256")
    if o.dbg:
        e("s_memrealtime s[58:59]")
        e("s_waitcnt lgkmcnt(0)")
        e("s_sub_u32 s58, s58, s52")
        e(f"s_add_u32 m0, {sr(S_HEAD)}, 4")
        e("s_nop 3")
        e(f"v_writelane_b32 v{V_DBG}, s58, m0")
    e(f"s_add_u32 {sr(S_HEAD)}, {sr(S_HEAD)}, 1")
    if o.asym:
        e(f"s_lshr_b32 s34, {o.asymmask}, {sr(S_HEAD)}")
        e("s_and_b32 s34, s34, s35")
    if not o.pend:
        e(f"s_cmp_lt_u32 {sr(S_HEAD)}, 4")
        e("s_cbranch_scc1 L_head")
        g.c("==== tail")
        if o.hx: e(f"s_xor_b32 {sr(S_OOFF)}, {sr(S_OOFF)}, s47")
        for x in vreads(15): e(x)
        e("s_waitcnt lgkmcnt(0)")
    else:
        e("s_branch L_head")
        g.lab("L_last")
        g.c("==== last pass, iter 14 phase B")
        done = set(x for gp in ag[14][1][:HA] for x in gp.ins())
        G = [Gap(x) for x in sm_parts(14)[1]]
        st14 = [x for k, j in ops[14] if k == 'ST' for grp in o_store(j) for x in grp]
        st15 = [j for k, j in ops[15] if k == 'ST']
        lastst = HA
        if st14: lastst = place(G, st14, HA, HA + 10)
        place(G, vreads(14, alt=True), HA, HA + 28)
        for j in st15: place(G, o_read(j), max(lastst + 3, HA + 28), HA + 33)
        ck = [(x, max(lo, HA)) for x, lo in check_items(14) if x not in done]
        place(G, ck[:-5], HA, 62, strict=False)
        G[64].add(ck[-5][0]); G[64].add(ck[-4][0]); G[65].add(ck[-3][0]); G[65].add(ck[-2][0]); G[66].add(ck[-1][0])
        e(f"s_waitcnt vmcnt({vm_wait(14)}) lgkmcnt(0)")
        e("s_barrier")
        if o.stamps:
            e("s_memtime s[56:57]")
            e("s_memrealtime s[58:59]")
        mf = pv(13)
        for i in range(HB):
            e(mf[i])
            for x in G[HA + i].ins(): e(x)
        e("s_cbranch_vccnz L_fb114")
        g.lab("L_ret114")
        fallbacks.append(114)
        g.c("==== last pass, iter 15")
        seq = [(it, k, x) for it, k, x in seq_before(14) if it >= 0]
        iv = [i for i, (it, k, x) in enumerate(seq) if (k, x) == ('V', 15)]
        assert iv
        n15 = sum(cnt(k) for it, k, x in seq[iv[0] + 1:]) + (2 if st14 else 0)
        lin = sm_linear(15)
        ckl = check_items(15)
        G = [Gap() for _ in range(HB)]
        place(G, vreads(15), 0, 26)
        for j in st15:
            place(G, [x for grp in o_store(j) for x in grp], 2, 12)
        st = []
        for x in lin:
            st.append(x)
            if x.startswith("v_cvt_pk"):
                pidx = int(x.split()[1].strip(",")[1:]) - (V_P + 16)
                if pidx % 2 == 1: st.append(ckl[pidx // 2][0])
        st += [ckl[8][0], ckl[9][0]]
        e(f"s_waitcnt vmcnt({n15}) lgkmcnt(0)")
        if o.stamps:
            e(f"v_writelane_b32 v{V_DBG}, s56, 14")
            e(f"v_writelane_b32 v{V_DBG}, s58, 46")
        e("s_barrier")
        if o.stamps:
            e("s_memtime s[56:57]")
            e("s_memrealtime s[58:59]")
        place(G, st, 0, HB, strict=False)
        mf = pv(14, alt=True)
        for i in range(HB):
            e(mf[i])
            for x in G[i].ins(): e(x)
        e("s_cbranch_vccnz L_fb115")
        g.lab("L_ret115")
        fallbacks.append(115)
        stamp_dump()
        if o.stamps:
            e(f"s_add_u32 {sr(S_STAMPOFF)}, {sr(S_STAMPOFF)}, 256")
        if o.dbg:
            e("s_memrealtime s[58:59]")
            e("s_waitcnt lgkmcnt(0)")
            e("s_sub_u32 s58, s58, s52")
            e(f"v_writelane_b32 v{V_DBG}, s58, 7")
        g.c("==== tail")
        if o.hx: e(f"s_xor_b32 {sr(S_OOFF)}, {sr(S_OOFF)}, s47")
        e("s_waitcnt lgkmcnt(0)")
    mf = pv(15, tail=True)
    for x in mf[:18]: e(x)
    def tail_store(qb):
        for j in range(4 * qb, 4 * qb + 4):
            e(f"s_waitcnt lgkmcnt({TW[j]})")
            e(f"buffer_store_dwordx4 {vr(V_S+4*j,4)}, {vr(V_DQ + (j & 1))}, {sr(S_OSRD,4)}, {sr(S_OOFF)} offen offset:{1024*(j%4)}{stflags}")
        e(f"s_add_u32 {sr(S_OOFF)}, {sr(S_OOFF)}, 4096")
    TW = {}
    n = 0
    for qb in range(4):
        for x in linv([qb]): e(x)
        for db in range(8):
            if qb < 2: e(mf[18 + 9 * qb + db])
            for x in opack_unit(db, qb, n): e(x)
            n += 1
            if db == 3 and qb > 0:
                for j in range(4 * qb - 4, 4 * qb): TW[j] = 4 + (4 * qb - 1 - j)
                tail_store(qb - 1)
        if qb < 2: e(mf[18 + 9 * qb + 8])
        for j in range(4 * qb, 4 * qb + 4):
            e(f"ds_read_b128 {vr(V_S+4*j,4)}, {vr(V_OR)} offset:{j*1024}")
    for j in range(12, 16): TW[j] = 15 - j
    tail_store(3)
    if o.stamps:
        e("s_waitcnt vmcnt(0)")
        stamp_dump()
    if o.spin:
        e("s_waitcnt vmcnt(0)")
        e("s_memrealtime s[58:59]")
        e("s_memtime s[60:61]")
        e("s_waitcnt lgkmcnt(0)")
        if o.spin == 2:
            e("s_sub_u32 s64, s58, s52")
            e("s_mul_i32 s64, s64, 3")
        elif o.spin == 8:
            e("s_sub_u32 s64, s60, s50")
            e("s_lshr_b32 s64, s64, 2")
        else:
            e(f"v_readlane_b32 s64, v{V_DBG}, {o.spin}")
            e("s_nop 3")
            e("s_mul_i32 s64, s64, 10")
        g.lab("L_spin")
        e("s_sleep 2")
        e("s_memrealtime s[58:59]")
        e("s_waitcnt lgkmcnt(0)")
        e("s_sub_u32 s65, s58, s52")
        e("s_cmp_lt_u32 s65, s64")
        e("s_cbranch_scc1 L_spin")
        e("s_endpgm")
    if o.dbg:
        D = V_DBG
        e(f"s_cmp_lg_u32 {sr(S_TMP)}, 3")
        e("s_cbranch_scc1 L_end")
        e("s_waitcnt vmcnt(0)")
        e("s_memrealtime s[58:59]")
        e("s_memtime s[60:61]")
        e("s_waitcnt lgkmcnt(0)")
        e("s_mov_b32 s32, s48")
        e("s_and_b32 s33, s49, 0xffff")
        e("s_mov_b32 s34, 64")
        e("s_mov_b32 s35, 0x20000")
        e("s_not_b32 s62, s52")
        e(f"v_writelane_b32 v{D}, s62, 0")
        e(f"v_writelane_b32 v{D}, s58, 1")
        e("s_not_b32 s62, s58")
        e(f"v_writelane_b32 v{D}, s62, 2")
        e("s_sub_u32 s62, s56, s52")
        e(f"v_writelane_b32 v{D}, s62, 3")
        e("s_sub_u32 s62, s58, s52")
        e("s_lshl_b32 s62, s62, 16")
        e("s_sub_u32 s63, s60, s50")
        e("s_lshr_b32 s63, s63, 3")
        e("s_or_b32 s62, s62, s63")
        e("s_getreg_b32 s63, hwreg(HW_REG_XCC_ID)")
        e("s_and_b32 s63, s63, 7")
        e("s_add_u32 m0, s63, 8")
        e("s_nop 3")
        e(f"v_writelane_b32 v{D}, s62, m0")
        e(f"v_mbcnt_lo_u32_b32 v{D+1}, -1, 0")
        e(f"v_mbcnt_hi_u32_b32 v{D+1}, -1, v{D+1}")
        e(f"v_lshlrev_b32 v{D+1}, 2, v{D+1}")
        e(f"buffer_atomic_umax v{D}, v{D+1}, s[32:35], 0 offen")
    g.lab("L_end")
    e("s_endpgm")
    for b in fallbacks:
        g.lab(f"L_fb{b}")
        e(f"s_mov_b32 s37, {b}")
        e(f"s_branch L_fbp{b % 2}")
    for par in range(2):
        g.lab(f"L_fbp{par}")
        e("s_nop 15")
        for q in range(4):
            X0, X1 = V_X, V_X + 1
            for x in rowmax(par, q, X0, X1): e(x)
            e(f"v_mul_f32 {vr(X0)}, {sr(S_C)}, {vr(X0)}")
            e(f"v_sub_f32 {vr(X0)}, {sr(S_THR)}, {vr(X0)}")
            e(f"v_min_f32 {vr(X0)}, {vr(X0)}, {vr(V_NMC+q)}")
            e(f"v_sub_f32 {vr(X1)}, {vr(X0)}, {vr(V_NMC+q)}")
            e(f"v_exp_f32 {vr(X1)}, {vr(X1)}")
            e(f"v_mov_b32 {vr(V_NMC+q)}, {vr(X0)}")
            for db in range(9):
                k, base = oreg(db, q) if db < 8 else ('a', A_L + 4 * q)
                for i in range(4):
                    if k == 'v':
                        e(f"v_mul_f32 {vr(base+i)}, {vr(base+i)}, {vr(X1)}")
                    else:
                        e(f"v_accvgpr_read_b32 {vr(V_X+2)}, {ar(base+i)}")
                        e(f"v_mul_f32 {vr(V_X+2)}, {vr(V_X+2)}, {vr(X1)}")
                        e(f"v_accvgpr_write_b32 {ar(base+i)}, {vr(V_X+2)}")
        for x in sm_linear(par): e(x)
        e("s_nop 1")
        bs = [b for b in fallbacks if b % 2 == par]
        for b in bs[:-1]:
            e(f"s_cmp_eq_u32 s37, {b}")
            e(f"s_cbranch_scc1 L_ret{b}")
        e(f"s_branch L_ret{bs[-1]}")

    if o.nocompute:
        i0 = g.lines.index("L_head:"); i1 = g.lines.index("L_end:")
        drop = ("v_mfma", "v_exp", "v_fma", "v_cvt", "v_mul", "v_accv", "v_or", "v_and", "v_cmp", "v_max", "v_mov", "v_perm", "v_sub", "v_rcp", "v_add", "ds_", "s_cbranch_vccnz")
        g.lines = g.lines[:i0] + [x for x in g.lines[i0:i1] if not x.strip().startswith(drop)] + g.lines[i1:]
        out2 = []
        for x in g.lines:
            if "buffer_load" in x and " lds" in x: out2.append("    s_nop 0")
            out2.append(x)
        g.lines = out2
    g.lab("L_codeend")
    out = HEADER
    out += f"; @launch grid=(256,1,1) block=(256,1,1) lds=163840\n"
    out += '.amdgcn_target "amdgcn-amd-amdhsa--gfx950"\n.text\n'
    out += f".globl {NAME}_kernel\n.p2align 8\n.type {NAME}_kernel,@function\n{NAME}_kernel:\n"
    out += "\n".join(g.lines) + "\n"
    out += f""".section .rodata,"a"
.p2align 6
.amdhsa_kernel {NAME}_kernel
  .amdhsa_next_free_vgpr {256 + NACC}
  .amdhsa_next_free_sgpr {102 if (o.stamps or o.dbg or o.sdelay) else 48}
  .amdhsa_accum_offset 256
  .amdhsa_group_segment_fixed_size 0
  .amdhsa_kernarg_size 48
  .amdhsa_user_sgpr_count 2
  .amdhsa_user_sgpr_kernarg_segment_ptr 1
  .amdhsa_system_sgpr_workgroup_id_x 1
.end_amdhsa_kernel
"""
    return out

def main():
    ap = argparse.ArgumentParser()
    il = lambda s: [int(x) for x in s.split(",")]
    ap.add_argument("-o", default="out.s")
    ap.add_argument("--hs", type=int, default=1)
    ap.add_argument("--ldflags", default="nt")
    ap.add_argument("--stflags", default="sc1")
    ap.add_argument("--bias", type=float, default=17.0)
    ap.add_argument("--peel", action="store_true")
    ap.add_argument("--rdA", type=int, default=26)
    ap.add_argument("--rdB", type=int, default=28)
    ap.add_argument("--slack", type=int, default=1)
    ap.add_argument("--verbose", action="store_true")
    ap.add_argument("--lazy", type=il, default=[2, 2, 3, 4, 4, 5, 6, 6, 7, 8, 8, 9, 10, 10, 11, 12])
    ap.add_argument("--rd0", type=int, default=0)
    ap.add_argument("--dm0", type=int, default=0)
    ap.add_argument("--dm1", type=int, default=32)
    ap.add_argument("--dmfront", action="store_true")
    ap.add_argument("--st_iter", type=il, default=[2, 4, 6, 8, 10, 13, 14, 15])
    ap.add_argument("--q_iter", type=il, default=[-1, 1, 3, 5, 7, 9, 11, 12])
    ap.add_argument("--flight", type=int, default=2)
    ap.add_argument("--pro1", type=int, default=2)
    ap.add_argument("--inig", type=int, default=16)
    ap.add_argument("--op0", type=int, default=13)
    ap.add_argument("--op1", type=int, default=98)
    ap.add_argument("--qkord", type=int, default=2)
    ap.add_argument("--pvord", type=int, default=0)
    ap.add_argument("--stamps", action="store_true")
    ap.add_argument("--dbg", action="store_true")
    ap.add_argument("--rot", type=int, default=0)
    ap.add_argument("--hx", type=int, default=9)
    ap.add_argument("--noxmap", action="store_true")
    ap.add_argument("--warm", action="store_true")
    ap.add_argument("--nodma", action="store_true")
    ap.add_argument("--sdelay", type=int, default=0)
    ap.add_argument("--sgroups", type=int, default=8)
    ap.add_argument("--serial", type=int, default=0)
    ap.add_argument("--pvswap", action="store_true")
    ap.add_argument("--nochk", action="store_true")
    ap.add_argument("--qe", type=int, default=0)
    ap.add_argument("--nocompute", action="store_true")
    ap.add_argument("--prog", action="store_true")
    ap.add_argument("--pend", action="store_true")
    ap.add_argument("--otlb", action="store_true")
    ap.add_argument("--spin", type=int, default=0)
    ap.add_argument("--qoff0", type=int, default=0)
    ap.add_argument("--asym", type=int, default=0)
    ap.add_argument("--asymmask", type=int, default=2)
    ap.add_argument("--pst", action="store_true")
    ap.add_argument("--nobar", action="store_true")
    ap.add_argument("--nolazy", action="store_true")
    ap.add_argument("--xgrp", type=int, default=3)
    ap.add_argument("--xmask", type=int, default=0)
    o = ap.parse_args()
    open(o.o, "w").write(build(o))

if __name__ == "__main__":
    main()
```

```python
import sys, struct, argparse

def f32bits(x):
    return struct.unpack('<I', struct.pack('<f', x))[0]

NAME = "standalone__mha_softmax__near_ridge"
HEADER = """; Kernarg layout for this problem (48 bytes, ptrs only, base s[0:1]):
"""
DOC = """;
"""
V_OV, V_S, V_P, V_KF, V_PK, V_X, V_T = 0, 64, 128, 160, 192, 200, 208
NT = 4
V_DBG = 212
V_CK, V_OR = 214, 215
V_KA, V_MX, V_VA = 216, 220, 224
V_DK, V_DV, V_DQ, V_OW = 232, 234, 236, 240
V_NMC, V_INV = 244, 248
A_O, A_SP, A_Q, A_VF, A_L, A_ONE = 0, 64, 128, 192, 224, 240
NACC = 244

S_QSRD, S_KSRD, S_VSRD, S_OSRD = 4, 8, 12, 16
S_LIN, S_KB, S_KBN, S_QB, S_OB = 20, 21, 22, 23, 24
S_WLDS, S_C, S_BIAS, S_W, S_WQ, S_SER, S_GRP, S_MASK, S_PASS, S_RET, S_A = 25, 26, 27, 28, 29, 30, 31, 32, 33, 34, 35
S_WSRD, S_STAMPOFF = 88, 92

BLK = 8192
KBASE, VBASE, QBASE = 0, 32768, 65536
WST = 24576
QOFFS = [16384, 0]
M16 = "v_mfma_f32_16x16x32_bf16"
HA, HB = 32, 36
NG = HA + HB

def vr(b, n=1): return f"v{b}" if n == 1 else f"v[{b}:{b+n-1}]"
def ar(b, n=1): return f"a{b}" if n == 1 else f"a[{b}:{b+n-1}]"
def sr(b, n=1): return f"s{b}" if n == 1 else f"s[{b}:{b+n-1}]"
def oreg(db, qb, spare=False):
    if qb < 2: return 'v', V_OV + 4 * (2 * db + qb)
    return 'a', (A_SP if spare else A_O) + 4 * (2 * db + qb - 2)
def otxt(db, qb, spare=False):
    k, b = oreg(db, qb, spare)
    return vr(b, 4) if k == 'v' else ar(b, 4)

class Gap:
    def __init__(self, valu=()):
        self.salu, self.mem, self.valu = [], [], list(valu)
        self.nomem = False
        self.late = False
    def cost(self):
        c = 8 + 4 * max(0, len(self.salu) - 1)
        for i, x in enumerate(self.mem):
            c += (16 if x.startswith("buffer") else 12 if x.startswith("ds_write") else 4) + (4 if i else 0)
        for x in self.valu: c += 8 if x.startswith(("v_exp", "v_rcp")) else 4
        return c + (8 if self.late else 0)
    def add(self, x):
        if x.startswith("s_") and not x.startswith("s_nop"): self.salu.append(x)
        elif x.startswith(("ds_", "buffer")): self.mem.append(x)
        else: self.valu.append(x)
    def ins(self):
        return self.salu + (self.valu + self.mem if self.late else self.mem + self.valu)

def build(o):
    L = []
    def e(s): L.append(s if s.endswith(":") else "    " + s)
    lab = lambda s: L.append(s + ":")
    com = lambda s: L.append("    ; " + s)
    ld = " nt"; stf = " sc1"
    PB, BB, QB, JB = o.pbits, o.bbits, o.qbits, o.jbits
    assert sorted(PB + BB) == list(range(10, 17)) and sorted(QB + JB) == list(range(10, 16)) and PB[0] == 10 and QB[0] == 10
    blkoff = lambda b: sum(((b >> i) & 1) << BB[i] for i in range(4))
    pcoff = lambda j: sum(((j >> i) & 1) << JB[i] for i in range(3))

    def dma_kv(kind, x):
        srd, v0, base = (S_KSRD, V_DK, KBASE) if kind == 'K' else (S_VSRD, V_DV, VBASE)
        return [f"s_add_u32 m0, {sr(S_WLDS)}, {base + (x % 4) * BLK}",
                f"s_add_u32 {sr(S_A)}, {sr(S_KB if x < 16 else S_KBN)}, {blkoff(x % 16)}",
                f"buffer_load_dwordx4 {vr(v0)}, {sr(srd,4)}, {sr(S_A)} offen{ld} lds",
                f"buffer_load_dwordx4 {vr(v0+1)}, {sr(srd,4)}, {sr(S_A)} offen offset:1024{ld} lds"]
    def dma_q(j, init=False):
        dst = (8192 if (init and j < 4) else QOFFS[j >> 2]) + (j & 3) * 2048
        x = 2 * (j & 1)
        return [f"s_add_u32 m0, {sr(S_WQ)}, {dst}",
                f"s_add_u32 {sr(S_A)}, {sr(S_QB)}, {pcoff(j)}",
                f"buffer_load_dwordx4 {vr(V_DQ+x)}, {sr(S_QSRD,4)}, {sr(S_A)} offen{ld} lds",
                f"buffer_load_dwordx4 {vr(V_DQ+x+1)}, {sr(S_QSRD,4)}, {sr(S_A)} offen offset:1024{ld} lds"]
    def o_read(j):
        return [f"ds_read_b128 {vr(V_PK+4*p,4)}, {vr(V_OR)} offset:{j*2048+p*1024}" for p in range(2)]
    def o_store(j):
        return [f"s_add_u32 {sr(S_A)}, {sr(S_OB)}, {pcoff(j)}",
                f"buffer_store_dwordx4 {vr(V_PK,4)}, {vr(V_DQ)}, {sr(S_OSRD,4)}, {sr(S_A)} offen{stf}",
                f"buffer_store_dwordx4 {vr(V_PK+4,4)}, {vr(V_DQ+1)}, {sr(S_OSRD,4)}, {sr(S_A)} offen offset:1024{stf}"]
    def opcode(k, x):
        return dma_kv(k, x) if k in 'KV' else dma_q(x) if k == 'Q' else o_store(x) if k == 'S' else []
    def qbase(n):
        return [f"s_add_u32 {sr(S_QB)}, {sr(S_LIN)}, {n * 131072}", f"s_xor_b32 {sr(S_QB)}, {sr(S_QB)}, {sr(S_MASK)}",
                f"s_lshr_b32 {sr(S_QB)}, {sr(S_QB)}, 1"]
    def advance():
        return [f"s_lshr_b32 {sr(S_OB)}, {sr(S_KB)}, 1", f"s_mov_b32 {sr(S_KB)}, {sr(S_KBN)}",
                f"s_add_u32 {sr(S_LIN)}, {sr(S_LIN)}, 131072", f"s_add_u32 {sr(S_KBN)}, {sr(S_LIN)}, 131072",
                f"s_xor_b32 {sr(S_KBN)}, {sr(S_KBN)}, {sr(S_MASK)}"]

    st_iter, q_iter = o.st_iter, o.q_iter
    for j in range(8):
        assert 2 <= st_iter[j] <= 15 and -1 <= q_iter[j] <= 12
        if j >= 4: assert q_iter[j] >= st_iter[j - 4]
    assert len(set(st_iter)) == 8
    def sched(kind):
        s = {(b, ph): [] for b in range(16) for ph in (0, 1)}
        for b in range(16):
            if not (kind == 'L' and b + o.ka > 15): s[b, 0].append(('K', b + o.ka))
        if kind != 'F':
            for j in range(8): s[st_iter[j], 1].append(('S', j))
        if kind == 'M':
            for j in range(8): s[q_iter[j] % 16, 1].append(('Q', j))
        if kind == 'F':
            for j in range(o.qe, 8): s[o.q0_iter[j - o.qe], 1].append(('Q', j))
            for j in range(8):
                if q_iter[j] < 0: s[15, 1].append(('Q', j))
        for b in range(16):
            if not (kind == 'L' and b + o.va > 15): s[b, 1].append(('V', b + o.va))
        if o.stamps: s[15, 1].append(('T', 0))
        return s
    SCH = {k: sched(k) for k in 'FML'}
    pro1 = [('K', x) for x in range(2, o.ka)][:1] + [('V', 0)]
    if o.vk: pro1 = pro1[::-1]
    pro2 = [('K', x) for x in range(3, o.ka)] + [('V', x) for x in range(1, o.va)]
    PRO = [('K', 0)] + [('I', j) for j in range(8)] + [('K', 1)] + pro1 + [('Q', j) for j in range(o.qe)] + pro2
    if o.stamps: PRO.append(('T', 0))
    cnt = lambda k: 1 if k == 'T' else 2
    def hist(prev, kind, b, ph):
        seq = []
        if prev == 'P': seq = [(k, x, True) for k, x in PRO]
        else:
            for bb in range(16):
                for p in (0, 1):
                    for k, x in SCH[prev][bb, p]:
                        seq.append((k, x - 16 if k in 'KV' else x, k == 'Q' and bb == 15))
        for bb in range(b + 1):
            for p in (0, 1):
                if bb == b and p >= ph: break
                for k, x in SCH[kind][bb, p]: seq.append((k, x, True))
        return seq
    def wait_for(kind, b, want, needq=False, ph=1):
        res = []
        for prev in {'F': 'P', 'M': 'FM', 'L': 'M'}[kind]:
            seq = hist(prev, kind, b, ph)
            need = [max(i for i, (k, x, _) in enumerate(seq) if (k, x) == w) for w in want]
            if needq:
                qs = [i for i, (k, x, cur) in enumerate(seq) if k == 'Q' and cur]
                assert len(qs) == 8
                need += qs
            res.append(sum(cnt(k) for k, x, _ in seq[max(need) + 1:]))
        return min(res)
    def vm_wait(kind, b):
        want = [('V', b)] + ([('K', b + 2)] if not (kind == 'L' and b + 2 > 15) else [])
        n = wait_for(kind, b, want, needq=(b == 14 and kind != 'L'))
        return max(0, n - (o.wt[b] if (o.wt and kind == 'M') else 0))

    def stamp_dump():
        if not o.stamps: return
        D = V_DBG
        e("s_memrealtime s[54:55]"); e("s_waitcnt lgkmcnt(0)")
        for s_, l_ in ((56, 15), (58, 47), (54, 31), (50, 30), (52, 29)): e(f"v_writelane_b32 v{D}, s{s_}, {l_}")
        e("s_getreg_b32 s55, hwreg(HW_REG_XCC_ID)"); e(f"v_writelane_b32 v{D}, s55, 28")
        e(f"v_mbcnt_lo_u32_b32 v{D+1}, -1, 0"); e(f"v_mbcnt_hi_u32_b32 v{D+1}, -1, v{D+1}"); e(f"v_lshlrev_b32 v{D+1}, 2, v{D+1}")
        e(f"buffer_store_dword v{D}, v{D+1}, {sr(S_WSRD,4)}, {sr(S_STAMPOFF)} offen")
    def pass_end_diag():
        stamp_dump()
        if o.stamps: e(f"s_add_u32 {sr(S_STAMPOFF)}, {sr(S_STAMPOFF)}, 256")
        if o.dbg:
            e("s_memrealtime s[58:59]"); e("s_waitcnt lgkmcnt(0)"); e("s_sub_u32 s58, s58, s52")
            e("s_add_u32 m0, s60, 4"); e("s_add_u32 s60, s60, 1"); e("s_nop 3"); e(f"v_writelane_b32 v{V_DBG}, s58, m0")

    e("s_cmp_ge_u32 s2, 256")
    e("s_cbranch_scc1 L_end")
    e("s_load_dwordx4 s[40:43], s[0:1], 0")
    e("s_load_dwordx4 s[44:47], s[0:1], 16")
    if o.dbg or o.stamps:
        e(f"s_load_dwordx2 s[48:49], s[0:1], {32 if o.dbg else 40}")
        e("s_memtime s[50:51]"); e("s_memrealtime s[52:53]"); e("s_mov_b32 s66, s2"); e("s_mov_b32 s60, 0")
    e(f"s_bfe_u32 {sr(S_GRP)}, s2, {(3 << 16) | 3}")
    com("speed hint only: workgroups on even XCDs let the others fetch their first tiles first")
    e(f"s_getreg_b32 {sr(S_SER)}, hwreg(HW_REG_XCC_ID)")
    e(f"s_and_b32 {sr(S_SER)}, {sr(S_SER)}, 1")
    com("the four heads of a workgroup are visited in a per-workgroup xor-permuted order")
    e(f"s_mul_i32 {sr(S_MASK)}, s2, 9")
    e(f"s_bfe_u32 {sr(S_MASK)}, {sr(S_MASK)}, {(2 << 16) | 3}")
    e(f"s_lshl_b32 {sr(S_MASK)}, {sr(S_MASK)}, 17")
    com("workgroups with equal id % 8 cover one contiguous range of heads")
    e("s_and_b32 s3, s2, 7"); e("s_lshl_b32 s3, s3, 5"); e("s_lshr_b32 s2, s2, 3"); e("s_or_b32 s2, s2, s3")
    e("v_lshrrev_b32 v1, 6, v0")
    e("v_and_b32 v2, 63, v0")
    e(f"v_readfirstlane_b32 {sr(S_W)}, v1")
    e("v_lshrrev_b32 v3, 4, v2")
    e("v_and_b32 v4, 15, v2")
    e("v_lshl_add_u32 v5, v1, 3, v3")
    e("v_and_b32 v9, 1, v1")
    e("v_lshrrev_b32 v8, 1, v1")
    e(f"v_lshlrev_b32 v7, {PB[1]}, v9")
    e(f"v_lshl_add_u32 v7, v8, {PB[2]}, v7")
    e("v_lshl_add_u32 v7, v3, 8, v7")
    e("v_and_b32 v6, 15, v5"); e("v_xor_b32 v6, v6, v4")
    e(f"v_lshl_add_u32 {vr(V_DK)}, v6, 4, v7")
    e(f"v_xor_b32 {vr(V_DK+1)}, 64, {vr(V_DK)}")
    e("v_lshlrev_b32 v6, 1, v3"); e("v_xor_b32 v6, v6, v4")
    e(f"v_lshl_add_u32 {vr(V_DV)}, v6, 4, v7")
    e(f"v_xor_b32 {vr(V_DV+1)}, 128, {vr(V_DV)}")
    e(f"v_lshlrev_b32 v5, {QB[1]}, v9")
    e(f"v_lshl_add_u32 v5, v8, {QB[2]}, v5")
    e("v_lshl_add_u32 v5, v3, 8, v5")
    e("v_xor_b32 v6, v3, v4")
    e(f"v_lshl_add_u32 {vr(V_DQ)}, v6, 4, v5")
    for x in range(1, 4): e(f"v_xor_b32 {vr(V_DQ+x)}, {x*64}, {vr(V_DQ)}")
    e(f"s_lshl_b32 {sr(S_WLDS)}, {sr(S_W)}, 11")
    e(f"s_mul_i32 {sr(S_WQ)}, {sr(S_W)}, {WST}")
    e(f"s_add_u32 {sr(S_WQ)}, {sr(S_WQ)}, {QBASE}")
    e(f"s_lshl_b32 {sr(S_LIN)}, s2, 19")
    e(f"s_add_u32 {sr(S_KSRD+2)}, {sr(S_LIN)}, {1 << 19}")
    e(f"s_mov_b32 {sr(S_VSRD+2)}, {sr(S_KSRD+2)}")
    e(f"s_lshr_b32 {sr(S_QSRD+2)}, {sr(S_KSRD+2)}, 1")
    e(f"s_mov_b32 {sr(S_OSRD+2)}, {sr(S_QSRD+2)}")
    e(f"s_xor_b32 {sr(S_KB)}, {sr(S_LIN)}, {sr(S_MASK)}")
    e(f"s_add_u32 {sr(S_KBN)}, {sr(S_LIN)}, 131072")
    e(f"s_xor_b32 {sr(S_KBN)}, {sr(S_KBN)}, {sr(S_MASK)}")
    e(f"s_lshr_b32 {sr(S_QB)}, {sr(S_KB)}, 1")
    for srd in (S_QSRD, S_KSRD, S_VSRD, S_OSRD): e(f"s_mov_b32 {sr(srd+3)}, 0x20000")
    com("pull this kernel's code into L2 (a few KB per workgroup) so that first-time instruction misses stay on the die")
    e("s_getpc_b64 s[36:37]")
    lab("L_pc")
    def warm(rep):
        e(f"v_lshl_add_u32 v12, {sr(S_GRP)}, 2, v1")
        if rep: e(f"v_add_u32 v12, {32 * rep}, v12")
        e("v_min_u32 v12, (L_codeend - L_pc) / 1024 - 1, v12")
        e("v_lshlrev_b32 v12, 10, v12"); e("v_lshl_add_u32 v12, v2, 4, v12"); e("v_mov_b32 v13, s37")
        e("v_add_co_u32 v12, vcc, s36, v12"); e("s_nop 1"); e("v_addc_co_u32 v13, vcc, 0, v13, vcc")
        e(f"global_load_dwordx4 v[{16+4*rep}:{19+4*rep}], v[12:13], off")
    for rep in range(3): warm(rep)
    e("s_waitcnt lgkmcnt(0)")
    for srd, p in ((S_KSRD, 42), (S_QSRD, 40), (S_VSRD, 44), (S_OSRD, 46)):
        e(f"s_mov_b32 {sr(srd)}, s{p}"); e(f"s_and_b32 {sr(srd+1)}, s{p+1}, 0xffff")
    for n, (k, x) in enumerate(PRO[:10]):
        for y in (dma_q(x, True) if k == 'I' else dma_kv(k, x)): e(y)
        if n < o.xgrp:
            e(f"s_cmp_lg_u32 {sr(S_SER)}, 0"); e(f"s_cbranch_scc1 L_ser{n}"); e("s_waitcnt vmcnt(0)"); lab(f"L_ser{n}")
    e("v_xor_b32 v9, v3, v4"); e("v_lshlrev_b32 v9, 4, v9")
    e(f"v_lshl_add_u32 {vr(V_KA)}, v4, 8, v9")
    for s in range(1, 4): e(f"v_xor_b32 {vr(V_KA+s)}, {s*64}, {vr(V_KA)}")
    e("v_lshrrev_b32 v9, 2, v2"); e("v_and_b32 v10, 7, v9"); e("v_lshlrev_b32 v10, 1, v10"); e("v_bfe_u32 v11, v2, 1, 1")
    e("v_xor_b32 v10, v10, v11"); e("v_lshlrev_b32 v10, 4, v10"); e("v_lshl_add_u32 v10, v9, 8, v10")
    e("v_and_b32 v11, 1, v2"); e("v_lshl_add_u32 v10, v11, 3, v10")
    e(f"v_add_u32 {vr(V_VA)}, {VBASE}, v10")
    for t in range(1, 8): e(f"v_xor_b32 {vr(V_VA+t)}, {t*32}, {vr(V_VA)}")
    e("v_and_b32 v9, 7, v4"); e("v_lshrrev_b32 v10, 1, v3"); e("v_xor_b32 v9, v9, v10"); e("v_lshlrev_b32 v9, 4, v9")
    e("v_lshl_add_u32 v9, v4, 8, v9"); e("v_and_b32 v10, 1, v3"); e("v_lshl_add_u32 v9, v10, 3, v9")
    e(f"v_add_u32 {vr(V_OW)}, {sr(S_WQ)}, v9")
    for x in range(1, 4): e(f"v_xor_b32 {vr(V_OW+x)}, {x*32}, {vr(V_OW)}")
    e("v_lshlrev_b32 v9, 4, v2")
    e(f"v_add_u32 {vr(V_OR)}, {sr(S_WQ)}, v9")
    e(f"s_mov_b32 {sr(S_C)}, {hex(f32bits(128**-0.5 * 1.4426950408889634))}")
    e(f"s_mov_b32 {sr(S_BIAS)}, {hex(f32bits(-o.bias))}")
    e(f"s_mov_b32 {sr(S_PASS)}, 0")
    e("v_mov_b32 v9, 0x3f803f80")
    for i in range(4): e(f"v_accvgpr_write_b32 {ar(A_ONE+i)}, v9")
    e(f"s_lshr_b32 {sr(S_QB)}, {sr(S_KBN)}, 1")
    npro = len(pro1) + o.qe
    for k, x in PRO[10:10 + npro]:
        for y in opcode(k, x): e(y)
    if o.stamps:
        e(f"s_mov_b32 {sr(S_WSRD)}, s48"); e(f"s_and_b32 {sr(S_WSRD+1)}, s49, 0xffff"); e(f"s_mov_b32 {sr(S_WSRD+2)}, {1<<24}")
        e(f"s_mov_b32 {sr(S_WSRD+3)}, 0x20000"); e(f"s_lshl_b32 {sr(S_STAMPOFF)}, s66, 3")
        e(f"s_add_u32 {sr(S_STAMPOFF)}, {sr(S_STAMPOFF)}, {sr(S_W)}"); e(f"s_lshl_b32 {sr(S_STAMPOFF)}, {sr(S_STAMPOFF)}, 11")

    def kreads(b):
        off = KBASE + (b % 4) * BLK
        return [f"ds_read_b128 {vr(V_KF+4*(4*kb+s),4)}, {vr(V_KA+s)} offset:{off+4096*kb}" for kb in range(2) for s in range(4)]
    qaddr = lambda: [f"v_add_u32 {vr(V_X+s)}, {sr(S_WQ)}, {vr(V_KA+s)}" for s in range(4)]
    def qreads(init=False):
        QO = [8192, 0] if init else QOFFS
        return [f"ds_read_b128 {ar(A_Q+4*(4*qb+s),4)}, {vr(V_X+s)} offset:{QO[qb>>1]+4096*(qb&1)}" for qb in range(4) for s in range(4)]
    def vreads(b, alt=False):
        return [f"ds_read_b64_tr_b16 {vr(V_KF+4*db+2*w,2) if alt else ar(A_VF+4*db+2*w,2)}, {vr(V_VA+db)} offset:{(b % 4)*BLK + w*4096}"
                for db in range(8) for w in range(2)]
    def qk(b):
        S = V_S + 32 * (b % 2)
        return [f"{M16} {vr(S+8*qb+4*kb,4)}, {vr(V_KF+4*(4*kb+s),4)}, {ar(A_Q+4*(4*qb+s),4)}, " + ("0" if s == 0 else vr(S+8*qb+4*kb, 4))
                for kb in range(2) for s in range(4) for qb in range(4)]
    def pv_order(tail=False):
        if tail: return [(db, qb) for qb in range(4) for db in (8, 0, 1, 2, 3, 4, 5, 6, 7)]
        return [(8, qb) for qb in range(4)] + [(db, qb) for db in range(8) for qb in range(4)]
    def pv(b, tail=False, alt=False):
        b %= 16
        P = V_P + 16 * (b % 2)
        r = []
        for db, qb in pv_order(tail):
            if db == 8: D, A = ar(A_L + 4 * qb, 4), ar(A_ONE, 4)
            else: D, A = otxt(db, qb), (vr(V_KF + 4 * db, 4) if alt else ar(A_VF + 4 * db, 4))
            C = "0" if b == 0 else D
            if b == 15 and not tail and db < 8: D = otxt(db, qb, spare=True)
            r.append(f"{M16} {D}, {A}, {vr(P+4*qb,4)}, {C}")
        return r
    T = lambda k: vr(V_T + k % NT)
    def sm_parts(b):
        S, P = V_S + 32 * (b % 2), V_P + 16 * (b % 2)
        F = lambda k: f"v_fma_f32 {T(k)}, {vr(S+k)}, {sr(S_C)}, {vr(V_NMC + k // 8)}"
        gaps = [[] for _ in range(NG)]
        for k in range(32):
            gaps[2 * k].append(f"v_exp_f32 {T(k)}, {T(k)}")
            if k + 1 < 32: gaps[2 * k + 1].append(F(k + 1))
            if k % 2: gaps[2 * k + 1].append(f"v_cvt_pk_bf16_f32 {vr(P+k//2)}, {T(k-1)}, {T(k)}")
        return [F(0)], gaps
    def sm_linear(b):
        pre, gaps = sm_parts(b)
        r = list(pre)
        for i, gp in enumerate(gaps[:64]):
            if i == 63: r.append("s_nop 0")
            r += gp
        return r
    def check_items(b):
        P = V_P + 16 * (b % 2)
        r = [((f"v_or_b32 {vr(V_CK)}, {vr(P)}, {vr(P+1)}" if n == 0 else f"v_or3_b32 {vr(V_CK)}, {vr(V_CK)}, {vr(P+2*n)}, {vr(P+2*n+1)}"), 8 * n + 8) for n in range(8)]
        return r + [(f"v_and_b32 {vr(V_CK)}, 0x40004000, {vr(V_CK)}", 64), (f"v_cmp_ne_u32 vcc, 0, {vr(V_CK)}", 64)]
    def rowmax(b, q, dst, tmp):
        S = V_S + 32 * (b % 2) + 8 * q
        r = [f"v_max3_f32 {vr(dst)}, {vr(S)}, {vr(S+1)}, {vr(S+2)}", f"v_max3_f32 {vr(dst)}, {vr(dst)}, {vr(S+3)}, {vr(S+4)}",
             f"v_max3_f32 {vr(dst)}, {vr(dst)}, {vr(S+5)}, {vr(S+6)}", f"v_max_f32 {vr(dst)}, {vr(dst)}, {vr(S+7)}"]
        for sw in ("v_permlane32_swap_b32", "v_permlane16_swap_b32"):
            r += [f"v_mov_b32 {vr(tmp)}, {vr(dst)}", "s_nop 1", f"{sw} {vr(dst)}, {vr(tmp)}", f"v_max_f32 {vr(dst)}, {vr(dst)}, {vr(tmp)}"]
        return r
    def minit():
        ls = [rowmax(0, q, V_MX + q, V_X + 4 + q) + [f"v_mul_f32 {vr(V_MX+q)}, {sr(S_C)}, {vr(V_MX+q)}"] for q in range(4)]
        return [x for t in zip(*ls) if not t[0].startswith("s_nop") for x in t]
    mset = lambda q: f"v_sub_f32 {vr(V_NMC+q)}, {sr(S_BIAS)}, {vr(V_MX+q)}"
    def linv(qs=range(4)):
        return [f"v_accvgpr_read_b32 {vr(V_INV+q)}, {ar(A_L+4*q)}" for q in qs] + [f"v_rcp_f32 {vr(V_INV+q)}, {vr(V_INV+q)}" for q in qs] + ["s_nop 0"]
    def opack_unit(db, qb, n, spare=False):
        k, base = oreg(db, qb, spare)
        r = []
        if k == 'a':
            t = V_X + 4 * (n % 2)
            r += [f"v_accvgpr_read_b32 {vr(t+i)}, {ar(base+i)}" for i in range(4)]
            base = t
        r += [f"v_mul_f32 {vr(base+i)}, {vr(base+i)}, {vr(V_INV+qb)}" for i in range(4)]
        r += [f"v_cvt_pk_bf16_f32 {vr(base+i)}, {vr(base+2*i)}, {vr(base+2*i+1)}" for i in range(2)]
        return r + [f"ds_write_b64 {vr(V_OW + (db & 3))}, {vr(base,2)} offset:{128*(db>>2)+4096*qb}"]
    def place(G, items, a, b, strict=True):
        n = len(items); prev = a - 1
        for i, it in enumerate(items):
            x, lo = it if isinstance(it, tuple) else (it, a)
            front = x.startswith(("ds_", "buffer")) or (x.startswith("s_") and not x.startswith("s_nop"))
            w0 = max(lo, a + i * (b - a) // n - 1, prev + 1 if (front or strict) else max(prev, a))
            w1 = min(max(a + (i + 1) * (b - a) // n + 1, w0 + 1), b - (n - 1 - i if strict else 0))
            if w1 <= w0: w1 = w0 + 1
            def inc(gi):
                gp = G[gi]; t = Gap(gp.valu); t.salu = list(gp.salu); t.mem = list(gp.mem); t.add(x)
                return (max(16, t.cost()) - max(16, gp.cost()), t.cost(), gi)
            cand = [k for k in range(w0, min(w1, len(G))) if not (x.startswith("ds_") and G[k].nomem)]
            k2 = w1
            while not cand:
                if not G[k2].nomem: cand = [k2]
                k2 += 1
            gi = min(inc(k) for k in cand)[2]
            G[gi].add(x); prev = gi
        return prev
    def place_even(G, lst, a, b, lim):
        nv = sum(1 for x in lst if x.startswith("buffer"))
        pos = [a + i * (b - a) // nv for i in range(nv)]
        prev, iv, ps = a - 3, 0, []
        for x in lst:
            if not x.startswith("buffer"):
                ps.append(x); continue
            gi = max(pos[iv], prev + 1 + len(ps), lim + len(ps))
            gi = min(range(gi, gi + 3), key=lambda k: (G[k].cost(), k))
            for n2, y in enumerate(ps): G[gi - len(ps) + n2].add(y)
            G[gi].add(x); prev = gi; iv += 1; ps = []
        return prev
    def put_check(G, ck, a):
        place(G, ck[:-5], a, 62, strict=False)
        for gi, c in zip((64, 64, 65, 65, 66), ck[-5:]): G[gi].add(c[0])
    def level(G, target):
        tot = lambda: sum(max(16, gp.cost()) for gp in G)
        cand = [gp for gp in G if len(gp.mem) == 1 and gp.mem[0].startswith("ds_read") and gp.valu]
        n = max(0, min(len(cand), (target - tot()) // 8))
        for i in range(n): cand[i * len(cand) // n].late = True
        cand = [k for k in range(0, 60, 2) if len(G[k].ins()) == 1 and G[k + 1].valu[0].startswith("v_fma") and G[k + 1].cost() >= 16]
        n = max(0, min(len(cand), (target - tot()) // 8))
        for i in range(n):
            k = cand[i * len(cand) // n]
            G[k + 1].valu.insert(0, G[k].valu.pop())

    def make_gaps(kind):
        AG, pres = [], []
        for b in range(16):
            pre, gaps = sm_parts(b)
            G = [Gap(x) for x in gaps]
            if b == 0:
                pre = [mset(0)] + pre
                for q in range(1, 4): G[4 * q + 1].add(mset(q))
            AG.append(G); pres.append(pre)
        for b in range(16):
            G = AG[b]
            rd = [] if (kind == 'F' and b == 0) else vreads(b - 1)
            for k, j in SCH[kind][b, 1]:
                if k == 'S': rd = rd + o_read(j)
            if rd: place(G, rd, 0, o.rdA)
            dm = [x for k, j in SCH[kind][b, 1] for x in opcode(k, j)]
            lastv = place_even(G, dm, HA + o.dm0, HA + o.dm1, HA) if dm else HA
            dm = [x for k, j in SCH[kind][b, 0] for x in opcode(k, j)]
            if dm: assert place_even(G, dm, o.da0, o.da1, 0) < HA
            krd = kreads(b + 2)
            if b == 14:
                place(G, qaddr(), HA - 8, HA, strict=False)
                place(G, krd[:4] + qreads()[:4] + krd[4:] + qreads()[4:], HA, HA + 30)
                for n, x in enumerate(qbase(2)): G[24 + n].add(x)
            else:
                place(G, krd, HA, HA + o.rdB)
            if b == 15:
                for n, x in enumerate(advance()): G[min(lastv + 1 + n, NG - 1)].add(x)
            for k in list(range(NG - 4, NG)) + list(range(HA - 4, HA)): G[k].nomem = True
            if b >= 1: put_check(G, check_items(b), 24)
        place(AG[15], minit(), HA + 2, NG - 1, strict=False)
        if kind != 'F':
            CG = AG[0][HA:] + AG[1]
            place(CG, linv(), 8, 12, strict=False)
            order = pv_order()
            items = [(x, max(order.index(u) + 5, 13), order.index(u))
                     for n, u in enumerate([u for u in order if u[0] < 8 and u[1] < 2]) for x in opack_unit(u[0], u[1], n)]
            place(CG, [(x, lo) for x, lo, pos in items], 13, 98, strict=False)
            for x, lo, pos in items:
                gi = [k for k, gp in enumerate(CG) if x in gp.ins()]
                assert len(gi) == 1 and lo <= gi[0] < NG + pos, (x, gi, pos)
            units = [(db, qb) for qb in (2, 3) for db in range(8)]
            for b in range(2, 14):
                its = []
                for u, (db, qb) in enumerate(units):
                    if o.lazy[u] == b:
                        assert b < st_iter[2 * qb]
                        its += opack_unit(db, qb, u, spare=True)
                if its: place(AG[b], its, 0, NG - 8, strict=False)
        lv = {'F': o.lf, 'M': o.lm, 'L': o.ll}[kind]
        for b in range(16): level(AG[b], lv[min(b, len(lv) - 1)])
        if o.verbose: print(kind, [sum(max(16, gp.cost()) for gp in G) for G in AG], [vm_wait(kind, b) for b in range(16)], file=sys.stderr)
        return list(zip(pres, AG))
    fallbacks = []
    def chk(fid):
        e(f"s_cbranch_vccnz L_fb{fid}"); lab(f"L_ret{fid}"); fallbacks.append(fid)
    def stampA(b):
        if o.stamps and b > 0:
            e(f"v_writelane_b32 v{V_DBG}, s56, {b-1}"); e(f"v_writelane_b32 v{V_DBG}, s58, {32+b-1}")
    def stampB():
        if o.stamps: e("s_memtime s[56:57]"); e("s_memrealtime s[58:59]")
    def emit_iter(kind, b, pre, G):
        com(f"==== {kind} iter {b}: S(b+1) = K Q^T")
        e("s_waitcnt lgkmcnt(0)")
        stampA(b)
        for x in pre: e(x)
        for m, gp in zip(qk(b + 1), G[:HA]):
            e(m)
            for x in gp.ins(): e(x)
        if kind == 'L' and b == 14: return
        com(f"==== {kind} iter {b}: O += V P(b-1)")
        e(f"s_waitcnt vmcnt({vm_wait(kind, b)}) lgkmcnt(0)")
        e("s_barrier")
        stampB()
        for m, gp in zip(pv(b - 1), G[HA:]):
            if kind == 'F' and b == 0:
                if gp.mem or (gp.valu and gp.valu[0].startswith("v_cvt")): e("s_nop 0")
            else: e(m)
            for x in gp.ins(): e(x)
        if b >= 1: chk({'F': 100, 'M': 200, 'L': 300}[kind] + b)

    for x in qaddr(): e(x)
    e(f"s_waitcnt vmcnt({2*npro})")
    e("s_barrier")
    kr0, qr = kreads(0), qreads(True)
    for x in kr0[:4] + qr[:4] + kr0[4:] + qr[4:]: e(x)
    e("s_waitcnt lgkmcnt(0)")
    rest = list(pro2)
    for i, x in enumerate(qk(0)):
        e(x)
        if i % 4 == 0 and rest:
            for y in opcode(*rest.pop(0)): e(y)
    for x in kreads(1): e(x)
    e("s_nop 3")
    for x in minit(): e(x)
    assert o.ka <= 3
    stamp_dump()
    if o.dbg: e("s_memrealtime s[56:57]"); e(f"v_mov_b32 v{V_DBG}, 0")
    ag = make_gaps('F')
    for b in range(16): emit_iter('F', b, *ag[b])
    pass_end_diag()
    lab("L_head")
    ag = make_gaps('M')
    for b in range(16): emit_iter('M', b, *ag[b])
    pass_end_diag()
    e(f"s_add_u32 {sr(S_PASS)}, {sr(S_PASS)}, 1")
    e(f"s_cmp_lt_u32 {sr(S_PASS)}, 2")
    e("s_cbranch_scc1 L_head")
    ag = make_gaps('L')
    for b in range(15): emit_iter('L', b, *ag[b])
    com("==== last head, iter 14: O += V P(13)")
    done = set(x for gp in ag[14][1][:HA] for x in gp.ins())
    G = [Gap(gp) for gp in sm_parts(14)[1]]
    st14 = [x for k, j in SCH['L'][14, 1] if k == 'S' for x in o_store(j)]
    st15 = [j for k, j in SCH['L'][15, 1] if k == 'S']
    assert not [k for k, j in SCH['L'][14, 1] if k == 'V']
    lastst = place(G, st14, HA, HA + 10) if st14 else HA
    place(G, vreads(14, alt=True), HA, HA + 28)
    for j in st15: place(G, o_read(j), max(lastst + 3, HA + 28), HA + 33)
    put_check(G, [(x, max(lo, HA)) for x, lo in check_items(14) if x not in done], HA)
    e(f"s_waitcnt vmcnt({vm_wait('L', 14)}) lgkmcnt(0)")
    e("s_barrier")
    stampB()
    for m, gp in zip(pv(13), G[HA:]):
        e(m)
        for x in gp.ins(): e(x)
    chk(314)
    com("==== last head, iter 15: O += V P(14)")
    n15 = wait_for('L', 15, [('V', 15)], ph=0)
    ckl = check_items(15)
    G = [Gap() for _ in range(HB)]
    place(G, vreads(15), 0, 26)
    for j in st15: place(G, o_store(j), 2, 12)
    G[14].add(f"s_lshr_b32 {sr(S_OB)}, {sr(S_KB)}, 1")
    st = []
    for x in sm_linear(15):
        st.append(x)
        if x.startswith("v_cvt_pk"):
            pidx = int(x.split()[1].strip(",")[1:]) - (V_P + 16)
            if pidx % 2: st.append(ckl[pidx // 2][0])
    st += [ckl[8][0], ckl[9][0]]
    e(f"s_waitcnt vmcnt({n15}) lgkmcnt(0)")
    stampA(15)
    e("s_barrier")
    stampB()
    place(G, st, 0, HB, strict=False)
    for m, gp in zip(pv(14, alt=True), G):
        e(m)
        for x in gp.ins(): e(x)
    chk(315)
    pass_end_diag()
    com("==== last head: O += V P(15), normalise, store")
    e("s_waitcnt lgkmcnt(0)")
    mf = pv(15, tail=True)
    for x in mf[:18]: e(x)
    def tail_store(qb, tw):
        for j in range(4 * qb, 4 * qb + 4):
            if j % 2 == 0: e(f"s_add_u32 {sr(S_A)}, {sr(S_OB)}, {pcoff(j >> 1)}")
            e(f"s_waitcnt lgkmcnt({tw + (4 * qb + 3 - j)})")
            e(f"buffer_store_dwordx4 {vr(V_S+4*j,4)}, {vr(V_DQ + (j & 1))}, {sr(S_OSRD,4)}, {sr(S_A)} offen offset:{1024*(j&1)}{stf}")
    n = 0
    for qb in range(4):
        for x in linv([qb]): e(x)
        for db in range(8):
            if qb < 2: e(mf[18 + 9 * qb + db])
            for x in opack_unit(db, qb, n): e(x)
            n += 1
            if db == 3 and qb > 0: tail_store(qb - 1, 4)
        if qb < 2: e(mf[18 + 9 * qb + 8])
        for j in range(4 * qb, 4 * qb + 4): e(f"ds_read_b128 {vr(V_S+4*j,4)}, {vr(V_OR)} offset:{j*1024}")
    tail_store(3, 0)
    if o.stamps:
        e("s_memrealtime s[60:61]"); e("s_waitcnt vmcnt(0) lgkmcnt(0)"); e(f"v_writelane_b32 v{V_DBG}, s60, 24"); stamp_dump()
    if o.dbg:
        D = V_DBG
        e(f"s_cmp_lg_u32 {sr(S_W)}, 3"); e("s_cbranch_scc1 L_end"); e("s_waitcnt vmcnt(0)")
        e("s_memrealtime s[58:59]"); e("s_memtime s[60:61]"); e("s_waitcnt lgkmcnt(0)")
        e("s_mov_b32 s68, s48"); e("s_and_b32 s69, s49, 0xffff"); e("s_mov_b32 s70, 64"); e("s_mov_b32 s71, 0x20000")
        e("s_not_b32 s62, s52"); e(f"v_writelane_b32 v{D}, s62, 0"); e(f"v_writelane_b32 v{D}, s58, 1")
        e("s_not_b32 s62, s58"); e(f"v_writelane_b32 v{D}, s62, 2"); e("s_sub_u32 s62, s56, s52"); e(f"v_writelane_b32 v{D}, s62, 3")
        e("s_sub_u32 s62, s58, s52"); e("s_lshl_b32 s62, s62, 16"); e("s_sub_u32 s63, s60, s50"); e("s_lshr_b32 s63, s63, 3")
        e("s_or_b32 s62, s62, s63"); e("s_getreg_b32 s63, hwreg(HW_REG_XCC_ID)"); e("s_and_b32 s63, s63, 7"); e("s_add_u32 m0, s63, 8")
        e("s_nop 3"); e(f"v_writelane_b32 v{D}, s62, m0")
        e(f"v_mbcnt_lo_u32_b32 v{D+1}, -1, 0"); e(f"v_mbcnt_hi_u32_b32 v{D+1}, -1, v{D+1}"); e(f"v_lshlrev_b32 v{D+1}, 2, v{D+1}")
        e(f"buffer_atomic_umax v{D}, v{D+1}, s[68:71], 0 offen")
    lab("L_end")
    e("s_endpgm")
    com("==== rare path: move to the true running row maximum, rescale O and the row sums, redo exp of this block")
    for f in fallbacks:
        lab(f"L_fb{f}"); e(f"s_movk_i32 {sr(S_RET)}, {f}"); e(f"s_branch L_fbp{f % 2}")
    for par in range(2):
        lab(f"L_fbp{par}")
        e("s_nop 15")
        X0, X1, X2 = V_X, V_X + 1, V_X + 2
        for q in range(4):
            for x in rowmax(par, q, X0, X1): e(x)
            e(f"v_mul_f32 {vr(X0)}, {sr(S_C)}, {vr(X0)}")
            e(f"v_sub_f32 {vr(X0)}, {sr(S_BIAS)}, {vr(X0)}")
            e(f"v_min_f32 {vr(X0)}, {vr(X0)}, {vr(V_NMC+q)}")
            e(f"v_sub_f32 {vr(X1)}, {vr(X0)}, {vr(V_NMC+q)}")
            e(f"v_exp_f32 {vr(X1)}, {vr(X1)}")
            e(f"v_mov_b32 {vr(V_NMC+q)}, {vr(X0)}")
            for db in range(9):
                k, base = oreg(db, q) if db < 8 else ('a', A_L + 4 * q)
                for i in range(4):
                    if k == 'v': e(f"v_mul_f32 {vr(base+i)}, {vr(base+i)}, {vr(X1)}")
                    else:
                        e(f"v_accvgpr_read_b32 {vr(X2)}, {ar(base+i)}"); e(f"v_mul_f32 {vr(X2)}, {vr(X2)}, {vr(X1)}")
                        e(f"v_accvgpr_write_b32 {ar(base+i)}, {vr(X2)}")
        for x in sm_linear(par): e(x)
        e("s_nop 1")
        fs = [f for f in fallbacks if f % 2 == par]
        for f in fs[:-1]:
            e(f"s_cmpk_eq_u32 {sr(S_RET)}, {f}"); e(f"s_cbranch_scc1 L_ret{f}")
        e(f"s_branch L_ret{fs[-1]}")
    lab("L_codeend")

    out = HEADER + "; @launch grid=(256,1,1) block=(256,1,1) lds=163840\n" + DOC
    out += '.amdgcn_target "amdgcn-amd-amdhsa--gfx950"\n.text\n'
    out += f".globl {NAME}_kernel\n.p2align 8\n.type {NAME}_kernel,@function\n{NAME}_kernel:\n"
    out += "\n".join(L) + "\n"
    out += f""".section .rodata,"a"
.p2align 6
.amdhsa_kernel {NAME}_kernel
  .amdhsa_next_free_vgpr {256 + NACC}
  .amdhsa_next_free_sgpr {102 if (o.stamps or o.dbg) else 48}
  .amdhsa_accum_offset 256
  .amdhsa_group_segment_fixed_size 0
  .amdhsa_kernarg_size 48
  .amdhsa_user_sgpr_count 2
  .amdhsa_user_sgpr_kernarg_segment_ptr 1
  .amdhsa_system_sgpr_workgroup_id_x 1
.end_amdhsa_kernel
"""
    return out

def main():
    ap = argparse.ArgumentParser()
    il = lambda s: [int(x) for x in s.split(",")]
    ap.add_argument("-o", default="out.s")
    ap.add_argument("--bias", type=float, default=17.0)
    ap.add_argument("--rdA", type=int, default=26)
    ap.add_argument("--rdB", type=int, default=28)
    ap.add_argument("--da0", type=int, default=5)
    ap.add_argument("--da1", type=int, default=31)
    ap.add_argument("--dm0", type=int, default=2)
    ap.add_argument("--dm1", type=int, default=35)
    ap.add_argument("--ka", type=int, default=3)
    ap.add_argument("--va", type=int, default=2)
    ap.add_argument("--vk", action="store_true")
    ap.add_argument("--st_iter", type=il, default=[2, 4, 6, 8, 10, 13, 14, 15])
    ap.add_argument("--q_iter", type=il, default=[-1, 1, 3, 5, 7, 9, 11, 12])
    ap.add_argument("--qe", type=int, default=3)
    ap.add_argument("--q0_iter", type=il, default=[5, 7, 9, 11, 12])
    ap.add_argument("--lazy", type=il, default=[2, 2, 3, 4, 4, 5, 6, 6, 7, 8, 8, 9, 10, 10, 11, 12])
    ap.add_argument("--lf", type=il, default=[1480])
    ap.add_argument("--lm", type=il, default=[1500])
    ap.add_argument("--ll", type=il, default=[0])
    ap.add_argument("--wt", type=il, default=None)
    ap.add_argument("--xgrp", type=int, default=5)
    ap.add_argument("--pbits", type=il, default=[10, 11, 16])
    ap.add_argument("--bbits", type=il, default=[15, 12, 13, 14])
    ap.add_argument("--qbits", type=il, default=[10, 14, 15])
    ap.add_argument("--jbits", type=il, default=[11, 12, 13])
    ap.add_argument("--stamps", action="store_true")
    ap.add_argument("--dbg", action="store_true")
    ap.add_argument("--verbose", action="store_true")
    o = ap.parse_args()
    open(o.o, "w").write(build(o))

if __name__ == "__main__":
    main()
```
